```python
import torch

def _softmax(x, axis=-1):
    return torch.softmax(x, dim=axis)

def _gelu(x):
    return torch.nn.functional.gelu(x, approximate='tanh')

def _silu(x):
    return torch.nn.functional.silu(x)

def _sigmoid(x):
    return torch.sigmoid(x)

def _layernorm(x, axis=-1, eps=1e-05):
    m = x.mean(dim=axis, keepdim=True)
    v = x.var(dim=axis, keepdim=True, unbiased=False)
    return (x - m) / torch.sqrt(v + eps)

def _scatter_add(tgt, idx, src, axis=0):
    return tgt.clone().index_add_(axis, idx, src)

def _segment_sum(src, seg, n):
    out = torch.zeros((n,) + src.shape[1:], dtype=src.dtype)
    return out.index_add_(0, seg, src)

def _pad(x, pw):
    flat = tuple((v for pair in reversed(pw) for v in pair))
    return torch.nn.functional.pad(x, flat)
kernel_name = 'adaLN_cond__memory_aug_recurrent_mem_tr__mixer_token_mlp__prompt'

def setup_inputs():

    _w = lambda a: (lambda t: t.to(torch.bfloat16) if t.is_floating_point() else t)(torch.as_tensor(a))

    def _A_setup():
        B, S, Dm = (1, 2048, 1024)
        H, Dh = (32, 128)
        M, seg = (8, 32)
        seg = min(seg, S)
        S = S // seg * seg
        return {'x': _w((lambda *s: torch.randn(*s, dtype=torch.bfloat16) * 0.05)(B, S, Dm)), 'mem0': _w((lambda *s: torch.randn(*s, dtype=torch.bfloat16) * 0.8)(B, M, Dm)), 'Wq': _w((lambda *s: torch.randn(*s, dtype=torch.bfloat16) * 1.6)(Dm, H, Dh) * Dm ** (-0.5)), 'Wk': _w((lambda *s: torch.randn(*s, dtype=torch.bfloat16) * 1.6)(Dm, H, Dh) * Dm ** (-0.5)), 'Wv': _w((lambda *s: torch.randn(*s, dtype=torch.bfloat16) * 0.8)(Dm, H, Dh) * Dm ** (-0.5)), 'Wo': _w((lambda *s: torch.randn(*s, dtype=torch.bfloat16) * 0.8)(H, Dh, Dm) * (H * Dh) ** (-0.5)), 'seg_len': seg}
    _A_in = _A_setup()

    def _B_setup():
        B, S, D, F = (1, 2048, 1024, 3584)
        return {'x': _w((lambda *s: torch.randn(*s, dtype=torch.bfloat16) * 0.05)(B, S, D)), 'w1': _w((lambda *s: torch.randn(*s, dtype=torch.bfloat16) * 1.6)(S, F) * S ** (-0.5)), 'b1': _w((lambda *s: torch.randn(*s, dtype=torch.bfloat16) * 1.6)(F) * 0.02), 'w2': _w((lambda *s: torch.randn(*s, dtype=torch.bfloat16) * 0.2)(F, S) * F ** (-0.5)), 'b2': _w((lambda *s: torch.randn(*s, dtype=torch.bfloat16) * 0.2)(S) * 0.02)}
    _B_in = _B_setup()
    return {'A_x': _A_in['x'], 'A_mem0': _A_in['mem0'], 'A_Wq': _A_in['Wq'], 'A_Wk': _A_in['Wk'], 'A_Wv': _A_in['Wv'], 'A_Wo': _A_in['Wo'], 'A_seg_len': _A_in['seg_len'], 'B_x': _B_in['x'], 'B_w1': _B_in['w1'], 'B_b1': _B_in['b1'], 'B_w2': _B_in['w2'], 'B_b2': _B_in['b2'], 'c': _w((lambda *s: torch.randn(*s, dtype=torch.bfloat16) * 0.05)(1, 1024) * 8.0), 'w_mod': _w((lambda *s: torch.randn(*s, dtype=torch.bfloat16) * 0.05)(1024, 6 * 1024) * 1024 ** (-0.5) * 8.0)}

def reference(A_x, A_mem0, A_Wq, A_Wk, A_Wv, A_Wo, A_seg_len, B_x, B_w1, B_b1, B_w2, B_b2, c, w_mod):

    def _A_ref(x, mem0, Wq, Wk, Wv, Wo, seg_len):
        B, S, Dm = x.shape
        H, Dh = (Wq.shape[1], Wq.shape[2])
        M = mem0.shape[1]
        scale = Dh ** (-0.5)
        n_seg = S // seg_len
        L = M + seg_len
        idx = torch.arange(L)
        mask = (idx[:, None] < M) | (idx[:, None] >= idx[None, :])
        mem = mem0
        outs = []
        for s in range(n_seg):
            xs = x[:, s * seg_len:(s + 1) * seg_len, :].clone()
            h = torch.concatenate([mem, xs], axis=1)
            q = torch.einsum('btd,dhe->bhte', h, Wq)
            k = torch.einsum('btd,dhe->bhte', h, Wk)
            v = torch.einsum('btd,dhe->bhte', h, Wv)
            scores = torch.einsum('bhqe,bhke->bhqk', q, k) * scale
            scores = torch.where(mask[None, None], scores, -1000000000.0)
            p = _softmax(scores, axis=-1)
            o = torch.einsum('bhqk,bhke->bhqe', p, v)
            o = torch.einsum('bhte,hed->btd', o, Wo)
            mem = o[:, :M, :].clone()
            outs.append(o[:, M:, :])
        return torch.concatenate(outs, axis=1)

    def _B_ref(x, w1, b1, w2, b2):
        B, S, D = x.shape
        h = _layernorm(x, axis=-1)
        u = torch.einsum('bsd,sf->bdf', h, w1) + b1
        u = _gelu(u)
        y = torch.einsum('bdf,fs->bds', u, w2) + b2
        return (lambda x, *d: x.permute(*d))(y, 0, 2, 1)
    x = A_x
    mod = (_silu(c) @ w_mod).reshape(c.shape[0], 6, 1, -1)
    sa, ca, ga, sb, cb, gb = (mod[:, 0].clone(), mod[:, 1].clone(), mod[:, 2].clone(), mod[:, 3].clone(), mod[:, 4].clone(), mod[:, 5].clone())
    h = _layernorm(x, axis=-1) * (1 + ca) + sa
    x = x + ga * _A_ref(h, A_mem0, A_Wq, A_Wk, A_Wv, A_Wo, A_seg_len)
    h = _layernorm(x, axis=-1) * (1 + cb) + sb
    x = x + gb * _B_ref(h, B_w1, B_b1, B_w2, B_b2)
    return x
```

```python
class Asm:
    def __init__(self):
        self.lines = []
        self._lbl = 0
    def __call__(self, s):
        for ln in s.strip('\n').split('\n'):
            self.lines.append('    ' + ln.strip() if not ln.strip().endswith(':') else ln.strip())
    def raw(self, s):
        self.lines.append(s)
    def label(self, name):
        self.lines.append(name + ':')
    def newlabel(self, base='L'):
        self._lbl += 1
        return f'{base}_{self._lbl}'
    def nop(self, n):
        while n > 0:
            k = min(n, 16)
            self(f's_nop {k-1}')
            n -= k
    def text(self):
        return '\n'.join(self.lines) + '\n'

def v(i, n=1):
    return f'v{i}' if n == 1 else f'v[{i}:{i+n-1}]'
def a(i, n=1):
    return f'a{i}' if n == 1 else f'a[{i}:{i+n-1}]'
def s(i, n=1):
    return f's{i}' if n == 1 else f's[{i}:{i+n-1}]'

class RegAlloc:
    def __init__(self, start=0, limit=256):
        self.next = start; self.limit = limit; self.names = {}
    def alloc(self, name, n=1, align=1):
        p = (self.next + align - 1) // align * align
        self.next = p + n
        assert self.next <= self.limit, f'out of regs allocating {name}: {self.next} > {self.limit}'
        self.names[name] = (p, n)
        return p

def kernel_header(name):
    return f""".globl {name}
.p2align 8
.type {name},@function
{name}:
"""

def kernel_desc(name, vgpr, sgpr, accum, wgid_y=False):
    t = f""".amdhsa_kernel {name}
  .amdhsa_next_free_vgpr {vgpr}
  .amdhsa_next_free_sgpr {sgpr}
  .amdhsa_accum_offset {accum}
  .amdhsa_group_segment_fixed_size 0
  .amdhsa_kernarg_size 136
  .amdhsa_user_sgpr_count 2
  .amdhsa_user_sgpr_kernarg_segment_ptr 1
  .amdhsa_system_sgpr_workgroup_id_x 1
"""
    if wgid_y:
        t += "  .amdhsa_system_sgpr_workgroup_id_y 1\n"
    t += ".end_amdhsa_kernel\n"
    return t

KA = dict(x=0, mem0=8, Wq=16, Wk=24, Wv=32, Wo=40, seg=48, Bx=56, w1=64, b1=72, w2=80, b2=88, c=96, wmod=104, out=112, dbg=120, ws=128)

MB = 1 << 20
WS = {}
_off = 0
def _ws(name, size, align=4096):
    global _off
    _off = (_off + align - 1) // align * align
    WS[name] = _off
    _off += size
_ws('MOD', 8 * 1024 * 4)
_ws('FLAGS', 64 * 1024)
_ws('RA', 4 * 8 * 24576)
_ws('RD', 4 * 8 * 16384)
_ws('RC', 4 * 16 * 8 * 2048)
WS['RING_END'] = _off
_ws('H', 4 * MB)
_ws('Q', 16 * MB)
_ws('K', 16 * MB)
_ws('VT', 16 * MB)
_ws('KVM', 64 * 32 * 4096)
_ws('O', 16 * MB)
_ws('X1', 4 * MB)
_ws('H2', 4 * MB)
_ws('U', 1024 * 3584 * 2)
WS['END'] = _off
WS_SIZE = 268435456
```

```python
import sys
sys.path.insert(0, 'gen')
from asmlib import *

HEADER = open('adaLN_cond__memory_aug_recurrent_mem_tr__mixer_token_mlp__prompt.s.ref').read()
HEADER = HEADER[:HEADER.index('; Override launch geometry')]

def assemble_file(launches, kernels, path):
    out = HEADER
    for (k, g, b, lds) in launches:
        out += f"; @launch kernel={k} grid=({g},1,1) block=({b},1,1) lds={lds}\n"
    out += '.amdgcn_target "amdgcn-amd-amdhsa--gfx950"\n.text\n'
    for (n, t, d) in kernels:
        out += t
    out += '.section .rodata,"a"\n'
    for (n, t, d) in kernels:
        out += '.p2align 6\n' + d
    open(path, 'w').write(out)
    return out
```

```python
from asmlib import *
import struct, math

SENT_BUDGET = 400000

def interleave(A, main, fill, start=0, every=1):
    fill = list(fill)
    for idx, m in enumerate(main):
        A(m)
        if idx >= start and (idx - start) % every == 0 and fill:
            A(fill.pop(0))
    for f in fill:
        A(f)

def gen_chain(name='chain_kernel', nsteps=64, timing=False, stamp_step=11, full='', cdelay=8, ldf='sc1', ddelay=0, adelay=0):
    A = Asm()
    A.raw(kernel_header(name))
    sWS = 8; sT = 12; sDBG = 16
    sX, sC, sW, sStep, sBud = 20, 21, 22, 23, 24
    sOffD, sOffA, sOffC, sOffKx, sOffVx, sTmp, sTmp2 = 25, 26, 27, 28, 30, 32, 33
    sOffVx1 = 31
    sOffKx1 = 29
    sOffAr, sOffDr, sOffCr, sOffKVM = 34, 35, 36, 37
    sCexp = 38; sH = 39
    sPq, sPk, sPv, sPo, sPm = 40, 42, 44, 46, 48
    sExecSave = 50
    sHL, sJ = 52, 53
    sT0 = 54
    sMask = 58
    sC1, sC2, sC3, sCst, sOffDn = 59, 60, 61, 62, 63
    sBaseA, sBaseD, sBaseC, sBaseCo = 88, 89, 90, 91
    sSt = 64
    R = RegAlloc(0, 256)
    R.alloc('tid')
    vLane = R.alloc('lane'); vCol = R.alloc('col'); vG = R.alloc('g')
    vT1 = R.alloc('t1'); vT2 = R.alloc('t2'); vT3 = R.alloc('t3')
    vOffD = R.alloc('offD'); vOffAq = R.alloc('offAq'); vOffAv = R.alloc('offAv'); vOffAst = R.alloc('offAst')
    vOffC = R.alloc('offC'); vOffDst = R.alloc('offDst'); vL16 = R.alloc('l16')
    vLds1w = R.alloc('lds1w'); vLds1r = R.alloc('lds1r'); vLds3w = R.alloc('lds3w'); vLds3r = R.alloc('lds3r')
    vSent = R.alloc('sent', 4, 4)
    vM = R.alloc('M', 16, 4); vRM = R.alloc('RM', 16, 4)
    vAcc = R.alloc('acc', 48, 4)
    vRd = R.alloc('rd', 32, 4)
    vQ = R.alloc('q', 8, 4); vK = R.alloc('k', 8, 4); vVm = R.alloc('vm', 8, 4)
    vRQ = vRM
    vOB = vM
    vKx = R.alloc('Kx', 32, 4); vVx = R.alloc('Vx', 32, 4)
    vSm = R.alloc('Smm', 4, 4); vS1 = vRd; vS2 = vRd + 4
    vSM = R.alloc('SM', 4, 4); vTT = R.alloc('TT', 4, 4)
    vBX = R.alloc('BX', 4, 4); vPM = R.alloc('PM', 2, 2); vPMh = R.alloc('PMh', 2, 2); vPMc = R.alloc('PMc', 2, 2)
    vMax = R.alloc('max'); vMx2 = R.alloc('mx2'); vSum = R.alloc('sum'); vSu2 = R.alloc('su2')
    vO = vAcc; vE = vAcc + 32
    print('chain vgprs used', R.next)
    aW1 = 0; aWo = 192
    def W1(t, ks): return a(aW1 + (t * 8 + ks) * 4, 4)
    def Wo(tn, u): return a(aWo + (tn * 4 + u) * 4, 4)
    def acc(t): return vAcc + t * 4
    LDS_P1 = 0; LDS_P3 = 12288
    ws = f"s[{sWS}:{sWS+3}]"

    A(f"""
    s_cmp_ge_u32 s2, 256
    s_cbranch_scc1 {name}_exit
    s_load_dwordx2 s[{sPm}:{sPm+1}], s[0:1], {KA['mem0']}
    s_load_dwordx2 s[{sPq}:{sPq+1}], s[0:1], {KA['Wq']}
    s_load_dwordx2 s[{sPk}:{sPk+1}], s[0:1], {KA['Wk']}
    s_load_dwordx2 s[{sPv}:{sPv+1}], s[0:1], {KA['Wv']}
    s_load_dwordx2 s[{sPo}:{sPo+1}], s[0:1], {KA['Wo']}
    s_load_dwordx2 s[4:5], s[0:1], {KA['dbg']}
    s_load_dwordx2 s[6:7], s[0:1], {KA['ws']}
    s_getreg_b32 s{sX}, hwreg(HW_REG_XCC_ID)
    s_and_b32 s{sX}, s{sX}, 7
    v_and_b32 v{vLane}, 63, v0
    v_lshrrev_b32 v{vT1}, 6, v0
    s_nop 0
    v_readfirstlane_b32 s{sW}, v{vT1}
    v_and_b32 v{vCol}, 15, v{vLane}
    v_lshrrev_b32 v{vG}, 4, v{vLane}
    v_lshlrev_b32 v{vL16}, 4, v{vLane}
    s_waitcnt lgkmcnt(0)
    s_mov_b32 s{sWS}, s6
    s_mov_b32 s{sWS+1}, s7
    s_mov_b32 s{sWS+2}, {WS_SIZE}
    s_mov_b32 s{sWS+3}, 0x20000
    s_mov_b32 s{sDBG}, s4
    s_mov_b32 s{sDBG+1}, s5
    s_mov_b32 s{sDBG+2}, 256
    s_mov_b32 s{sDBG+3}, 0x20000
    s_cmp_lg_u32 s{sW}, 0
    s_cbranch_scc1 {name}_tk
    v_mov_b32 v{vT1}, 1
    s_lshl_b32 s{sTmp}, s{sX}, 2
    v_mov_b32 v{vT2}, s{sTmp}
    s_mov_b64 s[{sExecSave}:{sExecSave+1}], exec
    s_mov_b64 exec, 1
    buffer_atomic_add v{vT1}, v{vT2}, s[{sDBG}:{sDBG+3}], 0 offen sc0
    s_waitcnt vmcnt(0)
    v_mov_b32 v{vT2}, 0
    ds_write_b32 v{vT2}, v{vT1}
    s_waitcnt lgkmcnt(0)
    s_mov_b64 exec, s[{sExecSave}:{sExecSave+1}]
    {name}_tk:
    s_barrier
    v_mov_b32 v{vT2}, 0
    ds_read_b32 v{vT1}, v{vT2}
    s_waitcnt lgkmcnt(0)
    s_nop 0
    v_readfirstlane_b32 s{sC}, v{vT1}
    s_nop 3
    s_barrier
    s_cmp_ge_u32 s{sC}, 16
    s_cbranch_scc1 {name}_exit
    s_lshr_b32 s{sHL}, s{sC}, 2
    s_and_b32 s{sJ}, s{sC}, 3
    """)
    if timing:
        A(f"s_memrealtime s[{sT0}:{sT0+1}]")
    A(f"""
    s_lshl_b32 s{sH}, s{sX}, 2
    s_add_u32 s{sH}, s{sH}, s{sHL}
    s_lshl_b32 s{sTmp}, s{sH}, 8
    s_lshl_b32 s{sTmp2}, s{sJ}, 6
    s_add_u32 s{sTmp}, s{sTmp}, s{sTmp2}
    s_lshl_b32 s{sTmp2}, s{sW}, 21
    s_add_u32 s{sTmp}, s{sTmp}, s{sTmp2}
    v_lshrrev_b32 v{vT1}, 2, v{vLane}
    v_lshlrev_b32 v{vT1}, 13, v{vT1}
    v_and_b32 v{vT2}, 3, v{vLane}
    v_lshlrev_b32 v{vT2}, 4, v{vT2}
    v_add3_u32 v{vT1}, v{vT1}, v{vT2}, s{sTmp}
    s_mov_b32 s{sT+2}, {1024*4096*2}
    s_mov_b32 s{sT+3}, 0x20000
    v_lshrrev_b32 v{vT2}, 2, v{vCol}
    v_lshl_add_u32 v{vT2}, v{vG}, 3, v{vT2}
    v_lshlrev_b32 v{vT2}, 6, v{vT2}
    v_and_b32 v{vT3}, 3, v{vCol}
    v_lshl_add_u32 v{vT2}, v{vT3}, 3, v{vT2}
    s_lshl_b32 s{sTmp2}, s{sW}, 15
    v_add_u32 v{vT2}, s{sTmp2}, v{vT2}
    """)
    def dma_w1(ptr, ldsoff):
        A(f"s_mov_b32 s{sT}, s{ptr}")
        A(f"s_mov_b32 s{sT+1}, s{ptr+1}")
        for n in range(16):
            A(f"""
            s_lshl_b32 s{sTmp2}, s{sW}, 15
            s_add_u32 m0, s{sTmp2}, {ldsoff + n*1024}
            s_mov_b32 s{sTmp}, {n*16*8192}
            buffer_load_dwordx4 v{vT1}, s[{sT}:{sT+3}], s{sTmp} offen lds
            """)
    def tr_w1(tile0, ldsoff):
        for tt in range(2):
            for ks in range(8):
                for hh in range(2):
                    off = ldsoff + (32*ks + 4*hh)*64 + tt*32
                    reg = aW1 + ((tile0+tt)*8 + ks)*4 + 2*hh
                    A(f"ds_read_b64_tr_b16 a[{reg}:{reg+1}], v{vT2} offset:{off}")
            A("s_waitcnt lgkmcnt(0)")
    dma_w1(sPq, 0)
    dma_w1(sPk, 16384)
    A("s_waitcnt vmcnt(0)")
    tr_w1(0, 0)
    tr_w1(2, 16384)
    dma_w1(sPv, 0)
    A(f"""
    s_lshl_b32 s{sTmp}, s{sX}, 2
    s_add_u32 s{sTmp}, s{sTmp}, s{sW}
    s_lshl_b32 s{sTmp}, s{sTmp}, 18
    s_lshl_b32 s{sTmp2}, s{sC}, 7
    s_add_u32 s{sTmp}, s{sTmp}, s{sTmp2}
    v_lshrrev_b32 v{vT3}, 3, v{vLane}
    v_lshlrev_b32 v{vT3}, 11, v{vT3}
    v_and_b32 v{vOffD}, 7, v{vLane}
    v_lshlrev_b32 v{vOffD}, 4, v{vOffD}
    v_add3_u32 v{vT3}, v{vT3}, v{vOffD}, s{sTmp}
    s_mov_b32 s{sT}, s{sPo}
    s_mov_b32 s{sT+1}, s{sPo+1}
    s_mov_b32 s{sT+2}, {4096*1024*2}
    """)
    for n in range(16):
        A(f"""
        s_lshl_b32 s{sTmp2}, s{sW}, 15
        s_add_u32 m0, s{sTmp2}, {16384 + n*1024}
        s_mov_b32 s{sTmp}, {n*8*2048}
        buffer_load_dwordx4 v{vT3}, s[{sT}:{sT+3}], s{sTmp} offen lds
        """)
    A("s_waitcnt vmcnt(0)")
    tr_w1(4, 0)
    A(f"""
    v_lshrrev_b32 v{vT2}, 2, v{vCol}
    v_lshl_add_u32 v{vT2}, v{vG}, 2, v{vT2}
    v_lshlrev_b32 v{vT2}, 7, v{vT2}
    v_and_b32 v{vT3}, 3, v{vCol}
    v_lshl_add_u32 v{vT2}, v{vT3}, 4, v{vT2}
    s_lshl_b32 s{sTmp2}, s{sW}, 15
    v_add_u32 v{vT2}, s{sTmp2}, v{vT2}
    """)
    for tn in range(4):
        for u in range(4):
            for hh in range(2):
                off = 16384 + (32*u + 16*hh)*128 + (tn & 1)*64 + (tn >> 1)*8
                reg = aWo + (tn*4+u)*4 + 2*hh
                A(f"ds_read_b64_tr_b16 a[{reg}:{reg+1}], v{vT2} offset:{off}")
        A("s_waitcnt lgkmcnt(0)")
    A(f"""
    v_and_b32 v{vT1}, 7, v{vCol}
    v_lshrrev_b32 v{vT2}, 3, v{vCol}
    v_lshlrev_b32 v{vT3}, 11, v{vT1}
    v_lshl_add_u32 v{vT3}, v{vT2}, 6, v{vT3}
    v_lshl_add_u32 v{vT3}, v{vG}, 4, v{vT3}
    s_lshl_b32 s{sTmp}, s{sW}, 9
    v_add_u32 v{vT3}, s{sTmp}, v{vT3}
    s_mov_b32 s{sT}, s{sPm}
    s_mov_b32 s{sT+1}, s{sPm+1}
    s_mov_b32 s{sT+2}, 16384
    """)
    for i in range(4):
        A(f"buffer_load_dwordx4 {v(vM+4*i,4)}, v{vT3}, s[{sT}:{sT+3}], 0 offen offset:{i*128}")
    A(f"""
    s_lshl_b32 s{sTmp}, s{sW}, 12
    v_add_u32 v{vOffD}, s{sTmp}, v{vL16}                 ; w*4096 + lane*16
    s_mul_i32 s{sTmp}, s{sW}, 6144
    v_add_u32 v{vOffAq}, s{sTmp}, v{vL16}                ; w*6144 + lane*16
    v_lshlrev_b32 v{vOffAv}, 3, v{vLane}
    s_add_u32 s{sTmp}, s{sTmp}, 4096
    v_add_u32 v{vOffAv}, s{sTmp}, v{vOffAv}              ; w*6144 + 4096 + lane*8
    s_mul_i32 s{sTmp}, s{sHL}, 6144
    s_cmp_eq_u32 s{sW}, 2
    s_cbranch_scc1 {name}_astv
    v_lshlrev_b32 v{vOffAst}, 4, v{vT1}
    v_lshl_add_u32 v{vOffAst}, v{vG}, 8, v{vOffAst}
    v_lshl_add_u32 v{vOffAst}, v{vT2}, 3, v{vOffAst}
    s_lshr_b32 s{sTmp2}, s{sJ}, 1
    s_lshl_b32 s{sTmp2}, s{sTmp2}, 10
    s_add_u32 s{sTmp}, s{sTmp}, s{sTmp2}
    s_and_b32 s{sTmp2}, s{sJ}, 1
    s_lshl_b32 s{sTmp2}, s{sTmp2}, 7
    s_add_u32 s{sTmp}, s{sTmp}, s{sTmp2}
    s_and_b32 s{sTmp2}, s{sW}, 1
    s_lshl_b32 s{sTmp2}, s{sTmp2}, 11
    s_add_u32 s{sTmp}, s{sTmp}, s{sTmp2}
    v_add_u32 v{vOffAst}, s{sTmp}, v{vOffAst}
    s_branch {name}_astd
    {name}_astv:
    v_lshlrev_b32 v{vOffAst}, 3, v{vLane}
    s_lshl_b32 s{sTmp2}, s{sJ}, 9
    s_add_u32 s{sTmp}, s{sTmp}, s{sTmp2}
    s_add_u32 s{sTmp}, s{sTmp}, 4096
    v_add_u32 v{vOffAst}, s{sTmp}, v{vOffAst}
    {name}_astd:
    s_and_b32 s{sTmp}, s{sW}, 1
    s_lshl_b32 s{sTmp2}, s{sTmp}, 10
    v_add_u32 v{vOffC}, s{sTmp2}, v{vL16}                ; p*1024 + lane*16
    s_lshl_b32 s{sTmp2}, s{sTmp}, 3
    s_lshl_b32 s{sTmp}, s{sC}, 10
    s_add_u32 s{sTmp}, s{sTmp}, s{sTmp2}
    v_add_u32 v{vOffDst}, s{sTmp}, v{vL16}               ; c*1024 + lane*16 + 8p
    s_lshl_b32 s{sTmp}, s{sX}, 2
    s_add_u32 s{sTmp}, s{sTmp}, s{sW}
    s_lshl_b32 s{sOffKVM}, s{sTmp}, 12
    s_add_u32 s{sOffKVM}, s{sOffKVM}, {WS['KVM']}
    s_lshl_b32 s{sTmp}, s{sTmp}, 13                      ; head*8192
    s_add_u32 s{sOffKx}, s{sTmp}, {WS['K']}
    s_add_u32 s{sOffKx1}, s{sOffKx}, 4096
    s_add_u32 s{sOffVx}, s{sTmp}, {WS['VT']}
    s_add_u32 s{sOffVx1}, s{sOffVx}, 4096
    s_mul_i32 s{sBaseA}, s{sX}, 24576
    s_add_u32 s{sBaseA}, s{sBaseA}, {WS['RA']}
    s_lshl_b32 s{sBaseD}, s{sX}, 14
    s_add_u32 s{sBaseD}, s{sBaseD}, {WS['RD']}
    s_lshl_b32 s{sBaseC}, s{sC}, 14
    s_add_u32 s{sBaseC}, s{sBaseC}, {WS['RC']}
    s_lshl_b32 s{sBaseCo}, s{sX}, 11
    s_add_u32 s{sBaseCo}, s{sBaseCo}, s{sBaseC}
    s_mul_i32 s{sTmp}, s{sW}, 3072
    v_add_u32 v{vLds1w}, s{sTmp}, v{vL16}
    s_lshl_b32 s{sTmp}, s{sW}, 10
    v_add_u32 v{vLds1r}, s{sTmp}, v{vL16}
    s_lshl_b32 s{sTmp}, s{sW}, 11
    s_add_u32 s{sTmp}, s{sTmp}, {LDS_P3}
    v_add_u32 v{vLds3w}, s{sTmp}, v{vL16}
    s_and_b32 s{sTmp}, s{sW}, 1
    s_lshl_b32 s{sTmp}, s{sTmp}, 10
    s_add_u32 s{sTmp}, s{sTmp}, {LDS_P3}
    v_add_u32 v{vLds3r}, s{sTmp}, v{vL16}
    v_mov_b32 v{vSent}, -1
    v_mov_b32 v{vSent+1}, -1
    v_mov_b32 v{vSent+2}, -1
    v_mov_b32 v{vSent+3}, -1
    s_mov_b32 s{sBud}, {SENT_BUDGET}
    s_mov_b32 s{sStep}, 0
    """)
    cexp = struct.unpack('<I', struct.pack('<f', (128 ** -0.5) * math.log2(math.e)))[0]
    A(f"s_mov_b32 s{sCexp}, {hex(cexp)}")
    A("s_barrier")
    def kx_loads():
        return [f"buffer_load_dwordx4 {v(vKx + (t*4+ks)*4, 4)}, v{vL16}, {ws}, s{sOffKx if t == 0 else sOffKx1} offen offset:{ks*1024}" for t in range(2) for ks in range(4)]
    def vx_loads():
        return [f"buffer_load_dwordx4 {v(vVx + t*4, 4)}, v{vL16}, {ws}, s{sOffVx if t < 4 else sOffVx1} offen offset:{(t%4)*1024}" for t in range(8)]
    for l in kx_loads() + vx_loads(): A(l)
    if timing:
        for i in range(8): A(f"s_mov_b32 s{80+i}, 0")
        for i in range(92,95): A(f"s_mov_b32 s{i}, 0")
        for i in range(16): A(f"s_mov_b32 s{64+i}, 0")
    A("s_waitcnt vmcnt(0)")
    for i in range(4):
        A(f"v_min_u32 v{vM+4*i}, -2, v{vM+4*i}")
        A(f"v_min_u32 v{vM+4*i+2}, -2, v{vM+4*i+2}")
    A(f"s_mov_b32 s{sOffD}, s{sBaseD}")
    A(f"s_branch {name}_p1")

    spin_blocks = []
    def spin_site(lbl, j, loads_from_j, chk_regs, cnt=None):
        def chk():
            out = []
            if len(chk_regs) == 2:
                out.append(f"v_max_u32 v{vT1}, v{chk_regs[0]}, v{chk_regs[1]}")
                out.append(f"v_cmp_eq_u32 vcc, -1, v{vT1}")
            elif len(chk_regs) == 1:
                out.append(f"v_cmp_eq_u32 vcc, -1, v{chk_regs[0]}")
            else:
                rs = list(chk_regs)
                out.append(f"v_max3_u32 v{vT1}, v{rs[0]}, v{rs[1]}, v{rs[2]}"); i = 3
                while i < len(rs):
                    if i + 1 < len(rs):
                        out.append(f"v_max3_u32 v{vT1}, v{vT1}, v{rs[i]}, v{rs[i+1]}"); i += 2
                    else:
                        out.append(f"v_max_u32 v{vT1}, v{vT1}, v{rs[i]}"); i += 1
                out.append(f"v_cmp_eq_u32 vcc, -1, v{vT1}")
            return out
        for x in chk(): A(x)
        A(f"s_cbranch_vccnz {lbl}_s{j}")
        A.label(f"{lbl}_k{j}")
        blk = [f"{lbl}_s{j}:"]
        blk += list(loads_from_j)
        if timing and cnt is not None: blk.append(f"s_add_u32 s{cnt}, s{cnt}, 1")
        blk.append(f"s_sub_u32 s{sBud}, s{sBud}, 1")
        blk.append(f"s_cbranch_scc1 {name}_exit")
        blk.append("s_waitcnt vmcnt(0)")
        blk += chk()
        blk.append(f"s_cbranch_vccnz {lbl}_s{j}")
        blk.append(f"s_branch {lbl}_k{j}")
        spin_blocks.append(blk)

    def stamp(i):
        if timing: A(f"s_memrealtime s[{sSt+2*i}:{sSt+2*i+1}]")
    def stamp_acc(n):
        if timing:
            A("s_waitcnt lgkmcnt(0)")
            lb = A.newlabel('sk')
            A(f"s_cmp_lg_u32 s{sStep}, {stamp_step}")
            A(f"s_cbranch_scc1 {lb}")
            for i in range(n):
                A(f"s_mov_b32 s{80+i}, s{sSt+2*i}")
            A.label(lb)

    kvm_copy = f"""
    s_and_b32 s{sTmp}, s{sStep}, 15
    s_cmp_lg_u32 s{sTmp}, s{sC}
    s_cbranch_scc1 {name}_nokvmXX
    s_lshl_b32 s{sTmp}, s{sStep}, 17
    s_add_u32 s{sTmp}, s{sTmp}, s{sOffKVM}
    s_add_u32 s{sTmp2}, s{sTmp}, 2048
    v_lshlrev_b32 v{vT2}, 3, v{vLane}
    buffer_store_dwordx4 {v(vK,4)}, v{vL16}, {ws}, s{sTmp} offen offset:0
    buffer_store_dwordx4 {v(vK+4,4)}, v{vL16}, {ws}, s{sTmp} offen offset:1024
    buffer_store_dwordx2 {v(vVm,2)}, v{vT2}, {ws}, s{sTmp2} offen offset:0
    buffer_store_dwordx2 {v(vVm+2,2)}, v{vT2}, {ws}, s{sTmp2} offen offset:512
    buffer_store_dwordx2 {v(vVm+4,2)}, v{vT2}, {ws}, s{sTmp2} offen offset:1024
    buffer_store_dwordx2 {v(vVm+6,2)}, v{vT2}, {ws}, s{sTmp2} offen offset:1536
    {name}_nokvmXX:
    """
    dl = [f"buffer_load_dwordx4 {v(vM+4*i,4)}, v{vOffD}, {ws}, s{sOffD} offen offset:{i*1024} {ldf}" for i in range(4)]
    def p1m(t, i, rot):
        odd_tile = t & 1
        ks = 2*i + ((0 if not rot else 1) if not odd_tile else (1 if not rot else 0))
        src = v((vRM if rot else vM) + 4*i, 4)
        first = (i == 0 and not rot)
        c = '0' if first else v(acc(t), 4)
        if t < 4: return f"v_mfma_f32_16x16x32_bf16 {v(acc(t),4)}, {W1(t,ks)}, {src}, {c}"
        else:     return f"v_mfma_f32_16x16x32_bf16 {v(acc(t),4)}, {src}, {W1(t,ks)}, {c}"
    sal = f"""
    s_and_b32 s{sTmp}, s{sStep}, 3
    s_mul_i32 s{sTmp}, s{sTmp}, {8*24576}
    s_add_u32 s{sOffA}, s{sTmp}, s{sBaseA}
    s_add_u32 s{sTmp}, s{sStep}, 3
    s_and_b32 s{sTmp}, s{sTmp}, 3
    s_mul_i32 s{sOffAr}, s{sTmp}, {8*24576}
    s_add_u32 s{sOffAr}, s{sOffAr}, s{sBaseA}
    s_lshl_b32 s{sOffDr}, s{sTmp}, 17
    s_add_u32 s{sOffDr}, s{sOffDr}, s{sBaseD}
    s_add_u32 s{sTmp}, s{sStep}, 2
    s_and_b32 s{sTmp}, s{sTmp}, 3
    s_lshl_b32 s{sOffCr}, s{sTmp}, 18
    s_add_u32 s{sOffCr}, s{sOffCr}, s{sBaseCo}
    s_and_b32 s{sTmp}, s{sStep}, 3
    s_lshl_b32 s{sTmp}, s{sTmp}, 18
    s_add_u32 s{sOffC}, s{sTmp}, s{sBaseC}
    s_add_u32 s{sCst}, s{sTmp}, s{sBaseCo}
    s_add_u32 s{sC1}, s{sOffC}, 4096
    s_add_u32 s{sC2}, s{sOffC}, 8192
    s_add_u32 s{sC3}, s{sOffC}, 12288
    s_add_u32 s{sTmp}, s{sStep}, 1
    s_and_b32 s{sTmp}, s{sTmp}, 3
    s_lshl_b32 s{sTmp}, s{sTmp}, 17
    s_add_u32 s{sOffDn}, s{sTmp}, s{sBaseD}
    v_mov_b32 v{vSM}, 0xff800000
    v_mov_b32 v{vSM+1}, 0xff800000
    v_mov_b32 v{vSM+2}, 0xff800000
    v_mov_b32 v{vSM+3}, 0xff800000
    v_mov_b32 v{vPMh}, 0
    v_mov_b32 v{vPMh+1}, 0
    """.strip().split('\n')
    sal = [x.strip() for x in sal]

    A.label(f"{name}_loop")
    stamp_acc(8)
    stamp(0)
    A(f"s_mov_b32 s{sOffD}, s{sOffDn}")
    for l in dl: A(l)
    A.label(f"{name}_p1")
    for x in sal: A(x)
    for i in range(4):
        A(f"s_waitcnt vmcnt({3-i})")
        spin_site(f"{name}_pD", i, dl[i:], [vM+4*i, vM+4*i+2], 92)
        if i == 3: stamp(1)
        rot = [f"v_mov_b32_dpp v{vRM+4*i+j}, v{vM+4*i+j} row_ror:8 row_mask:0xf bank_mask:0xf" for j in range(4)]
        interleave(A, [p1m(t, i, False) for t in range(4)], rot)
        A.nop(2)
        for t in range(4): A(p1m(t, i, True))
    vm_list = [p1m(t, i, r) for i in range(4) for r in (False, True) for t in (4, 5)]
    A(vm_list[0]); A(vm_list[1])
    A.nop(4)
    for pair in range(2):
        for r in range(4):
            A(f"v_mov_b32_dpp v{acc(2*pair)+r}, v{acc(2*pair+1)+r} quad_perm:[0,1,2,3] row_mask:0xf bank_mask:0xc")
    for p in range(2):
        A(f"ds_write_b128 v{vLds1w}, {v(acc(2*p),4)} offset:{LDS_P1 + p*1024}")
    A(vm_list[2]); A(vm_list[3])
    A("s_waitcnt lgkmcnt(0)")
    A("s_barrier")
    A(f"""
    s_cmp_ge_u32 s{sW}, 2
    s_cbranch_scc1 {name}_skipA
    """)
    for w in range(4):
        A(f"ds_read_b128 {v(vRd+4*w,4)}, v{vLds1r} offset:{LDS_P1 + w*3072}")
    A(vm_list[4]); A(vm_list[5]); A(vm_list[6]); A(vm_list[7])
    A("s_waitcnt lgkmcnt(0)")
    for r in range(4):
        A(f"v_add_f32 v{vRd+r}, v{vRd+r}, v{vRd+4+r}")
        A(f"v_add_f32 v{vRd+8+r}, v{vRd+8+r}, v{vRd+12+r}")
    for r in range(4):
        A(f"v_add_f32 v{vRd+r}, v{vRd+r}, v{vRd+8+r}")
    A(f"""
    v_cvt_pk_bf16_f32 v{vRd+4}, v{vRd}, v{vRd+1}
    v_cvt_pk_bf16_f32 v{vRd+5}, v{vRd+2}, v{vRd+3}
    s_nop 0
    v_min_u32 v{vRd+4}, -2, v{vRd+4}
    v_min_u32 v{vRd+5}, -2, v{vRd+5}
    buffer_store_dwordx2 {v(vRd+4,2)}, v{vOffAst}, {ws}, s{sOffA} offen
    """)
    stamp(2)
    for x in vm_list[8:]: A(x)
    A(f"s_branch {name}_vdone")
    A.label(f"{name}_skipA")
    stamp(2)
    for x in vm_list[4:]: A(x)
    A.label(f"{name}_vdone")
    A.nop(8)
    for r in range(4):
        A(f"v_mov_b32_dpp v{acc(4)+r}, v{acc(5)+r} quad_perm:[0,1,2,3] row_mask:0xc bank_mask:0xf")
    A(f"ds_write_b128 v{vLds1w}, {v(acc(4),4)} offset:{LDS_P1 + 2048}")
    ql = [f"buffer_load_dwordx4 {v(vQ+4*i,4)}, v{vOffAq}, {ws}, s{sOffA} offen offset:{i*1024} {ldf}" for i in range(2)]
    kl = [f"buffer_load_dwordx4 {v(vK+4*i,4)}, v{vOffAq}, {ws}, s{sOffA} offen offset:{2048+i*1024} {ldf}" for i in range(2)]
    vl = [f"buffer_load_dwordx2 {v(vVm+2*i,2)}, v{vOffAv}, {ws}, s{sOffA} offen offset:{i*512} {ldf}" for i in range(4)]
    for l in ql + kl: A(l)
    A("s_waitcnt lgkmcnt(0)")
    A("s_barrier")
    A(f"""
    s_cmp_lg_u32 s{sW}, 2
    s_cbranch_scc1 {name}_skipV
    """)
    for w in range(4):
        A(f"ds_read_b128 {v(vRd+4*w,4)}, v{vLds1r} offset:{LDS_P1 + w*3072}")
    A("s_waitcnt lgkmcnt(0)")
    for r in range(4):
        A(f"v_add_f32 v{vRd+r}, v{vRd+r}, v{vRd+4+r}")
        A(f"v_add_f32 v{vRd+8+r}, v{vRd+8+r}, v{vRd+12+r}")
    for r in range(4):
        A(f"v_add_f32 v{vRd+r}, v{vRd+r}, v{vRd+8+r}")
    A(f"""
    v_cvt_pk_bf16_f32 v{vRd+4}, v{vRd}, v{vRd+1}
    v_cvt_pk_bf16_f32 v{vRd+5}, v{vRd+2}, v{vRd+3}
    s_nop 0
    v_min_u32 v{vRd+4}, -2, v{vRd+4}
    v_min_u32 v{vRd+5}, -2, v{vRd+5}
    buffer_store_dwordx2 {v(vRd+4,2)}, v{vOffAst}, {ws}, s{sOffA} offen
    s_waitcnt vmcnt(1)
    s_branch {name}_skipV2
    {name}_skipV:
    s_waitcnt vmcnt(0)
    {name}_skipV2:
    """)
    spin_site(f"{name}_pA", 0, ql + kl, [vQ, vQ+2, vQ+4, vQ+6, vK, vK+2, vK+4, vK+6], 93)
    stamp(3)
    for l in vl: A(l)
    A(f"""
    s_cmp_eq_u32 s{sStep}, {nsteps-1}
    s_cbranch_scc1 {name}_last
    """)
    def sm(kind, i):
        if kind == 'm':
            c = '0' if i == 0 else v(vSm,4)
            return f"v_mfma_f32_16x16x32_bf16 {v(vSm,4)}, {v(vK+4*i,4)}, {v(vQ+4*i,4)}, {c}"
        t, rot = kind
        d = vS1 if t == 0 else vS2
        ks = 2*i + ((1 if rot else 0) if t == 0 else (0 if rot else 1))
        src = v((vRQ if rot else vQ) + 4*i, 4)
        c = '0' if (i == 0 and not rot) else v(d,4)
        return f"v_mfma_f32_16x16x32_bf16 {v(d,4)}, {v(vKx+(t*4+ks)*4,4)}, {src}, {c}"
    mainl = [sm('m',0), sm('m',1), sm((0,False),0), sm((1,False),0), sm((0,False),1), sm((1,False),1)]
    fill = [f"v_mov_b32_dpp v{vRQ+j}, v{vQ+j} row_ror:8 row_mask:0xf bank_mask:0xf" for j in range(8)]
    interleave(A, mainl, fill)
    A.nop(1)
    mainl = [sm((0,True),0), sm((1,True),0), sm((0,True),1), sm((1,True),1)]
    fill = [f"v_permlane32_swap_b32 v{vSm+r}, v{vTT+r}" for r in range(4)]
    interleave(A, mainl, fill)
    A(f"""
    s_add_u32 s{sOffKx}, s{sOffKx}, {1<<18}
    s_add_u32 s{sOffKx1}, s{sOffKx1}, {1<<18}
    s_add_u32 s{sOffVx}, s{sOffVx}, {1<<18}
    s_add_u32 s{sOffVx1}, s{sOffVx1}, {1<<18}
    """)
    for r in range(4):
        A(f"v_add_f32_dpp v{vSM+r}, v{vTT+r}, v{vSm+r} row_ror:8 row_mask:0x3 bank_mask:0x3")
    A(f"""
    v_max3_f32 v{vMax}, v{vSM}, v{vSM+1}, v{vSM+2}
    v_max_f32 v{vMax}, v{vMax}, v{vSM+3}
    s_nop 1
    """)
    for r in range(4):
        A(f"v_mov_b32_dpp v{vS1+r}, v{vS2+r} quad_perm:[0,1,2,3] row_mask:0xf bank_mask:0xc")
    vSX = vS1
    A(f"""
    v_max3_f32 v{vMax}, v{vMax}, v{vSX}, v{vSX+1}
    v_max3_f32 v{vMax}, v{vMax}, v{vSX+2}, v{vSX+3}
    s_nop 1
    v_max_f32_dpp v{vMax}, v{vMax}, v{vMax} row_ror:8 row_mask:0xf bank_mask:0xf
    s_nop 0
    v_mov_b32 v{vMx2}, v{vMax}
    s_nop 1
    v_permlane16_swap_b32 v{vMax}, v{vMx2}
    s_nop 0
    v_max_f32 v{vMax}, v{vMax}, v{vMx2}
    v_mov_b32 v{vMx2}, v{vMax}
    s_nop 1
    v_permlane32_swap_b32 v{vMax}, v{vMx2}
    s_nop 0
    v_max_f32 v{vMax}, v{vMax}, v{vMx2}
    v_mul_f32 v{vMax}, s{sCexp}, v{vMax}
    """)
    for r in range(4):
        A(f"v_fma_f32 v{vSX+r}, v{vSX+r}, s{sCexp}, -v{vMax}")
    for r in range(4):
        A(f"v_fma_f32 v{vSM+r}, v{vSM+r}, s{sCexp}, -v{vMax}")
    for r in range(4):
        A(f"v_exp_f32 v{vSX+r}, v{vSX+r}")
    for r in range(4):
        A(f"v_exp_f32 v{vSM+r}, v{vSM+r}")
    A(f"""
    v_add_f32 v{vSum}, v{vSX}, v{vSX+1}
    v_add_f32 v{vSu2}, v{vSX+2}, v{vSX+3}
    v_add_f32 v{vMx2}, v{vSM}, v{vSM+1}
    v_add_f32 v{vSum}, v{vSum}, v{vSu2}
    v_add_f32 v{vSu2}, v{vSM+2}, v{vSM+3}
    v_add_f32 v{vSum}, v{vSum}, v{vMx2}
    v_add_f32 v{vSum}, v{vSum}, v{vSu2}
    s_nop 1
    v_add_f32_dpp v{vSum}, v{vSum}, v{vSum} row_ror:8 row_mask:0xf bank_mask:0xf
    s_nop 0
    v_mov_b32 v{vMx2}, v{vSum}
    s_nop 1
    v_permlane16_swap_b32 v{vSum}, v{vMx2}
    s_nop 0
    v_add_f32 v{vSum}, v{vSum}, v{vMx2}
    v_mov_b32 v{vMx2}, v{vSum}
    s_nop 1
    v_permlane32_swap_b32 v{vSum}, v{vMx2}
    s_nop 0
    v_add_f32 v{vSum}, v{vSum}, v{vMx2}
    v_rcp_f32 v{vSum}, v{vSum}
    s_nop 0
    """)
    for r in range(4):
        A(f"v_mul_f32 v{vSX+r}, v{vSX+r}, v{vSum}")
    A(f"""
    v_cvt_pk_bf16_f32 v{vBX}, v{vSX}, v{vSX+1}
    v_cvt_pk_bf16_f32 v{vBX+1}, v{vSX+2}, v{vSX+3}
    v_mul_f32 v{vSM}, v{vSM}, v{vSum}
    v_mul_f32 v{vSM+1}, v{vSM+1}, v{vSum}
    v_mov_b32_dpp v{vBX+2}, v{vBX} row_ror:8 row_mask:0xf bank_mask:0xf
    v_mov_b32_dpp v{vBX+3}, v{vBX+1} row_ror:8 row_mask:0xf bank_mask:0xf
    v_mul_f32 v{vSM+2}, v{vSM+2}, v{vSum}
    v_mul_f32 v{vSM+3}, v{vSM+3}, v{vSum}
    """)
    stamp(4)
    mainl = [f"v_mfma_f32_16x16x32_bf16 {v(vO+4*t,4)}, {v(vVx+4*t,4)}, {v(vBX,4)}, 0" for t in range(8)]
    fill = [f"v_cvt_pk_bf16_f32 v{vPM}, v{vSM}, v{vSM+1}",
            f"v_cvt_pk_bf16_f32 v{vPM+1}, v{vSM+2}, v{vSM+3}",
            f"v_cvt_pk_bf16_f32 v{vPMc}, v{vSM}, v{vSM+1}",
            f"v_cvt_pk_bf16_f32 v{vPMc+1}, v{vSM+2}, v{vSM+3}",
            f"s_nop 0",
            f"v_permlane32_swap_b32 v{vPMh}, v{vPMc}",
            f"v_permlane32_swap_b32 v{vPMh+1}, v{vPMc+1}"]
    interleave(A, mainl, fill)
    A("s_waitcnt vmcnt(0)")
    spin_site(f"{name}_pV", 0, vl, [vVm, vVm+2, vVm+4, vVm+6], 93)
    mainl = []
    for t in range(8):
        b = vPM if t % 2 == 0 else vPMh
        mainl.append(f"v_mfma_f32_16x16x16_bf16 {v(vO+4*t,4)}, {v(vVm+2*(t//2),2)}, {v(b,2)}, {v(vO+4*t,4)}")
    interleave(A, mainl, kx_loads())
    cv = []
    for u in range(4):
        for hh in range(2):
            t = 2*u + hh
            cv.append(f"v_cvt_pk_bf16_f32 v{vOB+4*u+2*hh}, v{vO+4*t}, v{vO+4*t+1}")
            cv.append(f"v_cvt_pk_bf16_f32 v{vOB+4*u+2*hh+1}, v{vO+4*t+2}, v{vO+4*t+3}")
    for x in cv[:4]: A(x)
    A.nop(2)
    mainl = []
    for u in range(4):
        for tn in range(4):
            c = v(vE+4*tn,4) if u > 0 else '0'
            mainl.append(f"v_mfma_f32_16x16x32_bf16 {v(vE+4*tn,4)}, {Wo(tn,u)}, {v(vOB+4*u,4)}, {c}")
    vxl = vx_loads()
    for u in range(4):
        nxt = cv[4*(u+1):4*(u+2)] if u < 3 else []
        interleave(A, mainl[4*u:4*u+2], nxt[:2]); interleave(A, mainl[4*u+2:4*u+3], nxt[2:])
        A(mainl[4*u+3])
        A(vxl[2*u]); A(vxl[2*u+1])
    A.nop(6)
    for p in range(2):
        for r in range(4):
            A(f"v_mov_b32_dpp v{vE+8*p+r}, v{vE+8*p+4+r} row_ror:8 row_mask:0xf bank_mask:0xc")
    for p in range(2):
        A(f"ds_write_b128 v{vLds3w}, {v(vE+8*p,4)} offset:{p*1024}")
    A(f"""
    s_cmp_eq_u32 s{sW}, 3
    s_cbranch_scc1 {name}_rs3
    buffer_store_dwordx2 {v(vSent,2)}, v{vOffAst}, {ws}, s{sOffAr} offen
    {name}_rs3:
    """)
    A("s_waitcnt lgkmcnt(0)")
    A("s_barrier")
    stamp(5); stamp(6); stamp(7)
    A(f"""
    s_cmp_ge_u32 s{sW}, 2
    s_cbranch_scc1 {name}_cpoll
    """)
    for w in range(4):
        A(f"ds_read_b128 {v(vRd+4*w,4)}, v{vLds3r} offset:{w*2048}")
    A("s_waitcnt lgkmcnt(0)")
    for r in range(4):
        A(f"v_add_f32 v{vRd+r}, v{vRd+r}, v{vRd+4+r}")
        A(f"v_add_f32 v{vRd+8+r}, v{vRd+8+r}, v{vRd+12+r}")
    for r in range(4):
        A(f"v_add_f32 v{vRd+r}, v{vRd+r}, v{vRd+8+r}")
    for r in range(4):
        A(f"v_min_u32 v{vRd+r}, -2, v{vRd+r}")
    A(f"buffer_store_dwordx4 {v(vRd,4)}, v{vOffC}, {ws}, s{sCst} offen sc1")
    stamp(6); stamp(7)
    A(f"buffer_store_dwordx4 {v(vSent,4)}, v{vOffC}, {ws}, s{sOffCr} offen sc1")
    A(kvm_copy.replace('XX', '1'))
    A(f"s_add_u32 s{sStep}, s{sStep}, 1")
    A(f"s_branch {name}_b3")
    A.label(f"{name}_cpoll")
    A(f"buffer_store_dwordx2 {v(vSent,2)}, v{vOffDst}, {ws}, s{sOffDr} offen")
    A(kvm_copy.replace('XX', '3'))
    A(f"s_add_u32 s{sStep}, s{sStep}, 1")
    if cdelay: A(f"s_sleep {cdelay}")
    stamp(6)
    cl = []
    for y in range(8):
        so = [sOffC, sC1, sC2, sC3][y//2]
        cl.append(f"buffer_load_dwordx4 {v(vRd+4*y,4)}, v{vOffC}, {ws}, s{so} offen offset:{(y%2)*2048} sc1")
    for l in cl: A(l)
    A("s_waitcnt vmcnt(0)")
    spin_site(f"{name}_pC", 0, cl, [vRd+4*y for y in range(8)], 94)
    for r in range(4):
        A(f"v_add_f32 v{vRd+r}, v{vRd+r}, v{vRd+4+r}")
        A(f"v_add_f32 v{vRd+8+r}, v{vRd+8+r}, v{vRd+12+r}")
        A(f"v_add_f32 v{vRd+16+r}, v{vRd+16+r}, v{vRd+20+r}")
        A(f"v_add_f32 v{vRd+24+r}, v{vRd+24+r}, v{vRd+28+r}")
    for r in range(4):
        A(f"v_add_f32 v{vRd+r}, v{vRd+r}, v{vRd+8+r}")
        A(f"v_add_f32 v{vRd+16+r}, v{vRd+16+r}, v{vRd+24+r}")
    for r in range(4):
        A(f"v_add_f32 v{vRd+r}, v{vRd+r}, v{vRd+16+r}")
    A(f"""
    v_cvt_pk_bf16_f32 v{vRd+4}, v{vRd}, v{vRd+1}
    v_cvt_pk_bf16_f32 v{vRd+5}, v{vRd+2}, v{vRd+3}
    s_nop 0
    v_min_u32 v{vRd+4}, -2, v{vRd+4}
    v_min_u32 v{vRd+5}, -2, v{vRd+5}
    buffer_store_dwordx2 {v(vRd+4,2)}, v{vOffDst}, {ws}, s{sOffDn} offen
    """)
    stamp(7)
    A(f"""
    {name}_b3:
    s_barrier
    s_branch {name}_loop
    """)
    for blk in spin_blocks:
        for x in blk: A(x)
    A.label(f"{name}_last")
    A.label(f"{name}_lastspin")
    for l in vl: A(l)
    A("s_waitcnt vmcnt(0)")
    A(f"v_max3_u32 v{vT1}, v{vVm}, v{vVm+2}, v{vVm+4}")
    A(f"v_max_u32 v{vT1}, v{vT1}, v{vVm+6}")
    A(f"v_cmp_eq_u32 vcc, -1, v{vT1}")
    A(f"s_cbranch_vccz {name}_lastok")
    A(f"s_sub_u32 s{sBud}, s{sBud}, 1")
    A(f"s_cbranch_scc1 {name}_exit")
    A(f"s_branch {name}_lastspin")
    A.label(f"{name}_lastok")
    A(kvm_copy.replace('XX', '2'))
    A.label(f"{name}_done")
    if timing:
        A(f"""
        s_memrealtime s[{sT0+2}:{sT0+3}]
        s_waitcnt lgkmcnt(0)
        s_sub_u32 s{sTmp}, s{sT0+2}, s{sT0}
        v_mov_b32 v{vT1}, s{sTmp}
        s_lshl_b32 s{sTmp2}, s{sX}, 2
        s_add_u32 s{sTmp2}, s{sTmp2}, 64
        v_mov_b32 v{vT2}, s{sTmp2}
        buffer_store_dword v{vT1}, v{vT2}, s[{sDBG}:{sDBG+3}], 0 offen
        v_mov_b32 v{vT1}, s{sBud}
        v_add_u32 v{vT2}, 32, v{vT2}
        buffer_store_dword v{vT1}, v{vT2}, s[{sDBG}:{sDBG+3}], 0 offen
        s_lshl_b32 s{sTmp}, s{sX}, 4
        s_add_u32 s{sTmp}, s{sTmp}, s{sC}
        s_lshl_b32 s{sTmp}, s{sTmp}, 2
        s_add_u32 s{sTmp}, s{sTmp}, s{sW}
        s_lshl_b32 s{sTmp}, s{sTmp}, 6
        s_add_u32 s{sTmp}, s{sTmp}, {WS['END']}
        """)
        for i in range(11):
            A(f"v_mov_b32 v{vT1}, s{80+i if i < 8 else 92+i-8}")
            A(f"v_mov_b32 v{vT2}, {4*i}")
            A(f"buffer_store_dword v{vT1}, v{vT2}, {ws}, s{sTmp} offen")
    A.label(f"{name}_exit")
    A("s_endpgm")
    return A.text()

def chain_desc(name='chain_kernel'):
    return kernel_desc(name, 512, 96, 256)
```

```python
from asmlib import *

class Side:
    def __init__(self, typ, nsub, ksps):
        self.typ = typ; self.n = nsub; self.ksps = ksps
        self.E = 32 * nsub
        self.stage_bytes = self.E * 32 * ksps * 2
        self.ndma = self.stage_bytes // 1024 // 4

def gen_gemm_core(A, P, sR, sC, nstages_reg_or_const, srdR, srdC, sOffR, sOffC, stepR, stepC, regs, first_zero=True, pfx='g'):
    nst = nstages_reg_or_const
    ksps = sR.ksps
    nR, nC = sR.n, sC.n
    vFR, vFC = regs['vFR'], regs['vFC']
    acc = regs['acc']
    LR0, LC0 = regs['ldsR'], regs['ldsC']

    def dma(side, srd, soff, vD, sM0, stage):
        out = []
        for m in range(side.ndma):
            if m % 4 == 0:
                out.append(f"s_add_u32 m0, s{sM0}, {stage*side.stage_bytes + (m//4)*4096}")
            out.append(f"buffer_load_dwordx4 v{vD[m]}, {srd}, s{soff} offen offset:{(m%4)*1024} lds")
        return out
    def dma_stage(stage):
        o = dma(sR, srdR, sOffR, regs['vDmaR'], regs['sM0R'], stage)
        o.append(f"s_add_u32 s{sOffR}, s{sOffR}, {stepR}")
        o += dma(sC, srdC, sOffC, regs['vDmaC'], regs['sM0C'], stage)
        o.append(f"s_add_u32 s{sOffC}, s{sOffC}, {stepC}")
        return o
    def reads(side, vF, vRd, stage, kb, bufsel):
        out = []
        base = vF + bufsel * side.n * 4
        for j in range(side.n):
            if side.typ == 'F':
                off = stage*side.stage_bytes + (j*ksps + kb)*1024
                out.append(f"ds_read_b128 {v(base+4*j,4)}, v{vRd[0]} offset:{off}")
            else:
                pitch = side.E * 2
                for hh in range(2):
                    off = stage*side.stage_bytes + (32*kb + 16*hh)*pitch
                    out.append(f"ds_read_b64_tr_b16 {v(base+4*j+2*hh,2)}, v{vRd[j]} offset:{off}")
        return out
    def frag_reads(stage, kb, bufsel):
        r = reads(sR, vFR, regs['vRdR'], stage, kb, bufsel); c = reads(sC, vFC, regs['vRdC'], stage, kb, bufsel)
        nper = len(r)//nR
        return r[:nper] + c + r[nper:]
    def mfmas(bufsel, zero):
        out = []
        for i in range(nR):
            for j in range(nC):
                d = a(acc(i,j), 4)
                ra = v(vFR + bufsel*nR*4 + 4*i, 4); cb = v(vFC + bufsel*nC*4 + 4*j, 4)
                c = '0' if zero else d
                out.append(f"v_mfma_f32_16x16x32_bf16 {d}, {ra}, {cb}, {c}")
        return out
    def mix(main, fill):
        n, m = len(main), len(fill)
        out = []; fi = 0
        for i, x in enumerate(main):
            out.append(x)
            tgt = (i+1) * m // n
            while fi < tgt:
                out.append(fill[fi]); fi += 1
        out += fill[fi:]
        return out

    for x in dma_stage(0): A(x)
    for x in dma_stage(1): A(x)
    nd = sR.ndma + sC.ndma
    A(f"s_waitcnt vmcnt({nd})")
    A("s_barrier")
    for x in frag_reads(0, 0, 0): A(x)
    def stage_code(st, zero_first, last_pair, is_last):
        for kb in range(ksps):
            q = st*ksps + kb
            buf = q & 1 if ksps % 2 else kb & 1
            lastk = (kb == ksps-1)
            A("s_waitcnt lgkmcnt(0)")
            fill = []
            if not lastk:
                fill = frag_reads(st, kb+1, buf ^ 1)
            else:
                if not is_last:
                    A("s_waitcnt vmcnt(0)")
                    A("s_barrier")
                    fl = frag_reads(st ^ 1, 0, buf ^ 1)
                    dm = dma_stage(st) if not last_pair else []
                    fill = mix(fl, dm) if dm else fl
            zero = zero_first and kb == 0
            for x in mix(mfmas(buf, zero), fill): A(x)
    assert ksps % 2 == 0
    assert nst % 2 == 0 and nst >= 2
    npairs = nst // 2
    if npairs == 1:
        stage_code(0, True, True, False); stage_code(1, False, True, True)
    else:
        stage_code(0, True, False, False); stage_code(1, False, False, False)
        if npairs > 2:
            A(f"s_mov_b32 s{regs['sCnt']}, {npairs-2}")
            A.label(f"{pfx}_loop")
            stage_code(0, False, False, False); stage_code(1, False, False, False)
            A(f"s_sub_u32 s{regs['sCnt']}, s{regs['sCnt']}, 1")
            A(f"s_cmp_lg_u32 s{regs['sCnt']}, 0")
            A(f"s_cbranch_scc1 {pfx}_loop")
        stage_code(0, False, True, False); stage_code(1, False, True, True)

def setup_side(A, side, regs, tag, sWv, sWhalf, vLane, vCol, vG, tmp, ld_bytes, nK, ldsbase):
    vD = regs['vDma'+tag]; vRd = regs['vRd'+tag]
    t1, t2, t3 = tmp['v']; s1, s2 = tmp['s']
    nd = side.ndma
    A(f"s_mul_i32 s{regs['sM0'+tag]}, s{sWv}, {nd*1024}")
    A(f"s_add_u32 s{regs['sM0'+tag]}, s{regs['sM0'+tag]}, {ldsbase}")
    if side.typ == 'F':
        assert nd % side.ksps == 0 or side.ksps % nd == 0
        A(f"v_lshlrev_b32 v{t1}, 4, v{vLane}")
        tiles_per_wave = nd // side.ksps
        A(f"s_mul_i32 s{s1}, s{sWv}, {tiles_per_wave*nK*1024}")
        A(f"v_add_u32 v{t1}, s{s1}, v{t1}")
        for m in range(nd):
            off = ((m // side.ksps)*nK + (m % side.ksps))*1024 - (m % 4)*1024
            assert off >= 0
            A(f"v_add_u32 v{vD[m]}, {off}, v{t1}")
        A(f"s_mul_i32 s{s1}, s{sWhalf}, {side.n*side.ksps*1024}")
        A(f"s_add_u32 s{s1}, s{s1}, {ldsbase}")
        A(f"v_lshlrev_b32 v{vRd[0]}, 4, v{vLane}")
        A(f"v_add_u32 v{vRd[0]}, s{s1}, v{vRd[0]}")
    else:
        pitch = side.E * 2
        lpr = pitch // 16
        rpi = 1024 // pitch
        assert pitch >= 256 and rpi >= 1
        sh = lpr.bit_length() - 1
        A(f"v_lshrrev_b32 v{t1}, {sh}, v{vLane}")
        A(f"s_mul_i32 s{s1}, s{sWv}, {nd*rpi}")
        A(f"v_add_u32 v{t1}, s{s1}, v{t1}")
        A(f"v_and_b32 v{t2}, {lpr-1}, v{vLane}")
        A(f"s_mov_b32 s{s2}, {ld_bytes}")
        for m in range(nd):
            A(f"v_add_u32 v{t3}, {m*rpi}, v{t1}")
            A(f"v_and_b32 v{vD[m]}, 7, v{t3}")
            A(f"v_lshlrev_b32 v{vD[m]}, 1, v{vD[m]}")
            A(f"v_xor_b32 v{vD[m]}, v{vD[m]}, v{t2}")
            A(f"v_lshlrev_b32 v{vD[m]}, 4, v{vD[m]}")
            A(f"v_mul_lo_u32 v{t3}, v{t3}, s{s2}")
            A(f"v_add_u32 v{vD[m]}, v{vD[m]}, v{t3}")
            if m % 4:
                A(f"v_subrev_u32 v{vD[m]}, {(m%4)*1024}, v{vD[m]}")
        A(f"v_lshrrev_b32 v{t1}, 2, v{vCol}")
        A(f"v_lshl_add_u32 v{t1}, v{vG}, 2, v{t1}")
        A(f"v_and_b32 v{t2}, 7, v{t1}")
        A(f"v_lshlrev_b32 v{t2}, 5, v{t2}")
        A(f"v_mul_u32_u24 v{t1}, {pitch}, v{t1}")
        A(f"v_and_b32 v{t3}, 3, v{vCol}")
        A(f"v_lshl_add_u32 v{t1}, v{t3}, 3, v{t1}")
        A(f"v_add_u32 v{t1}, {ldsbase}, v{t1}")
        A(f"s_mul_i32 s{s1}, s{sWhalf}, {side.n}")
        for j in range(side.n):
            A(f"s_add_u32 s{s2}, s{s1}, {j}")
            A(f"s_lshl_b32 s{s2}, s{s2}, 5")
            A(f"v_xor_b32 v{vRd[j]}, s{s2}, v{t2}")
            A(f"v_add_u32 v{vRd[j]}, v{vRd[j]}, v{t1}")
```

```python
from asmlib import *
import struct, math
def f2u(x): return struct.unpack('<I', struct.pack('<f', x))[0]

def attn_body(A, name, sWS, sSeg, sHead, tmps, v0=8):
    ws = f"s[{sWS}:{sWS+3}]"
    vLane, vCol, vG, vL16 = tmps['vLane'], tmps['vCol'], tmps['vG'], tmps['vL16']
    s1, s2, s3, s4, sCexp = tmps['s']
    sx = tmps['sexec']
    R = RegAlloc(v0, 256)
    vQ = R.alloc('Q', 32, 4); vK = R.alloc('K', 32, 4); vV = R.alloc('V', 32, 4)
    vKm = R.alloc('km', 8, 4); vVm = R.alloc('vm', 8, 4)
    vS00 = R.alloc('S00', 4, 4); vS01 = R.alloc('S01', 4, 4); vS11 = R.alloc('S11', 4, 4)
    vMe = R.alloc('Me', 8, 4); vMo = R.alloc('Mo', 8, 4)
    vZ = R.alloc('Z', 4, 4)
    vPX = R.alloc('PX', 8, 4)
    vPM = R.alloc('PM', 4, 2); vPH = R.alloc('PH', 4, 2); vPC = R.alloc('PC', 4, 2)
    vO = R.alloc('O', 64, 4)
    vMx = R.alloc('mx', 2); vT = R.alloc('t', 2); vSm = R.alloc('sum', 2); vL8 = R.alloc('l8'); vTri = R.alloc('tri', 4)
    vOut = vQ
    A(f"""
    s_lshl_b32 s{s1}, s{sSeg}, 5
    s_add_u32 s{s1}, s{s1}, s{sHead}
    s_lshl_b32 s{s2}, s{s1}, 12
    s_add_u32 s{s2}, s{s2}, {WS['KVM']}
    s_lshl_b32 s{s1}, s{s1}, 13
    s_add_u32 s{s3}, s{s1}, {WS['Q']}
    s_add_u32 s{s4}, s{s3}, 4096
    v_lshlrev_b32 v{vL8}, 3, v{vLane}
    """)
    for b in range(8):
        A(f"buffer_load_dwordx4 {v(vQ+4*b,4)}, v{vL16}, {ws}, s{s3 if b < 4 else s4} offen offset:{(b%4)*1024}{tmps.get('ldflag','')}")
    A(f"s_add_u32 s{s3}, s{s1}, {WS['K']}"); A(f"s_add_u32 s{s4}, s{s3}, 4096")
    for b in range(8):
        A(f"buffer_load_dwordx4 {v(vK+4*b,4)}, v{vL16}, {ws}, s{s3 if b < 4 else s4} offen offset:{(b%4)*1024}{tmps.get('ldflag','')}")
    tmps['kvm_loads'] = lambda: ([f"buffer_load_dwordx4 {v(vKm+4*i,4)}, v{vL16}, {ws}, s{s2} offen offset:{i*1024}{tmps.get('kvmflag','')}" for i in range(2)] +
                                 [f"buffer_load_dwordx2 {v(vVm+2*i,2)}, v{vL8}, {ws}, s{s2} offen offset:{2048+i*512}{tmps.get('kvmflag','')}" for i in range(4)])
    for l in tmps['kvm_loads'](): A(l)
    A(f"s_add_u32 s{s3}, s{s1}, {WS['VT']}"); A(f"s_add_u32 s{s4}, s{s3}, 4096")
    for b in range(8):
        A(f"buffer_load_dwordx4 {v(vV+4*b,4)}, v{vL16}, {ws}, s{s3 if b < 4 else s4} offen offset:{(b%4)*1024}{tmps.get('ldflag','')}")
    A(f"v_mov_b32 v{vZ}, 0")
    for r in range(4):
        A(f"v_lshl_add_u32 v{vT}, v{vG}, 2, {r}")
        A(f"v_cmp_le_u32 vcc, v{vT}, v{vCol}")
        A(f"v_mov_b32 v{vT+1}, 0xff800000")
        A(f"s_nop 1")
        A(f"v_cndmask_b32 v{vTri+r}, v{vT+1}, v{vZ}, vcc")
    A("s_waitcnt vmcnt(8)")
    Q = lambda t, ks: v(vQ + (t*4+ks)*4, 4)
    K = lambda t, ks: v(vK + (t*4+ks)*4, 4)
    for ks in range(4):
        for (d, kt, qt) in ((vS00,0,0),(vS01,0,1),(vS11,1,1)):
            c = '0' if ks == 0 else v(d,4)
            A(f"v_mfma_f32_16x16x32_bf16 {v(d,4)}, {K(kt,ks)}, {Q(qt,ks)}, {c}")
    for i in range(2):
        for qt in range(2):
            A(f"v_mfma_f32_16x16x32_bf16 {v(vMe+4*qt,4)}, {v(vKm+4*i,4)}, {Q(qt,2*i)}, {'0' if i == 0 else v(vMe+4*qt,4)}")
            A(f"v_mfma_f32_16x16x32_bf16 {v(vMo+4*qt,4)}, {v(vKm+4*i,4)}, {Q(qt,2*i+1)}, {'0' if i == 0 else v(vMo+4*qt,4)}")
    A.nop(8)
    for qt in range(2):
        for r in range(4):
            A(f"v_permlane32_swap_b32 v{vMo+4*qt+r}, v{vZ+r}")
        A.nop(2)
        for r in range(4):
            A(f"v_add_f32 v{vMe+4*qt+r}, v{vMe+4*qt+r}, v{vZ+r}")
        for r in range(4):
            A(f"v_mov_b32 v{vZ+r}, 0xff800000")
        A.nop(2)
        for r in range(4):
            A(f"v_mov_b32_dpp v{vMe+4*qt+r}, v{vZ+r} quad_perm:[0,1,2,3] row_mask:0xc bank_mask:0xf")
    for r in range(4):
        A(f"v_add_f32 v{vS00+r}, v{vS00+r}, v{vTri+r}")
        A(f"v_add_f32 v{vS11+r}, v{vS11+r}, v{vTri+r}")
    groups = [[vS00, vMe], [vS01, vS11, vMe+4]]
    for qt in range(2):
        regs = [g+r for g in groups[qt] for r in range(4)]
        mx = vMx+qt; t = vT+qt; sm = vSm+qt
        A(f"v_max3_f32 v{mx}, v{regs[0]}, v{regs[1]}, v{regs[2]}")
        i = 3
        while i < len(regs):
            if i+1 < len(regs): A(f"v_max3_f32 v{mx}, v{mx}, v{regs[i]}, v{regs[i+1]}"); i += 2
            else: A(f"v_max_f32 v{mx}, v{mx}, v{regs[i]}"); i += 1
        A(f"""
        v_mov_b32 v{t}, v{mx}
        s_nop 1
        v_permlane16_swap_b32 v{mx}, v{t}
        s_nop 1
        v_max_f32 v{mx}, v{mx}, v{t}
        v_mov_b32 v{t}, v{mx}
        s_nop 1
        v_permlane32_swap_b32 v{mx}, v{t}
        s_nop 1
        v_max_f32 v{mx}, v{mx}, v{t}
        v_mul_f32 v{mx}, s{sCexp}, v{mx}
        """)
        for rg in regs: A(f"v_fma_f32 v{rg}, v{rg}, s{sCexp}, -v{mx}")
        for rg in regs: A(f"v_exp_f32 v{rg}, v{rg}")
        A("s_nop 0")
        A(f"v_add_f32 v{sm}, v{regs[0]}, v{regs[1]}")
        for rg in regs[2:]: A(f"v_add_f32 v{sm}, v{sm}, v{rg}")
        A(f"""
        v_mov_b32 v{t}, v{sm}
        s_nop 1
        v_permlane16_swap_b32 v{sm}, v{t}
        s_nop 1
        v_add_f32 v{sm}, v{sm}, v{t}
        v_mov_b32 v{t}, v{sm}
        s_nop 1
        v_permlane32_swap_b32 v{sm}, v{t}
        s_nop 1
        v_add_f32 v{sm}, v{sm}, v{t}
        v_rcp_f32 v{sm}, v{sm}
        s_nop 0
        """)
        for rg in regs: A(f"v_mul_f32 v{rg}, v{rg}, v{sm}")
        px = vPX + 4*qt
        if qt == 0:
            A(f"v_cvt_pk_bf16_f32 v{px}, v{vS00}, v{vS00+1}")
            A(f"v_cvt_pk_bf16_f32 v{px+1}, v{vS00+2}, v{vS00+3}")
            A(f"v_mov_b32 v{px+2}, 0"); A(f"v_mov_b32 v{px+3}, 0")
        else:
            A(f"v_cvt_pk_bf16_f32 v{px}, v{vS01}, v{vS01+1}")
            A(f"v_cvt_pk_bf16_f32 v{px+1}, v{vS01+2}, v{vS01+3}")
            A(f"v_cvt_pk_bf16_f32 v{px+2}, v{vS11}, v{vS11+1}")
            A(f"v_cvt_pk_bf16_f32 v{px+3}, v{vS11+2}, v{vS11+3}")
        me = vMe + 4*qt
        for h in range(2):
            A(f"v_cvt_pk_bf16_f32 v{vPM+2*qt+h}, v{me+2*h}, v{me+2*h+1}")
            A(f"v_cvt_pk_bf16_f32 v{vPC+2*qt+h}, v{me+2*h}, v{me+2*h+1}")
            A(f"v_mov_b32 v{vPH+2*qt+h}, 0")
        A.nop(2)
        for h in range(2):
            A(f"v_permlane32_swap_b32 v{vPH+2*qt+h}, v{vPC+2*qt+h}")
    A("s_waitcnt vmcnt(0)")
    A.nop(2)
    for t in range(8):
        for qt in range(2):
            A(f"v_mfma_f32_16x16x32_bf16 {v(vO+(t*2+qt)*4,4)}, {v(vV+4*t,4)}, {v(vPX+4*qt,4)}, 0")
    for t in range(8):
        for qt in range(2):
            b = vPM if t % 2 == 0 else vPH
            A(f"v_mfma_f32_16x16x16_bf16 {v(vO+(t*2+qt)*4,4)}, {v(vVm+2*(t//2),2)}, {v(b+2*qt,2)}, {v(vO+(t*2+qt)*4,4)}")
    A(f"""
    s_lshl_b32 s{s1}, s{sSeg}, 18
    s_lshl_b32 s{s2}, s{sHead}, 12
    s_add_u32 s{s1}, s{s1}, s{s2}
    s_add_u32 s{s1}, s{s1}, {WS['O']}
    s_add_u32 s{s2}, s{s1}, {128*1024}
    """)
    A.nop(4)
    k = 0
    for u in range(4):
        for qt in range(2):
            o = vOut + 4*k; k += 1
            for hh in range(2):
                src = vO + ((2*u+hh)*2+qt)*4
                A(f"v_cvt_pk_bf16_f32 v{o+2*hh}, v{src}, v{src+1}")
                A(f"v_cvt_pk_bf16_f32 v{o+2*hh+1}, v{src+2}, v{src+3}")
            A(f"buffer_store_dwordx4 {v(o,4)}, v{vL16}, {ws}, s{s1 if qt == 0 else s2} offen offset:{u*1024}{tmps.get('stflag','')}")
    return R.next

def gen_attn(name='attn_kernel'):
    A = Asm(); A.raw(kernel_header(name))
    A(f"""
    s_cmp_ge_u32 s2, 512
    s_cbranch_scc1 {name}_exit
    s_load_dwordx2 s[4:5], s[0:1], {KA['ws']}
    v_and_b32 v1, 63, v0
    v_lshrrev_b32 v5, 6, v0
    s_nop 0
    v_readfirstlane_b32 s20, v5
    v_and_b32 v2, 15, v1
    v_lshrrev_b32 v3, 4, v1
    v_lshlrev_b32 v4, 4, v1
    s_lshr_b32 s21, s2, 3                 ; seg
    s_and_b32 s22, s2, 7
    s_lshl_b32 s22, s22, 2
    s_add_u32 s22, s22, s20               ; head
    s_mov_b32 s28, {hex(f2u((128 ** -0.5) * math.log2(math.e)))}
    s_waitcnt lgkmcnt(0)
    s_mov_b32 s8, s4
    s_mov_b32 s9, s5
    s_mov_b32 s10, {WS_SIZE}
    s_mov_b32 s11, 0x20000
    """)
    n = attn_body(A, name, 8, 21, 22, dict(vLane=1, vCol=2, vG=3, vL16=4, s=(23,24,25,26,28), sexec=30))
    print('attn vgprs', n)
    A.label(f"{name}_exit")
    A("s_endpgm")
    return A.text(), kernel_desc(name, 256, 40, 256)
```

```python
from asmlib import *
from gemm import *

def common_regs(nR, nC, sR, sC):
    R = RegAlloc(0, 256)
    R.alloc('tid')
    d = {}
    d['vLane'] = R.alloc('lane'); d['vCol'] = R.alloc('col'); d['vG'] = R.alloc('g'); d['vL16'] = R.alloc('l16')
    d['t'] = [R.alloc('t1'), R.alloc('t2'), R.alloc('t3')]
    d['vDmaR'] = [R.alloc(f'dr{i}') for i in range(sR.ndma)]
    d['vDmaC'] = [R.alloc(f'dc{i}') for i in range(sC.ndma)]
    d['vRdR'] = [R.alloc(f'rr{i}') for i in range(sR.n if sR.typ == 'T' else 1)]
    d['vRdC'] = [R.alloc(f'rc{i}') for i in range(sC.n if sC.typ == 'T' else 1)]
    d['vFR'] = R.alloc('FR', 2*nR*4, 4); d['vFC'] = R.alloc('FC', 2*nC*4, 4)
    d['vEp'] = R.alloc('ep', 32, 4)
    d['R'] = R
    return d

def lane_setup(A, d, sW):
    A(f"""
    v_and_b32 v{d['vLane']}, 63, v0
    v_lshrrev_b32 v{d['t'][0]}, 6, v0
    s_nop 0
    v_readfirstlane_b32 s{sW}, v{d['t'][0]}
    v_and_b32 v{d['vCol']}, 15, v{d['vLane']}
    v_lshrrev_b32 v{d['vG']}, 4, v{d['vLane']}
    v_lshlrev_b32 v{d['vL16']}, 4, v{d['vLane']}
    """)

def gen_g1(name='g1_kernel', ntn=48, ntm=8):
    A = Asm()
    A.raw(kernel_header(name))
    sWS=8; sWt=12; sW=20; sWr=21; sWc=22; sTn=23; sTm=24; sOffR=25; sOffC=26; sCnt=27; sM0R=28; sM0C=29; s1=30; s2=31; sMat=32; sHead=33; sSeg=34; sBase=35
    ntiles = ntn*ntm
    A(f"""
    s_cmp_ge_u32 s2, {ntiles}
    s_cbranch_scc1 {name}_exit
    s_load_dwordx2 s[4:5], s[0:1], {KA['Wq']}
    s_load_dwordx2 s[6:7], s[0:1], {KA['Wk']}
    s_load_dwordx2 s[36:37], s[0:1], {KA['Wv']}
    s_load_dwordx2 s[38:39], s[0:1], {KA['ws']}
    """)
    sF = Side('F', 8, 2); sT = Side('T', 8, 2)
    A(f"""
    s_and_b32 s{s1}, s2, 7
    s_lshr_b32 s{s2}, s2, 3
    s_mul_i32 s{sTm}, s{s2}, 43691
    s_lshr_b32 s{sTm}, s{sTm}, 18          ; idx / 6
    s_mul_i32 s{sTn}, s{sTm}, 6
    s_sub_u32 s{sTn}, s{s2}, s{sTn}        ; idx % 6
    s_mul_i32 s{s1}, s{s1}, 6
    s_add_u32 s{sTn}, s{sTn}, s{s1}
    s_lshr_b32 s{sMat}, s{sTn}, 4          ; 0=q 1=k 2=v
    s_and_b32 s{sTn}, s{sTn}, 15
    """)
    dQK = common_regs(8, 8, sT, sF)
    lane_setup(A, dQK, sW)
    A(f"""
    s_lshr_b32 s{sWr}, s{sW}, 1
    s_and_b32 s{sWc}, s{sW}, 1
    s_waitcnt lgkmcnt(0)
    s_mov_b32 s{sWS}, s38
    s_mov_b32 s{sWS+1}, s39
    s_mov_b32 s{sWS+2}, {WS_SIZE}
    s_mov_b32 s{sWS+3}, 0x20000
    s_cmp_eq_u32 s{sMat}, 1
    s_cselect_b32 s{sWt}, s6, s4
    s_cselect_b32 s{sWt+1}, s7, s5
    s_cmp_eq_u32 s{sMat}, 2
    s_cselect_b32 s{sWt}, s36, s{sWt}
    s_cselect_b32 s{sWt+1}, s37, s{sWt+1}
    s_mov_b32 s{sWt+2}, {1024*4096*2}
    s_mov_b32 s{sWt+3}, 0x20000
    s_cmp_eq_u32 s{sMat}, 2
    s_cbranch_scc1 {name}_v
    """)
    ws = f"s[{sWS}:{sWS+3}]"; wt = f"s[{sWt}:{sWt+3}]"
    def body(isv):
        sR, sC = (sF, sT) if isv else (sT, sF)
        d = common_regs(8, 8, sR, sC)
        regs = dict(d); regs.update(sM0R=sM0R, sM0C=sM0C, sCnt=sCnt, ldsR=0, ldsC=65536, acc=lambda i,j: (i*8+j)*4)
        tmp = {'v': d['t'], 's': (s1, s2)}
        if isv: lane_setup(A, d, sW)
        setup_side(A, sR, regs, 'R', sW, sWr, d['vLane'], d['vCol'], d['vG'], tmp, 8192, 32, 0)
        setup_side(A, sC, regs, 'C', sW, sWc, d['vLane'], d['vCol'], d['vG'], tmp, 8192, 32, 65536)
        sH, sWo = (sOffR, sOffC) if isv else (sOffC, sOffR)
        A(f"""
        s_lshl_b32 s{sH}, s{sTm}, 19
        s_add_u32 s{sH}, s{sH}, {WS['H']}
        s_lshl_b32 s{sWo}, s{sTn}, 9
        """)
        stepH, stepW = 2*1024, 64*8192
        if isv: gen_gemm_core(A, None, sR, sC, 16, ws, wt, sOffR, sOffC, stepH, stepW, regs, pfx=name+'_v')
        else:   gen_gemm_core(A, None, sR, sC, 16, wt, ws, sOffR, sOffC, stepW, stepH, regs, pfx=name+'_q')
        ep = d['vEp']
        A.nop(8)
        if not isv:
            A(f"""
            s_lshl_b32 s{sHead}, s{sTn}, 1
            s_add_u32 s{sHead}, s{sHead}, s{sWr}
            s_lshl_b32 s{sSeg}, s{sTm}, 3
            s_lshl_b32 s{s1}, s{sWc}, 2
            s_add_u32 s{sSeg}, s{sSeg}, s{s1}
            s_lshl_b32 s{sBase}, s{sSeg}, 5
            s_add_u32 s{sBase}, s{sBase}, s{sHead}
            s_lshl_b32 s{sBase}, s{sBase}, 13
            s_lshl_b32 s{s1}, s{sMat}, 24
            s_add_u32 s{sBase}, s{sBase}, s{s1}
            s_add_u32 s{sBase}, s{sBase}, {WS['Q']}
            """)
            assert WS['K'] == WS['Q'] + (16 << 20)
            k = 0
            for j in range(8):
                A(f"s_add_u32 s{s1}, s{sBase}, {(j>>1)*(1<<18) + (j&1)*4096}")
                for p in range(4):
                    e = ep + (k % 4)*8; k += 1
                    for hh in range(2):
                        for r in range(4):
                            A(f"v_accvgpr_read_b32 v{e+4+r if hh else e+r}, a{regs['acc'](2*p+hh, j)+r}") if False else None
                    for hh in range(2):
                        for r in range(4):
                            A(f"v_accvgpr_read_b32 v{e+4*hh+r}, a{regs['acc'](2*p+hh, j)+r}")
                    A(f"v_cvt_pk_bf16_f32 v{e}, v{e}, v{e+1}")
                    A(f"v_cvt_pk_bf16_f32 v{e+1}, v{e+2}, v{e+3}")
                    A(f"v_cvt_pk_bf16_f32 v{e+2}, v{e+4}, v{e+5}")
                    A(f"v_cvt_pk_bf16_f32 v{e+3}, v{e+6}, v{e+7}")
                    A(f"buffer_store_dwordx4 {v(e,4)}, v{d['vL16']}, {ws}, s{s1} offen offset:{p*1024}")
        else:
            A(f"""
            s_lshl_b32 s{sHead}, s{sTn}, 1
            s_add_u32 s{sHead}, s{sHead}, s{sWc}
            s_lshl_b32 s{sSeg}, s{sTm}, 3
            s_lshl_b32 s{s1}, s{sWr}, 2
            s_add_u32 s{sSeg}, s{sSeg}, s{s1}
            s_lshl_b32 s{sBase}, s{sSeg}, 5
            s_add_u32 s{sBase}, s{sBase}, s{sHead}
            s_lshl_b32 s{sBase}, s{sBase}, 13
            s_add_u32 s{sBase}, s{sBase}, {WS['VT']}
            """)
            k = 0
            for pp in range(4):
                for j in range(8):
                    if j % 4 == 0:
                        A(f"s_add_u32 s{s1}, s{sBase}, {pp*(1<<18) + (j//4)*4096}")
                    e = ep + (k % 4)*8; k += 1
                    for hh in range(2):
                        for r in range(4):
                            A(f"v_accvgpr_read_b32 v{e+4*hh+r}, a{regs['acc'](2*pp+hh, j)+r}")
                    A(f"v_cvt_pk_bf16_f32 v{e}, v{e}, v{e+1}")
                    A(f"v_cvt_pk_bf16_f32 v{e+1}, v{e+2}, v{e+3}")
                    A(f"v_cvt_pk_bf16_f32 v{e+2}, v{e+4}, v{e+5}")
                    A(f"v_cvt_pk_bf16_f32 v{e+3}, v{e+6}, v{e+7}")
                    A(f"buffer_store_dwordx4 {v(e,4)}, v{d['vL16']}, {ws}, s{s1} offen offset:{(j%4)*1024}")
        print(name, 'isv', isv, 'vgprs', d['R'].next)
    body(False)
    A("s_endpgm")
    A.label(f"{name}_v")
    body(True)
    A.label(f"{name}_exit")
    A("s_endpgm")
    return A.text()

def g1_desc(name='g1_kernel'):
    return kernel_desc(name, 512, 64, 256)
```

```python
from asmlib import *
import struct, math
def f2u(x): return struct.unpack('<I', struct.pack('<f', x))[0]

def srd(A, s, lo, hi, size):
    A(f"s_mov_b32 s{s}, s{lo}")
    A(f"s_mov_b32 s{s+1}, s{hi}")
    A(f"s_mov_b32 s{s+2}, {size}")
    A(f"s_mov_b32 s{s+3}, 0x20000")

RING_BYTES = WS['RING_END'] - WS['RA']

def gen_pre(name='pre_kernel'):
    A = Asm(); A.raw(kernel_header(name))
    NF = 160
    A(f"""
    s_cmp_ge_u32 s2, 256
    s_cbranch_scc1 {name}_exit
    s_load_dwordx2 s[4:5], s[0:1], {KA['c']}
    s_load_dwordx2 s[6:7], s[0:1], {KA['wmod']}
    s_load_dwordx2 s[20:21], s[0:1], {KA['ws']}
    s_waitcnt lgkmcnt(0)
    """)
    srd(A, 8, 4, 5, 2048); srd(A, 12, 6, 7, 1024*6144*2); srd(A, 16, 20, 21, WS_SIZE)
    A(f"""
    s_cmp_ge_u32 s2, 96
    s_cbranch_scc1 {name}_fill
    v_lshlrev_b32 v1, 3, v0
    buffer_load_dwordx2 v[2:3], v1, s[8:11], 0 offen
    s_waitcnt vmcnt(0)
    v_lshlrev_b32 v4, 16, v2
    v_and_b32 v5, 0xffff0000, v2
    v_lshlrev_b32 v6, 16, v3
    v_and_b32 v7, 0xffff0000, v3
    s_mov_b32 s22, {hex(f2u(-math.log2(math.e)))}
    """)
    for r in range(4):
        A(f"v_mul_f32 v{8+r}, s22, v{4+r}")
    for r in range(4):
        A(f"v_exp_f32 v{8+r}, v{8+r}")
    A("s_nop 0")
    for r in range(4):
        A(f"v_add_f32 v{8+r}, 1.0, v{8+r}")
    for r in range(4):
        A(f"v_rcp_f32 v{8+r}, v{8+r}")
    A("s_nop 0")
    for r in range(4):
        A(f"v_mul_f32 v{8+r}, v{8+r}, v{4+r}")
    A(f"""
    v_cvt_pk_bf16_f32 v12, v8, v9
    v_cvt_pk_bf16_f32 v13, v10, v11
    v_lshlrev_b32 v8, 16, v12
    v_and_b32 v9, 0xffff0000, v12
    v_lshlrev_b32 v10, 16, v13
    v_and_b32 v11, 0xffff0000, v13
    v_lshlrev_b32 v1, 4, v0
    ds_write_b128 v1, v[8:11]
    s_waitcnt lgkmcnt(0)
    s_barrier
    v_and_b32 v2, 7, v0
    v_lshrrev_b32 v3, 3, v0
    v_mul_u32_u24 v4, 12288, v3
    v_lshl_add_u32 v4, v2, 4, v4
    s_lshl_b32 s22, s2, 7
    v_add_u32 v4, s22, v4
    v_lshlrev_b32 v5, 2, v3
    """)
    for r in range(8): A(f"v_mov_b32 v{16+r}, 0")
    for b in range(4):
        for i in range(8):
            row = b*8 + i
            A(f"s_mov_b32 s23, {row*32*12288}")
            A(f"buffer_load_dwordx4 v[{32+4*i}:{35+4*i}], v4, s[12:15], s23 offen")
            A(f"ds_read_b32 v{64+i}, v5 offset:{row*128}")
        A("s_waitcnt vmcnt(0) lgkmcnt(0)")
        for i in range(8):
            for q in range(4):
                A(f"v_lshlrev_b32 v24, 16, v{32+4*i+q}")
                A(f"v_and_b32 v25, 0xffff0000, v{32+4*i+q}")
                A(f"v_fmac_f32 v{16+2*q}, v24, v{64+i}")
                A(f"v_fmac_f32 v{17+2*q}, v25, v{64+i}")
    A(f"""
    v_lshlrev_b32 v5, 8, v3
    v_lshl_add_u32 v5, v2, 5, v5
    ds_write_b128 v5, v[16:19] offset:4096
    ds_write_b128 v5, v[20:23] offset:4112
    s_waitcnt lgkmcnt(0)
    s_barrier
    v_cmp_gt_u32 vcc, 64, v0
    s_and_saveexec_b64 s[24:25], vcc
    s_cbranch_execz {name}_exit
    v_lshlrev_b32 v5, 2, v0
    """)
    for i in range(32):
        A(f"ds_read_b32 v{32+i}, v5 offset:{4096+i*256}")
        if i % 8 == 7: A("s_waitcnt lgkmcnt(0)")
    for i in range(1, 32):
        A(f"v_add_f32 v32, v32, v{32+i}")
    A(f"""
    v_cvt_pk_bf16_f32 v33, v32, v32
    v_lshlrev_b32 v33, 16, v33
    v_add_f32 v34, 1.0, v33
    v_cvt_pk_bf16_f32 v34, v34, v34
    v_lshlrev_b32 v34, 16, v34
    s_lshr_b32 s22, s2, 4
    s_cmp_eq_u32 s22, 1
    s_cselect_b32 s23, 1, 0
    s_cmp_eq_u32 s22, 4
    s_cselect_b32 s23, 1, s23
    s_cmp_eq_u32 s23, 1
    s_cbranch_scc0 {name}_nop1
    v_mov_b32 v33, v34
    {name}_nop1:
    s_lshl_b32 s22, s2, 8
    s_add_u32 s22, s22, {WS['MOD']}
    buffer_store_dword v33, v5, s[16:19], s22 offen
    s_endpgm
    {name}_fill:
    s_sub_u32 s22, s2, 96
    s_lshl_b32 s22, s22, 12
    s_add_u32 s22, s22, {WS['RA']}
    v_lshlrev_b32 v1, 4, v0
    v_mov_b32 v4, -1
    v_mov_b32 v5, -1
    v_mov_b32 v6, -1
    v_mov_b32 v7, -1
    {name}_floop:
    buffer_store_dwordx4 v[4:7], v1, s[16:19], s22 offen
    s_add_u32 s22, s22, {NF*4096}
    s_cmp_lt_u32 s22, {WS['RING_END']}
    s_cbranch_scc1 {name}_floop
    {name}_exit:
    s_endpgm
    """)
    assert RING_BYTES % 4096 == 0
    return A.text(), kernel_desc(name, 72, 32, 72)

def gen_ln(name, which):
    A = Asm(); A.raw(kernel_header(name))
    vX = 32
    vL = 96
    vM = 128
    A(f"""
    s_cmp_ge_u32 s2, 128
    s_cbranch_scc1 {name}_exit
    s_load_dwordx2 s[4:5], s[0:1], {KA['x']}
    s_load_dwordx2 s[20:21], s[0:1], {KA['ws']}
    v_and_b32 v1, 63, v0                    ; lane
    v_lshrrev_b32 v2, 6, v0
    s_nop 0
    v_readfirstlane_b32 s22, v2             ; wave
    v_and_b32 v3, 15, v1                    ; col
    v_lshrrev_b32 v4, 4, v1                 ; g
    v_lshlrev_b32 v5, 4, v1                 ; lane*16
    s_waitcnt lgkmcnt(0)
    """)
    srd(A, 8, 4, 5, 2048*1024*2); srd(A, 16, 20, 21, WS_SIZE)
    if which == 1:
        A(f"""
        v_lshlrev_b32 v6, 11, v3
        v_lshl_add_u32 v6, v4, 3, v6
        s_lshl_b32 s23, s2, 15              ; 16 tokens * 2048
        s_lshl_b32 s24, s22, 9              ; w*256*2
        s_add_u32 s23, s23, s24
        """)
        for kb in range(8):
            A(f"buffer_load_dwordx2 v[{vL+4*kb}:{vL+4*kb+1}], v6, s[8:11], s23 offen offset:{kb*64}")
            A(f"buffer_load_dwordx2 v[{vL+4*kb+2}:{vL+4*kb+3}], v6, s[8:11], s23 offen offset:{kb*64+32}")
    else:
        A(f"""
        s_lshl_b32 s23, s2, 15              ; tile*32*1024
        s_lshl_b32 s24, s22, 13             ; w*8*1024
        s_add_u32 s23, s23, s24
        s_add_u32 s23, s23, {WS['X1']}
        s_add_u32 s25, s23, 4096
        """)
        for kb in range(8):
            A(f"buffer_load_dwordx4 v[{vL+4*kb}:{vL+4*kb+3}], v5, s[16:19], s{23 if kb < 4 else 25} offen offset:{(kb%4)*1024}")
    rowS, rowP = (0, 1) if which == 1 else (3, 4)
    A(f"""
    v_lshlrev_b32 v7, 4, v4                 ; g*16 bytes
    s_lshl_b32 s24, s22, 10                 ; 256w*4
    s_add_u32 s26, s24, {WS['MOD'] + rowS*4096}
    s_add_u32 s27, s24, {WS['MOD'] + rowP*4096}
    """)
    for kb in range(8):
        m = vM + kb*16
        A(f"buffer_load_dwordx4 v[{m}:{m+3}], v7, s[16:19], s27 offen offset:{kb*128}")
        A(f"buffer_load_dwordx4 v[{m+4}:{m+7}], v7, s[16:19], s27 offen offset:{kb*128+64}")
        A(f"buffer_load_dwordx4 v[{m+8}:{m+11}], v7, s[16:19], s26 offen offset:{kb*128}")
        A(f"buffer_load_dwordx4 v[{m+12}:{m+15}], v7, s[16:19], s26 offen offset:{kb*128+64}")
    A("s_waitcnt vmcnt(32)")
    for q in range(32):
        A(f"v_lshlrev_b32 v{vX+2*q}, 16, v{vL+q}")
        A(f"v_and_b32 v{vX+2*q+1}, 0xffff0000, v{vL+q}")
    def reduce_all(reg, ldsoff):
        A(f"""
        v_mov_b32 v9, v{reg}
        s_nop 1
        v_permlane16_swap_b32 v{reg}, v9
        s_nop 1
        v_add_f32 v{reg}, v{reg}, v9
        v_mov_b32 v9, v{reg}
        s_nop 1
        v_permlane32_swap_b32 v{reg}, v9
        s_nop 1
        v_add_f32 v{reg}, v{reg}, v9
        v_lshlrev_b32 v10, 2, v3
        s_lshl_b32 s24, s22, 6
        v_add_u32 v11, s24, v10
        ds_write_b32 v11, v{reg} offset:{ldsoff}
        s_waitcnt lgkmcnt(0)
        s_barrier
        ds_read_b32 v12, v10 offset:{ldsoff}
        ds_read_b32 v13, v10 offset:{ldsoff+64}
        ds_read_b32 v14, v10 offset:{ldsoff+128}
        ds_read_b32 v15, v10 offset:{ldsoff+192}
        s_waitcnt lgkmcnt(0)
        v_add_f32 v12, v12, v13
        v_add_f32 v14, v14, v15
        v_add_f32 v{reg}, v12, v14
        """)
    A(f"v_add_f32 v8, v{vX}, v{vX+1}")
    for q in range(2, 64): A(f"v_add_f32 v8, v8, v{vX+q}")
    reduce_all(8, 0)
    A(f"v_mul_f32 v16, {hex(f2u(1/1024))}, v8")
    for q in range(64): A(f"v_sub_f32 v{vX+q}, v{vX+q}, v16")
    A(f"v_mul_f32 v8, v{vX}, v{vX}")
    for q in range(1, 64): A(f"v_fmac_f32 v8, v{vX+q}, v{vX+q}")
    reduce_all(8, 256)
    A(f"""
    v_mov_b32 v17, {hex(f2u(1e-5))}
    v_fmac_f32 v17, {hex(f2u(1/1024))}, v8
    v_rsq_f32 v17, v17
    s_nop 0
    """)
    if which == 2:
        A(f"""
        v_lshlrev_b32 v18, 11, v3
        v_and_b32 v19, 1, v4
        v_lshl_add_u32 v18, v19, 5, v18
        v_lshrrev_b32 v19, 1, v4
        v_lshl_add_u32 v18, v19, 4, v18
        s_lshl_b32 s28, s2, 15
        s_lshl_b32 s24, s22, 9
        s_add_u32 s28, s28, s24
        s_add_u32 s28, s28, {WS['H2']}
        """)
    else:
        A(f"""
        s_lshl_b32 s28, s2, 15
        s_lshl_b32 s24, s22, 13
        s_add_u32 s28, s28, s24
        s_add_u32 s28, s28, {WS['H']}
        s_add_u32 s29, s28, 4096
        """)
    for kb in range(8):
        m = vM + kb*16
        if kb == 0: A("s_waitcnt vmcnt(0)")
        x0 = vX + 8*kb
        for e in range(8):
            A(f"v_mul_f32 v{x0+e}, v{x0+e}, v17")
        for e in range(8):
            A(f"v_fma_f32 v{x0+e}, v{x0+e}, v{m+e}, v{m+8+e}")
        o = 20 + (kb % 2)*4
        for q in range(4):
            A(f"v_cvt_pk_bf16_f32 v{o+q}, v{x0+2*q}, v{x0+2*q+1}")
        if which == 1:
            A(f"buffer_store_dwordx4 v[{o}:{o+3}], v5, s[16:19], s{28 if kb < 4 else 29} offen offset:{(kb%4)*1024}")
        else:
            A(f"""
            s_nop 1
            v_permlane16_swap_b32 v{o}, v{o+2}
            v_permlane16_swap_b32 v{o+1}, v{o+3}
            s_nop 1
            buffer_store_dwordx4 v[{o}:{o+3}], v18, s[16:19], s28 offen offset:{kb*64}
            """)
    A.label(f"{name}_exit")
    A("s_endpgm")
    return A.text(), kernel_desc(name, 256, 32, 256)
```

```python
from asmlib import *
from gemm import *
from kern_g1 import common_regs, lane_setup
import struct, math
def f2u(x): return struct.unpack('<I', struct.pack('<f', x))[0]

def gen_small(name, kind):
    A = Asm(); A.raw(kernel_header(name))
    sWS=8; sWt=12; sX=16; sW=20; sWr=21; sWc=22; sTr=23; sTc=24; sOffR=25; sOffC=26; sCnt=27; sM0R=28; sM0C=29; s1=30; s2=31; s3=32; s4=33; sB=40
    cfg = dict(
        g4=dict(R='T', C='F', ntr=8, ntc=16, nst=32, wt='Wo', wsize=4096*1024*2),
        g5=dict(R='T', C='T', ntr=28, ntc=8, nst=16, wt='w1', wsize=2048*3584*2),
        g6=dict(R='F', C='T', ntr=8, ntc=16, nst=28, wt='w2', wsize=3584*2048*2))[kind]
    ntiles = cfg['ntr']*cfg['ntc']
    sR = Side(cfg['R'], 4, 4); sC = Side(cfg['C'], 4, 4)
    d = common_regs(4, 4, sR, sC)
    A(f"""
    s_cmp_ge_u32 s2, {ntiles}
    s_cbranch_scc1 {name}_exit
    s_load_dwordx2 s[4:5], s[0:1], {KA[cfg['wt']]}
    s_load_dwordx2 s[6:7], s[0:1], {KA['ws']}
    s_load_dwordx2 s[34:35], s[0:1], {KA['x'] if kind == 'g4' else (KA['b1'] if kind == 'g5' else KA['b2'])}
    s_load_dwordx2 s[36:37], s[0:1], {KA['out']}
    """)
    lane_setup(A, d, sW)
    if kind == 'g4':
        A(f"s_and_b32 s{sTr}, s2, 7"); A(f"s_lshr_b32 s{sTc}, s2, 3")
    elif kind == 'g5':
        A(f"s_and_b32 s{sTc}, s2, 7"); A(f"s_lshr_b32 s{sTr}, s2, 3")
    else:
        A(f"s_and_b32 s{sTr}, s2, 7"); A(f"s_lshr_b32 s{sTc}, s2, 3")
    A(f"""
    s_lshr_b32 s{sWr}, s{sW}, 1
    s_and_b32 s{sWc}, s{sW}, 1
    s_waitcnt lgkmcnt(0)
    s_mov_b32 s{sWS}, s6
    s_mov_b32 s{sWS+1}, s7
    s_mov_b32 s{sWS+2}, {WS_SIZE}
    s_mov_b32 s{sWS+3}, 0x20000
    s_mov_b32 s{sWt}, s4
    s_mov_b32 s{sWt+1}, s5
    s_mov_b32 s{sWt+2}, {cfg['wsize']}
    s_mov_b32 s{sWt+3}, 0x20000
    s_mov_b32 s{sX}, s34
    s_mov_b32 s{sX+1}, s35
    s_mov_b32 s{sX+2}, {2048*1024*2 if kind == 'g4' else (3584*2 if kind == 'g5' else 2048*2)}
    s_mov_b32 s{sX+3}, 0x20000
    """)
    ws = f"s[{sWS}:{sWS+3}]"; wt = f"s[{sWt}:{sWt+3}]"; xs = f"s[{sX}:{sX+3}]"
    regs = dict(d); regs.update(sM0R=sM0R, sM0C=sM0C, sCnt=sCnt, ldsR=0, ldsC=65536, acc=lambda i,j: (i*4+j)*4)
    tmp = {'v': d['t'], 's': (s1, s2)}
    if kind == 'g4':
        setup_side(A, sR, regs, 'R', sW, sWr, d['vLane'], d['vCol'], d['vG'], tmp, 2048, None, 0)
        setup_side(A, sC, regs, 'C', sW, sWc, d['vLane'], d['vCol'], d['vG'], tmp, None, 128, 65536)
        A(f"s_lshl_b32 s{sOffR}, s{sTr}, 8")
        A(f"s_lshl_b32 s{sOffC}, s{sTc}, 20")
        A(f"s_add_u32 s{sOffC}, s{sOffC}, {WS['O']}")
        gen_gemm_core(A, None, sR, sC, cfg['nst'], wt, ws, sOffR, sOffC, 128*2048, 4*1024, regs, pfx=name)
    elif kind == 'g5':
        setup_side(A, sR, regs, 'R', sW, sWr, d['vLane'], d['vCol'], d['vG'], tmp, 7168, None, 0)
        setup_side(A, sC, regs, 'C', sW, sWc, d['vLane'], d['vCol'], d['vG'], tmp, 2048, None, 65536)
        A(f"s_lshl_b32 s{sOffR}, s{sTr}, 8")
        A(f"s_lshl_b32 s{sOffC}, s{sTc}, 8")
        A(f"s_add_u32 s{sOffC}, s{sOffC}, {WS['H2']}")
        gen_gemm_core(A, None, sR, sC, cfg['nst'], wt, ws, sOffR, sOffC, 128*7168, 128*2048, regs, pfx=name)
    else:
        setup_side(A, sR, regs, 'R', sW, sWr, d['vLane'], d['vCol'], d['vG'], tmp, None, 112, 0)
        setup_side(A, sC, regs, 'C', sW, sWc, d['vLane'], d['vCol'], d['vG'], tmp, 4096, None, 65536)
        A(f"s_mul_i32 s{sOffR}, s{sTr}, {8*112*1024}")
        A(f"s_add_u32 s{sOffR}, s{sOffR}, {WS['U']}")
        A(f"s_lshl_b32 s{sOffC}, s{sTc}, 8")
        gen_gemm_core(A, None, sR, sC, cfg['nst'], ws, wt, sOffR, sOffC, 4*1024, 128*4096, regs, pfx=name)
    acc = regs['acc']; ep = d['vEp']; t1, t2, t3 = d['t']
    vF = d['vFR']
    vF2 = d['vFC']
    A.nop(8)
    if kind == 'g4':
        A(f"""
        v_lshlrev_b32 v{t1}, 11, v{d['vCol']}
        v_lshl_add_u32 v{t1}, v{d['vG']}, 3, v{t1}          ; col*2048 + g*8
        v_lshlrev_b32 v{t2}, 4, v{d['vG']}                  ; g*16
        s_lshl_b32 s{s1}, s{sTr}, 7
        s_lshl_b32 s{s2}, s{sWr}, 6
        s_add_u32 s{s1}, s{s1}, s{s2}                       ; dbase
        s_lshl_b32 s{s3}, s{s1}, 2
        s_add_u32 s{s3}, s{s3}, {WS['MOD'] + 2*4096}
        """)
        for p in range(2):
            for hh in range(2):
                A(f"buffer_load_dwordx4 {v(vF2+8*p+4*hh,4)}, v{t2}, {ws}, s{s3} offen offset:{(32*p+16*hh)*4}")
        A(f"""
        s_lshl_b32 s{s2}, s{sTc}, 3
        s_lshl_b32 s{s4}, s{sWc}, 2
        s_add_u32 s{s2}, s{s2}, s{s4}
        s_lshl_b32 s{s4}, s{s2}, 15                         ; *16*2048
        s_lshl_b32 s{s3}, s{s1}, 1
        s_add_u32 s{s4}, s{s4}, s{s3}                       ; x soffset
        s_lshl_b32 s{s2}, s{s2}, 15
        s_lshl_b32 s{s3}, s{s1}, 5
        s_add_u32 s{s2}, s{s2}, s{s3}
        s_add_u32 s{s2}, s{s2}, {WS['X1']}
        """)
        for j in range(4):
            A(f"s_add_u32 s{s3}, s{s4}, {j*16*2048}")
            for p in range(2):
                for hh in range(2):
                    A(f"buffer_load_dwordx2 {v(vF+(j*2+p)*4+2*hh,2)}, v{t1}, {xs}, s{s3} offen offset:{(32*p+16*hh)*2}")
        A("s_waitcnt vmcnt(0)")
        k = 0
        for j in range(4):
            A(f"s_add_u32 s{s3}, s{s2}, {j*32768}")
            for p in range(2):
                e = ep + (k % 4)*8; k += 1
                xr = vF + (j*2+p)*4
                for hh in range(2):
                    for r in range(4):
                        A(f"v_accvgpr_read_b32 v{e+4*hh+r}, a{acc(2*p+hh, j)+r}")
                for hh in range(2):
                    for q in range(2):
                        A(f"v_lshlrev_b32 v{t3}, 16, v{xr+2*hh+q}")
                        A(f"v_fma_f32 v{e+4*hh+2*q}, v{e+4*hh+2*q}, v{vF2+8*p+4*hh+2*q}, v{t3}")
                        A(f"v_and_b32 v{t3}, 0xffff0000, v{xr+2*hh+q}")
                        A(f"v_fma_f32 v{e+4*hh+2*q+1}, v{e+4*hh+2*q+1}, v{vF2+8*p+4*hh+2*q+1}, v{t3}")
                for q in range(4):
                    A(f"v_cvt_pk_bf16_f32 v{e+q}, v{e+2*q}, v{e+2*q+1}")
                A(f"buffer_store_dwordx4 {v(e,4)}, v{d['vL16']}, {ws}, s{s3} offen offset:{p*1024}")
    elif kind == 'g5':
        A(f"""
        v_lshlrev_b32 v{t1}, 3, v{d['vG']}
        s_lshl_b32 s{s1}, s{sTr}, 7
        s_lshl_b32 s{s2}, s{sWr}, 6
        s_add_u32 s{s1}, s{s1}, s{s2}                       ; fbase
        s_lshl_b32 s{s3}, s{s1}, 1
        """)
        for p in range(2):
            for hh in range(2):
                A(f"buffer_load_dwordx2 {v(vF+4*p+2*hh,2)}, v{t1}, {xs}, s{s3} offen offset:{(32*p+16*hh)*2}")
        A(f"""
        s_lshl_b32 s{s2}, s{sTc}, 3
        s_lshl_b32 s{s4}, s{sWc}, 2
        s_add_u32 s{s2}, s{s2}, s{s4}
        s_mul_i32 s{s2}, s{s2}, {112*1024}
        s_lshl_b32 s{s3}, s{s1}, 5
        s_add_u32 s{s2}, s{s2}, s{s3}
        s_add_u32 s{s2}, s{s2}, {WS['U']}
        s_mov_b32 s{sB}, {hex(f2u(0.044715))}
        s_mov_b32 s{sB+1}, {hex(f2u(-2.0*math.sqrt(2.0/math.pi)*math.log2(math.e)))}
        s_waitcnt vmcnt(0)
        """)
        for p in range(2):
            for hh in range(2):
                for q in range(2):
                    A(f"v_lshlrev_b32 v{vF2+8*p+4*hh+2*q}, 16, v{vF+4*p+2*hh+q}")
                    A(f"v_and_b32 v{vF2+8*p+4*hh+2*q+1}, 0xffff0000, v{vF+4*p+2*hh+q}")
        k = 0
        for j in range(4):
            A(f"s_add_u32 s{s3}, s{s2}, {j*112*1024}")
            for p in range(2):
                e = ep + (k % 2)*16; k += 1
                w = e + 8
                for hh in range(2):
                    for r in range(4):
                        A(f"v_accvgpr_read_b32 v{e+4*hh+r}, a{acc(2*p+hh, j)+r}")
                for q in range(8): A(f"v_add_f32 v{e+q}, v{e+q}, v{vF2+8*p+q}")
                for q in range(8): A(f"v_mul_f32 v{w+q}, v{e+q}, v{e+q}")
                for q in range(8): A(f"v_fma_f32 v{w+q}, v{w+q}, s{sB}, 1.0")
                for q in range(8): A(f"v_mul_f32 v{w+q}, v{w+q}, v{e+q}")
                for q in range(8): A(f"v_mul_f32 v{w+q}, s{sB+1}, v{w+q}")
                for q in range(8): A(f"v_exp_f32 v{w+q}, v{w+q}")
                A("s_nop 0")
                for q in range(8): A(f"v_add_f32 v{w+q}, 1.0, v{w+q}")
                for q in range(8): A(f"v_rcp_f32 v{w+q}, v{w+q}")
                A("s_nop 0")
                for q in range(8): A(f"v_mul_f32 v{e+q}, v{e+q}, v{w+q}")
                for q in range(4):
                    A(f"v_cvt_pk_bf16_f32 v{e+q}, v{e+2*q}, v{e+2*q+1}")
                A(f"buffer_store_dwordx4 {v(e,4)}, v{d['vL16']}, {ws}, s{s3} offen offset:{p*1024}")
    else:
        A(f"""
        s_mov_b32 s{sX+4}, s36
        s_mov_b32 s{sX+5}, s37
        s_mov_b32 s{sX+6}, {2048*1024*2}
        s_mov_b32 s{sX+7}, 0x20000
        """) if False else None
        sO = 44
        A(f"""
        s_mov_b32 s{sO}, s36
        s_mov_b32 s{sO+1}, s37
        s_mov_b32 s{sO+2}, {2048*1024*2}
        s_mov_b32 s{sO+3}, 0x20000
        v_lshlrev_b32 v{t2}, 4, v{d['vG']}
        s_lshl_b32 s{s1}, s{sTr}, 7
        s_lshl_b32 s{s2}, s{sWr}, 6
        s_add_u32 s{s1}, s{s1}, s{s2}                       ; dbase
        s_lshl_b32 s{s3}, s{s1}, 2
        s_add_u32 s{s3}, s{s3}, {WS['MOD'] + 5*4096}
        """)
        for p in range(2):
            for hh in range(2):
                A(f"buffer_load_dwordx4 {v(vF2+8*p+4*hh,4)}, v{t2}, {ws}, s{s3} offen offset:{(32*p+16*hh)*4}")
        A(f"""
        s_lshl_b32 s{s2}, s{sTc}, 3
        s_lshl_b32 s{s4}, s{sWc}, 2
        s_add_u32 s{s2}, s{s2}, s{s4}
        v_lshlrev_b32 v{t1}, 1, v{d['vCol']}                ; col*2
        s_lshl_b32 s{s3}, s{s2}, 5                          ; s tile*16*2
        """)
        for j in range(4):
            A(f"buffer_load_ushort v{vF2+16+j}, v{t1}, {xs}, s{s3} offen offset:{j*32}")
        A(f"""
        s_lshl_b32 s{s4}, s{s2}, 15
        s_lshl_b32 s{s3}, s{s1}, 5
        s_add_u32 s{s4}, s{s4}, s{s3}
        s_add_u32 s{s4}, s{s4}, {WS['X1']}                   ; X1C base
        """)
        for j in range(4):
            A(f"s_add_u32 s{s3}, s{s4}, {j*32768}")
            for p in range(2):
                A(f"buffer_load_dwordx4 {v(vF+(j*2+p)*4,4)}, v{d['vL16']}, {ws}, s{s3} offen offset:{p*1024}")
        A(f"""
        v_lshlrev_b32 v{t1}, 11, v{d['vCol']}
        v_and_b32 v{t3}, 1, v{d['vG']}
        v_lshl_add_u32 v{t1}, v{t3}, 5, v{t1}
        v_lshrrev_b32 v{t3}, 1, v{d['vG']}
        v_lshl_add_u32 v{t1}, v{t3}, 4, v{t1}
        s_lshl_b32 s{s2}, s{s2}, 15
        s_lshl_b32 s{s3}, s{s1}, 1
        s_add_u32 s{s2}, s{s2}, s{s3}
        s_waitcnt vmcnt(0)
        """)
        for j in range(4):
            A(f"v_lshlrev_b32 v{vF2+16+j}, 16, v{vF2+16+j}")
        k = 0
        for j in range(4):
            A(f"s_add_u32 s{s3}, s{s2}, {j*16*2048}")
            for p in range(2):
                e = ep + (k % 4)*8; k += 1
                xr = vF + (j*2+p)*4
                for hh in range(2):
                    for r in range(4):
                        A(f"v_accvgpr_read_b32 v{e+4*hh+r}, a{acc(2*p+hh, j)+r}")
                for q in range(8): A(f"v_add_f32 v{e+q}, v{e+q}, v{vF2+16+j}")
                for q in range(4):
                    A(f"v_lshlrev_b32 v{t3}, 16, v{xr+q}")
                    A(f"v_fma_f32 v{e+2*q}, v{e+2*q}, v{vF2+8*p+2*q}, v{t3}")
                    A(f"v_and_b32 v{t3}, 0xffff0000, v{xr+q}")
                    A(f"v_fma_f32 v{e+2*q+1}, v{e+2*q+1}, v{vF2+8*p+2*q+1}, v{t3}")
                for q in range(4):
                    A(f"v_cvt_pk_bf16_f32 v{e+q}, v{e+2*q}, v{e+2*q+1}")
                A(f"""
                s_nop 1
                v_permlane16_swap_b32 v{e}, v{e+2}
                v_permlane16_swap_b32 v{e+1}, v{e+3}
                s_nop 1
                buffer_store_dwordx4 {v(e,4)}, v{t1}, s[{sO}:{sO+3}], s{s3} offen offset:{p*64}
                """)
    print(name, 'vgprs', d['R'].next)
    A.label(f"{name}_exit")
    A("s_endpgm")
    acc_off = (d['R'].next + 3)//4*4
    return A.text(), kernel_desc(name, 256+64, 64, 256)
```

```python
import sys; sys.path.insert(0,'gen')
from asmlib import *
from build import *
from chain import gen_chain, chain_desc
import chain
from kern_g1 import gen_g1, g1_desc
from kern_misc import gen_pre, gen_ln
from kern_attn import gen_attn
from kern_small import gen_small

def build_full(path, cdelay=14):
    ks = []
    t,d = gen_pre(); ks.append(('pre_kernel', t, d))
    t,d = gen_ln('ln1_kernel', 1); ks.append(('ln1_kernel', t, d))
    ks.append(('g1_kernel', gen_g1(), g1_desc()))
    ks.append(('chain_kernel', gen_chain(cdelay=cdelay), chain_desc()))
    t,d = gen_attn(); ks.append(('attn_kernel', t, d))
    t,d = gen_small('g4_kernel', 'g4'); ks.append(('g4_kernel', t, d))
    t,d = gen_ln('ln2_kernel', 2); ks.append(('ln2_kernel', t, d))
    t,d = gen_small('g5_kernel', 'g5'); ks.append(('g5_kernel', t, d))
    t,d = gen_small('g6_kernel', 'g6'); ks.append(('g6_kernel', t, d))
    L = [('pre_kernel',256,256,16384), ('ln1_kernel',128,256,1024), ('g1_kernel',384,256,131072), ('chain_kernel',256,256,131072),
         ('attn_kernel',512,256,0), ('g4_kernel',128,256,131072), ('ln2_kernel',128,256,1024), ('g5_kernel',224,256,131072), ('g6_kernel',128,256,131072)]
    out = assemble_file(L, ks, path)
    print('size', len(out))
if __name__ == '__main__':
    build_full(sys.argv[1] if len(sys.argv) > 1 else 'full.s')
```

```python
class Asm:
    def __init__(self):
        self.lines = []
        self._lbl = 0
    def __call__(self, s):
        for ln in s.strip('\n').split('\n'):
            self.lines.append('    ' + ln.strip() if not ln.strip().endswith(':') else ln.strip())
    def raw(self, s):
        self.lines.append(s)
    def label(self, name):
        self.lines.append(name + ':')
    def newlabel(self, base='L'):
        self._lbl += 1
        return f'{base}_{self._lbl}'
    def nop(self, n):
        while n > 0:
            k = min(n, 16)
            self(f's_nop {k-1}')
            n -= k
    def text(self):
        return '\n'.join(self.lines) + '\n'

def v(i, n=1):
    return f'v{i}' if n == 1 else f'v[{i}:{i+n-1}]'
def a(i, n=1):
    return f'a{i}' if n == 1 else f'a[{i}:{i+n-1}]'
def s(i, n=1):
    return f's{i}' if n == 1 else f's[{i}:{i+n-1}]'

class RegAlloc:
    def __init__(self, start=0, limit=256):
        self.next = start; self.limit = limit; self.names = {}
    def alloc(self, name, n=1, align=1):
        p = (self.next + align - 1) // align * align
        self.next = p + n
        assert self.next <= self.limit, f'out of regs allocating {name}: {self.next} > {self.limit}'
        self.names[name] = (p, n)
        return p

def kernel_header(name):
    return f""".globl {name}
.p2align 8
.type {name},@function
{name}:
"""

def kernel_desc(name, vgpr, sgpr, accum, wgid_y=False):
    t = f""".amdhsa_kernel {name}
  .amdhsa_next_free_vgpr {vgpr}
  .amdhsa_next_free_sgpr {sgpr}
  .amdhsa_accum_offset {accum}
  .amdhsa_group_segment_fixed_size 0
  .amdhsa_kernarg_size 136
  .amdhsa_user_sgpr_count 2
  .amdhsa_user_sgpr_kernarg_segment_ptr 1
  .amdhsa_system_sgpr_workgroup_id_x 1
"""
    if wgid_y:
        t += "  .amdhsa_system_sgpr_workgroup_id_y 1\n"
    t += ".end_amdhsa_kernel\n"
    return t

KA = dict(x=0, mem0=8, Wq=16, Wk=24, Wv=32, Wo=40, seg=48, Bx=56, w1=64, b1=72, w2=80, b2=88, c=96, wmod=104, out=112, dbg=120, ws=128)

MB = 1 << 20
WS = {}
_off = 0
def _ws(name, size, align=4096):
    global _off
    _off = (_off + align - 1) // align * align
    WS[name] = _off
    _off += size
_ws('MOD', 8 * 1024 * 4)
_ws('FLAGS', 128 * 1024)
_ws('RA', 4 * 8 * 24576)
_ws('RD', 4 * 8 * 16384)
_ws('RC', 4 * 16 * 8 * 2048)
WS['RING_END'] = _off
_ws('H', 4 * MB)
_ws('Q', 16 * MB)
_ws('K', 16 * MB)
_ws('VT', 16 * MB)
_ws('KVM', 64 * 32 * 4096)
_ws('O', 16 * MB)
_ws('X1', 4 * MB)
_ws('H2', 4 * MB)
_ws('U', 1024 * 3584 * 2)
WS['END'] = _off
WS_SIZE = 268435456

FL_QHEAD = WS['FLAGS']
FL_KVRDY = WS['FLAGS'] + 1024
FL_QRDY  = WS['FLAGS'] + 20480
FL_KVM   = WS['FLAGS'] + 32768
FL_ORDY  = WS['FLAGS'] + 65536
FL_X1RDY = WS['FLAGS'] + 69632
FL_END   = WS['FLAGS'] + 128*1024

FL_G6    = WS['FLAGS'] + 73728
FL_H2RDY = WS['FLAGS'] + 90112
WS['PX'] = WS['END'] + (1 << 20)
WS['P4'] = WS['PX'] + (16 << 20)
WS['U1'] = WS['P4'] + (16 << 20)
```

```python
from asmlib import *
import struct, math

SENT_BUDGET = 2000000

def interleave(A, main, fill, start=0, every=1):
    fill = list(fill)
    for idx, m in enumerate(main):
        A(m)
        if idx >= start and (idx - start) % every == 0 and fill:
            A(fill.pop(0))
    for f in fill:
        A(f)

def gen_chain(name='chain_kernel', nsteps=64, timing=False, stamp_step=11, full='', cdelay=8, ldf='sc1', ddelay=0, adelay=0, embedded=False, fallback=False, kvpos='early', done_label=None):
    A = Asm()
    if not embedded: A.raw(kernel_header(name))
    kvf = ' sc1' if embedded else ''
    intra = ' sc1' if fallback else ''
    sWS = 8; sT = 12; sDBG = 16
    sX, sC, sW, sStep, sBud = 20, 21, 22, 23, 24
    sOffD, sOffA, sOffC, sOffKx, sOffVx, sTmp, sTmp2 = 25, 26, 27, 28, 30, 32, 33
    sOffVx1 = 31
    sOffKx1 = 29
    sOffAr, sOffDr, sOffCr, sOffKVM = 34, 35, 36, 37
    sCexp = 38; sH = 39
    sPq, sPk, sPv, sPo, sPm = 40, 42, 44, 46, 48
    sExecSave = 50
    sHL, sJ = 52, 53
    sT0 = 54
    sMask = 58
    sC1, sC2, sC3, sCst, sOffDn = 59, 60, 61, 62, 63
    sBaseA, sBaseD, sBaseC, sBaseCo = 88, 89, 90, 91
    sSt = 64
    sFlg, sKvmF = 95, 96
    R = RegAlloc(0, 256)
    R.alloc('tid')
    vLane = R.alloc('lane'); vCol = R.alloc('col'); vG = R.alloc('g')
    vT1 = R.alloc('t1'); vT2 = R.alloc('t2'); vT3 = R.alloc('t3')
    vOffD = R.alloc('offD'); vOffAq = R.alloc('offAq'); vOffAv = R.alloc('offAv'); vOffAst = R.alloc('offAst')
    vOffC = R.alloc('offC'); vOffDst = R.alloc('offDst'); vL16 = R.alloc('l16')
    vLds1w = R.alloc('lds1w'); vLds1r = R.alloc('lds1r'); vLds3w = R.alloc('lds3w'); vLds3r = R.alloc('lds3r')
    vSent = R.alloc('sent', 4, 4)
    vM = R.alloc('M', 16, 4); vRM = R.alloc('RM', 16, 4)
    vAcc = R.alloc('acc', 48, 4)
    vRd = R.alloc('rd', 32, 4)
    vQ = R.alloc('q', 8, 4); vK = R.alloc('k', 8, 4); vVm = R.alloc('vm', 8, 4)
    vRQ = vRM
    vOB = vM
    vKx = R.alloc('Kx', 32, 4); vVx = R.alloc('Vx', 32, 4)
    vSm = R.alloc('Smm', 4, 4); vS1 = vRd; vS2 = vRd + 4
    vSM = R.alloc('SM', 4, 4); vTT = R.alloc('TT', 4, 4)
    vBX = R.alloc('BX', 4, 4); vPM = R.alloc('PM', 2, 2); vPMh = R.alloc('PMh', 2, 2); vPMc = R.alloc('PMc', 2, 2)
    vFlag = R.alloc('flag'); vZero = R.alloc('zero'); vMax = R.alloc('max'); vMx2 = R.alloc('mx2'); vSum = R.alloc('sum'); vSu2 = R.alloc('su2')
    vO = vAcc; vE = vAcc + 32
    print('chain vgprs used', R.next)
    aW1 = 0; aWo = 192
    def W1(t, ks): return a(aW1 + (t * 8 + ks) * 4, 4)
    def Wo(tn, u): return a(aWo + (tn * 4 + u) * 4, 4)
    def acc(t): return vAcc + t * 4
    LDS_P1 = 0; LDS_P3 = 12288
    ws = f"s[{sWS}:{sWS+3}]"

    if embedded:
        A(f"""
        s_load_dwordx2 s[{sPm}:{sPm+1}], s[0:1], {KA['mem0']}
        s_load_dwordx2 s[{sPq}:{sPq+1}], s[0:1], {KA['Wq']}
        s_load_dwordx2 s[{sPk}:{sPk+1}], s[0:1], {KA['Wk']}
        s_load_dwordx2 s[{sPv}:{sPv+1}], s[0:1], {KA['Wv']}
        s_load_dwordx2 s[{sPo}:{sPo+1}], s[0:1], {KA['Wo']}
        v_and_b32 v{vLane}, 63, v0
        v_and_b32 v{vCol}, 15, v{vLane}
        v_lshrrev_b32 v{vG}, 4, v{vLane}
        v_lshlrev_b32 v{vL16}, 4, v{vLane}
        s_lshr_b32 s{sHL}, s{sC}, 2
        s_and_b32 s{sJ}, s{sC}, 3
        s_waitcnt lgkmcnt(0)
        """)
    else:
        A(f"""
        s_cmp_ge_u32 s2, 256
        s_cbranch_scc1 {name}_exit
        s_load_dwordx2 s[{sPm}:{sPm+1}], s[0:1], {KA['mem0']}
        s_load_dwordx2 s[{sPq}:{sPq+1}], s[0:1], {KA['Wq']}
        s_load_dwordx2 s[{sPk}:{sPk+1}], s[0:1], {KA['Wk']}
        s_load_dwordx2 s[{sPv}:{sPv+1}], s[0:1], {KA['Wv']}
        s_load_dwordx2 s[{sPo}:{sPo+1}], s[0:1], {KA['Wo']}
        s_load_dwordx2 s[4:5], s[0:1], {KA['dbg']}
        s_load_dwordx2 s[6:7], s[0:1], {KA['ws']}
        s_getreg_b32 s{sX}, hwreg(HW_REG_XCC_ID)
        s_and_b32 s{sX}, s{sX}, 7
        v_and_b32 v{vLane}, 63, v0
        v_lshrrev_b32 v{vT1}, 6, v0
        s_nop 0
        v_readfirstlane_b32 s{sW}, v{vT1}
        v_and_b32 v{vCol}, 15, v{vLane}
        v_lshrrev_b32 v{vG}, 4, v{vLane}
        v_lshlrev_b32 v{vL16}, 4, v{vLane}
        s_waitcnt lgkmcnt(0)
        s_mov_b32 s{sWS}, s6
        s_mov_b32 s{sWS+1}, s7
        s_mov_b32 s{sWS+2}, {WS_SIZE}
        s_mov_b32 s{sWS+3}, 0x20000
        s_mov_b32 s{sDBG}, s4
        s_mov_b32 s{sDBG+1}, s5
        s_mov_b32 s{sDBG+2}, 256
        s_mov_b32 s{sDBG+3}, 0x20000
        s_cmp_lg_u32 s{sW}, 0
        s_cbranch_scc1 {name}_tk
        v_mov_b32 v{vT1}, 1
        s_lshl_b32 s{sTmp}, s{sX}, 2
        v_mov_b32 v{vT2}, s{sTmp}
        s_mov_b64 s[{sExecSave}:{sExecSave+1}], exec
        s_mov_b64 exec, 1
        buffer_atomic_add v{vT1}, v{vT2}, s[{sDBG}:{sDBG+3}], 0 offen sc0
        s_waitcnt vmcnt(0)
        v_mov_b32 v{vT2}, 0
        ds_write_b32 v{vT2}, v{vT1}
        s_waitcnt lgkmcnt(0)
        s_mov_b64 exec, s[{sExecSave}:{sExecSave+1}]
        {name}_tk:
        s_barrier
        v_mov_b32 v{vT2}, 0
        ds_read_b32 v{vT1}, v{vT2}
        s_waitcnt lgkmcnt(0)
        s_nop 0
        v_readfirstlane_b32 s{sC}, v{vT1}
        s_nop 3
        s_barrier
        s_cmp_ge_u32 s{sC}, 16
        s_cbranch_scc1 {name}_exit
        s_lshr_b32 s{sHL}, s{sC}, 2
        s_and_b32 s{sJ}, s{sC}, 3
        """)

    if timing:
        A(f"s_memrealtime s[{sT0}:{sT0+1}]")
    A(f"""
    s_lshl_b32 s{sH}, s{sX}, 2
    s_add_u32 s{sH}, s{sH}, s{sHL}
    s_lshl_b32 s{sTmp}, s{sH}, 8
    s_lshl_b32 s{sTmp2}, s{sJ}, 6
    s_add_u32 s{sTmp}, s{sTmp}, s{sTmp2}
    s_lshl_b32 s{sTmp2}, s{sW}, 21
    s_add_u32 s{sTmp}, s{sTmp}, s{sTmp2}
    v_lshrrev_b32 v{vT1}, 2, v{vLane}
    v_lshlrev_b32 v{vT1}, 13, v{vT1}
    v_and_b32 v{vT2}, 3, v{vLane}
    v_lshlrev_b32 v{vT2}, 4, v{vT2}
    v_add3_u32 v{vT1}, v{vT1}, v{vT2}, s{sTmp}
    s_mov_b32 s{sT+2}, {1024*4096*2}
    s_mov_b32 s{sT+3}, 0x20000
    v_lshrrev_b32 v{vT2}, 2, v{vCol}
    v_lshl_add_u32 v{vT2}, v{vG}, 3, v{vT2}
    v_lshlrev_b32 v{vT2}, 6, v{vT2}
    v_and_b32 v{vT3}, 3, v{vCol}
    v_lshl_add_u32 v{vT2}, v{vT3}, 3, v{vT2}
    s_lshl_b32 s{sTmp2}, s{sW}, 15
    v_add_u32 v{vT2}, s{sTmp2}, v{vT2}
    """)
    def dma_w1(ptr, ldsoff):
        A(f"s_mov_b32 s{sT}, s{ptr}")
        A(f"s_mov_b32 s{sT+1}, s{ptr+1}")
        for n in range(16):
            A(f"""
            s_lshl_b32 s{sTmp2}, s{sW}, 15
            s_add_u32 m0, s{sTmp2}, {ldsoff + n*1024}
            s_mov_b32 s{sTmp}, {n*16*8192}
            buffer_load_dwordx4 v{vT1}, s[{sT}:{sT+3}], s{sTmp} offen lds
            """)
    def tr_w1(tile0, ldsoff):
        for tt in range(2):
            for ks in range(8):
                for hh in range(2):
                    off = ldsoff + (32*ks + 4*hh)*64 + tt*32
                    reg = aW1 + ((tile0+tt)*8 + ks)*4 + 2*hh
                    A(f"ds_read_b64_tr_b16 a[{reg}:{reg+1}], v{vT2} offset:{off}")
            A("s_waitcnt lgkmcnt(0)")
    dma_w1(sPq, 0)
    dma_w1(sPk, 16384)
    A("s_waitcnt vmcnt(0)")
    tr_w1(0, 0)
    tr_w1(2, 16384)
    dma_w1(sPv, 0)
    A(f"""
    s_lshl_b32 s{sTmp}, s{sX}, 2
    s_add_u32 s{sTmp}, s{sTmp}, s{sW}
    s_lshl_b32 s{sTmp}, s{sTmp}, 18
    s_lshl_b32 s{sTmp2}, s{sC}, 7
    s_add_u32 s{sTmp}, s{sTmp}, s{sTmp2}
    v_lshrrev_b32 v{vT3}, 3, v{vLane}
    v_lshlrev_b32 v{vT3}, 11, v{vT3}
    v_and_b32 v{vOffD}, 7, v{vLane}
    v_lshlrev_b32 v{vOffD}, 4, v{vOffD}
    v_add3_u32 v{vT3}, v{vT3}, v{vOffD}, s{sTmp}
    s_mov_b32 s{sT}, s{sPo}
    s_mov_b32 s{sT+1}, s{sPo+1}
    s_mov_b32 s{sT+2}, {4096*1024*2}
    """)
    for n in range(16):
        A(f"""
        s_lshl_b32 s{sTmp2}, s{sW}, 15
        s_add_u32 m0, s{sTmp2}, {16384 + n*1024}
        s_mov_b32 s{sTmp}, {n*8*2048}
        buffer_load_dwordx4 v{vT3}, s[{sT}:{sT+3}], s{sTmp} offen lds
        """)
    A("s_waitcnt vmcnt(0)")
    tr_w1(4, 0)
    A(f"""
    v_lshrrev_b32 v{vT2}, 2, v{vCol}
    v_lshl_add_u32 v{vT2}, v{vG}, 2, v{vT2}
    v_lshlrev_b32 v{vT2}, 7, v{vT2}
    v_and_b32 v{vT3}, 3, v{vCol}
    v_lshl_add_u32 v{vT2}, v{vT3}, 4, v{vT2}
    s_lshl_b32 s{sTmp2}, s{sW}, 15
    v_add_u32 v{vT2}, s{sTmp2}, v{vT2}
    """)
    for tn in range(4):
        for u in range(4):
            for hh in range(2):
                off = 16384 + (32*u + 16*hh)*128 + (tn & 1)*64 + (tn >> 1)*8
                reg = aWo + (tn*4+u)*4 + 2*hh
                A(f"ds_read_b64_tr_b16 a[{reg}:{reg+1}], v{vT2} offset:{off}")
        A("s_waitcnt lgkmcnt(0)")
    A(f"""
    v_and_b32 v{vT1}, 7, v{vCol}
    v_lshrrev_b32 v{vT2}, 3, v{vCol}
    v_lshlrev_b32 v{vT3}, 11, v{vT1}
    v_lshl_add_u32 v{vT3}, v{vT2}, 6, v{vT3}
    v_lshl_add_u32 v{vT3}, v{vG}, 4, v{vT3}
    s_lshl_b32 s{sTmp}, s{sW}, 9
    v_add_u32 v{vT3}, s{sTmp}, v{vT3}
    s_mov_b32 s{sT}, s{sPm}
    s_mov_b32 s{sT+1}, s{sPm+1}
    s_mov_b32 s{sT+2}, 16384
    """)
    for i in range(4):
        A(f"buffer_load_dwordx4 {v(vM+4*i,4)}, v{vT3}, s[{sT}:{sT+3}], 0 offen offset:{i*128}")
    A(f"""
    s_lshl_b32 s{sTmp}, s{sW}, 12
    v_add_u32 v{vOffD}, s{sTmp}, v{vL16}                 ; w*4096 + lane*16
    s_mul_i32 s{sTmp}, s{sW}, 6144
    v_add_u32 v{vOffAq}, s{sTmp}, v{vL16}                ; w*6144 + lane*16
    v_lshlrev_b32 v{vOffAv}, 3, v{vLane}
    s_add_u32 s{sTmp}, s{sTmp}, 4096
    v_add_u32 v{vOffAv}, s{sTmp}, v{vOffAv}              ; w*6144 + 4096 + lane*8
    s_mul_i32 s{sTmp}, s{sHL}, 6144
    s_cmp_eq_u32 s{sW}, 2
    s_cbranch_scc1 {name}_astv
    v_lshlrev_b32 v{vOffAst}, 4, v{vT1}
    v_lshl_add_u32 v{vOffAst}, v{vG}, 8, v{vOffAst}
    v_lshl_add_u32 v{vOffAst}, v{vT2}, 3, v{vOffAst}
    s_lshr_b32 s{sTmp2}, s{sJ}, 1
    s_lshl_b32 s{sTmp2}, s{sTmp2}, 10
    s_add_u32 s{sTmp}, s{sTmp}, s{sTmp2}
    s_and_b32 s{sTmp2}, s{sJ}, 1
    s_lshl_b32 s{sTmp2}, s{sTmp2}, 7
    s_add_u32 s{sTmp}, s{sTmp}, s{sTmp2}
    s_and_b32 s{sTmp2}, s{sW}, 1
    s_lshl_b32 s{sTmp2}, s{sTmp2}, 11
    s_add_u32 s{sTmp}, s{sTmp}, s{sTmp2}
    v_add_u32 v{vOffAst}, s{sTmp}, v{vOffAst}
    s_branch {name}_astd
    {name}_astv:
    v_lshlrev_b32 v{vOffAst}, 3, v{vLane}
    s_lshl_b32 s{sTmp2}, s{sJ}, 9
    s_add_u32 s{sTmp}, s{sTmp}, s{sTmp2}
    s_add_u32 s{sTmp}, s{sTmp}, 4096
    v_add_u32 v{vOffAst}, s{sTmp}, v{vOffAst}
    {name}_astd:
    s_and_b32 s{sTmp}, s{sW}, 1
    s_lshl_b32 s{sTmp2}, s{sTmp}, 10
    v_add_u32 v{vOffC}, s{sTmp2}, v{vL16}                ; p*1024 + lane*16
    s_lshl_b32 s{sTmp2}, s{sTmp}, 3
    s_lshl_b32 s{sTmp}, s{sC}, 10
    s_add_u32 s{sTmp}, s{sTmp}, s{sTmp2}
    v_add_u32 v{vOffDst}, s{sTmp}, v{vL16}               ; c*1024 + lane*16 + 8p
    s_lshl_b32 s{sTmp}, s{sX}, 2
    s_add_u32 s{sTmp}, s{sTmp}, s{sW}
    s_lshl_b32 s{sOffKVM}, s{sTmp}, 12
    s_add_u32 s{sOffKVM}, s{sOffKVM}, {WS['KVM']}
    s_lshl_b32 s{sTmp}, s{sTmp}, 13                      ; head*8192
    s_add_u32 s{sOffKx}, s{sTmp}, {WS['K']}
    s_add_u32 s{sOffKx1}, s{sOffKx}, 4096
    s_add_u32 s{sOffVx}, s{sTmp}, {WS['VT']}
    s_add_u32 s{sOffVx1}, s{sOffVx}, 4096
    s_mul_i32 s{sBaseA}, s{sX}, 24576
    s_add_u32 s{sBaseA}, s{sBaseA}, {WS['RA']}
    s_lshl_b32 s{sBaseD}, s{sX}, 14
    s_add_u32 s{sBaseD}, s{sBaseD}, {WS['RD']}
    s_lshl_b32 s{sBaseC}, s{sC}, 14
    s_add_u32 s{sBaseC}, s{sBaseC}, {WS['RC']}
    s_lshl_b32 s{sBaseCo}, s{sX}, 11
    s_add_u32 s{sBaseCo}, s{sBaseCo}, s{sBaseC}
    s_mul_i32 s{sTmp}, s{sW}, 3072
    v_add_u32 v{vLds1w}, s{sTmp}, v{vL16}
    s_lshl_b32 s{sTmp}, s{sW}, 10
    v_add_u32 v{vLds1r}, s{sTmp}, v{vL16}
    s_lshl_b32 s{sTmp}, s{sW}, 11
    s_add_u32 s{sTmp}, s{sTmp}, {LDS_P3}
    v_add_u32 v{vLds3w}, s{sTmp}, v{vL16}
    s_and_b32 s{sTmp}, s{sW}, 1
    s_lshl_b32 s{sTmp}, s{sTmp}, 10
    s_add_u32 s{sTmp}, s{sTmp}, {LDS_P3}
    v_add_u32 v{vLds3r}, s{sTmp}, v{vL16}
    v_mov_b32 v{vSent}, -1
    v_mov_b32 v{vSent+1}, -1
    v_mov_b32 v{vSent+2}, -1
    v_mov_b32 v{vSent+3}, -1
    s_mov_b32 s{sBud}, {SENT_BUDGET}
    s_mov_b32 s{sStep}, 0
    """)
    cexp = struct.unpack('<I', struct.pack('<f', (128 ** -0.5) * math.log2(math.e)))[0]
    A(f"s_mov_b32 s{sCexp}, {hex(cexp)}")
    A("s_barrier")
    def kx_loads():
        return [f"buffer_load_dwordx4 {v(vKx + (t*4+ks)*4, 4)}, v{vL16}, {ws}, s{sOffKx if t == 0 else sOffKx1} offen offset:{ks*1024}{kvf}" for t in range(2) for ks in range(4)]
    def vx_loads():
        return [f"buffer_load_dwordx4 {v(vVx + t*4, 4)}, v{vL16}, {ws}, s{sOffVx if t < 4 else sOffVx1} offen offset:{(t%4)*1024}{kvf}" for t in range(8)]
    if embedded:
        A(f"""
        v_mov_b32 v{vZero}, 0
        s_lshl_b32 s{sFlg}, s{sX}, 11
        s_add_u32 s{sFlg}, s{sFlg}, {FL_KVRDY}
        s_lshl_b32 s{sKvmF}, s{sX}, 12
        s_add_u32 s{sKvmF}, s{sKvmF}, {FL_KVM}
        {name}_w0:
        buffer_load_dword v{vFlag}, v{vZero}, {ws}, s{sFlg} offen sc1
        s_waitcnt vmcnt(0)
        v_readfirstlane_b32 s{sTmp}, v{vFlag}
        s_cmp_ge_u32 s{sTmp}, 8
        s_cbranch_scc1 {name}_w0ok
        s_sub_u32 s{sBud}, s{sBud}, 1
        s_cbranch_scc1 {name}_exit
        s_sleep 2
        s_branch {name}_w0
        {name}_w0ok:
        """)
    for l in kx_loads() + vx_loads(): A(l)
    if timing:
        for i in range(8): A(f"s_mov_b32 s{80+i}, 0")
        for i in range(92,95): A(f"s_mov_b32 s{i}, 0")
        for i in range(16): A(f"s_mov_b32 s{64+i}, 0")
    A("s_waitcnt vmcnt(0)")
    for i in range(4):
        A(f"v_min_u32 v{vM+4*i}, -2, v{vM+4*i}")
        A(f"v_min_u32 v{vM+4*i+2}, -2, v{vM+4*i+2}")
    A(f"s_mov_b32 s{sOffD}, s{sBaseD}")
    A(f"s_branch {name}_p1")

    spin_blocks = []
    def spin_site(lbl, j, loads_from_j, chk_regs, cnt=None):
        def chk():
            out = []
            if len(chk_regs) == 2:
                out.append(f"v_max_u32 v{vT1}, v{chk_regs[0]}, v{chk_regs[1]}")
                out.append(f"v_cmp_eq_u32 vcc, -1, v{vT1}")
            elif len(chk_regs) == 1:
                out.append(f"v_cmp_eq_u32 vcc, -1, v{chk_regs[0]}")
            else:
                rs = list(chk_regs)
                out.append(f"v_max3_u32 v{vT1}, v{rs[0]}, v{rs[1]}, v{rs[2]}"); i = 3
                while i < len(rs):
                    if i + 1 < len(rs):
                        out.append(f"v_max3_u32 v{vT1}, v{vT1}, v{rs[i]}, v{rs[i+1]}"); i += 2
                    else:
                        out.append(f"v_max_u32 v{vT1}, v{vT1}, v{rs[i]}"); i += 1
                out.append(f"v_cmp_eq_u32 vcc, -1, v{vT1}")
            return out
        for x in chk(): A(x)
        A(f"s_cbranch_vccnz {lbl}_s{j}")
        A.label(f"{lbl}_k{j}")
        blk = [f"{lbl}_s{j}:"]
        blk += list(loads_from_j)
        if timing and cnt is not None: blk.append(f"s_add_u32 s{cnt}, s{cnt}, 1")
        blk.append(f"s_sub_u32 s{sBud}, s{sBud}, 1")
        sid = {'pD': 1, 'pA': 2, 'pV': 3, 'pC': 4}[lbl.split('_')[-1]]
        blk.append(f"s_movk_i32 s{sMask}, {sid*16 + j}")
        blk.append(f"s_cbranch_scc1 {name}_fail")
        blk.append("s_waitcnt vmcnt(0)")
        blk += chk()
        blk.append(f"s_cbranch_vccnz {lbl}_s{j}")
        blk.append(f"s_branch {lbl}_k{j}")
        spin_blocks.append(blk)

    def stamp(i):
        if timing: A(f"s_memrealtime s[{sSt+2*i}:{sSt+2*i+1}]")
    def stamp_acc(n):
        if timing:
            A("s_waitcnt lgkmcnt(0)")
            lb = A.newlabel('sk')
            A(f"s_cmp_lg_u32 s{sStep}, {stamp_step}")
            A(f"s_cbranch_scc1 {lb}")
            for i in range(n):
                A(f"s_mov_b32 s{80+i}, s{sSt+2*i}")
            A.label(lb)

    kvm_copy = f"""
    s_and_b32 s{sTmp}, s{sStep}, 15
    s_cmp_lg_u32 s{sTmp}, s{sC}
    s_cbranch_scc1 {name}_nokvmXX
    s_lshl_b32 s{sTmp}, s{sStep}, 17
    s_add_u32 s{sTmp}, s{sTmp}, s{sOffKVM}
    s_add_u32 s{sTmp2}, s{sTmp}, 2048
    v_lshlrev_b32 v{vT2}, 3, v{vLane}
    buffer_store_dwordx4 {v(vK,4)}, v{vL16}, {ws}, s{sTmp} offen offset:0{kvf}
    buffer_store_dwordx4 {v(vK+4,4)}, v{vL16}, {ws}, s{sTmp} offen offset:1024{kvf}
    buffer_store_dwordx2 {v(vVm,2)}, v{vT2}, {ws}, s{sTmp2} offen offset:0{kvf}
    buffer_store_dwordx2 {v(vVm+2,2)}, v{vT2}, {ws}, s{sTmp2} offen offset:512{kvf}
    buffer_store_dwordx2 {v(vVm+4,2)}, v{vT2}, {ws}, s{sTmp2} offen offset:1024{kvf}
    buffer_store_dwordx2 {v(vVm+6,2)}, v{vT2}, {ws}, s{sTmp2} offen offset:1536{kvf}
    {name}_nokvmXX:
    """
    def kvchk(tag):
        if not embedded: return
        A(f"""
        {name}_kvchk{tag}:
        v_readfirstlane_b32 s{sTmp}, v{vFlag}
        s_cmp_ge_u32 s{sTmp}, 8
        s_cbranch_scc1 {name}_kvok{tag}
        s_add_u32 s{sTmp}, s{sStep}, 1
        s_lshr_b32 s{sTmp}, s{sTmp}, 2
        s_lshl_b32 s{sTmp}, s{sTmp}, 7
        s_add_u32 s{sTmp}, s{sTmp}, s{sFlg}
        buffer_load_dword v{vFlag}, v{vZero}, {ws}, s{sTmp} offen sc1
        s_sub_u32 s{sBud}, s{sBud}, 1
        s_cbranch_scc1 {name}_exit
        s_waitcnt vmcnt(0)
        s_branch {name}_kvchk{tag}
        {name}_kvok{tag}:
        """)
    dl = [f"buffer_load_dwordx4 {v(vM+4*i,4)}, v{vOffD}, {ws}, s{sOffD} offen offset:{i*1024} {ldf}" for i in range(4)]
    def p1m(t, i, rot):
        odd_tile = t & 1
        ks = 2*i + ((0 if not rot else 1) if not odd_tile else (1 if not rot else 0))
        src = v((vRM if rot else vM) + 4*i, 4)
        first = (i == 0 and not rot)
        c = '0' if first else v(acc(t), 4)
        if t < 4: return f"v_mfma_f32_16x16x32_bf16 {v(acc(t),4)}, {W1(t,ks)}, {src}, {c}"
        else:     return f"v_mfma_f32_16x16x32_bf16 {v(acc(t),4)}, {src}, {W1(t,ks)}, {c}"
    sal = f"""
    s_and_b32 s{sTmp}, s{sStep}, 3
    s_mul_i32 s{sTmp}, s{sTmp}, {8*24576}
    s_add_u32 s{sOffA}, s{sTmp}, s{sBaseA}
    s_add_u32 s{sTmp}, s{sStep}, 3
    s_and_b32 s{sTmp}, s{sTmp}, 3
    s_mul_i32 s{sOffAr}, s{sTmp}, {8*24576}
    s_add_u32 s{sOffAr}, s{sOffAr}, s{sBaseA}
    s_lshl_b32 s{sOffDr}, s{sTmp}, 17
    s_add_u32 s{sOffDr}, s{sOffDr}, s{sBaseD}
    s_add_u32 s{sTmp}, s{sStep}, 2
    s_and_b32 s{sTmp}, s{sTmp}, 3
    s_lshl_b32 s{sOffCr}, s{sTmp}, 18
    s_add_u32 s{sOffCr}, s{sOffCr}, s{sBaseCo}
    s_and_b32 s{sTmp}, s{sStep}, 3
    s_lshl_b32 s{sTmp}, s{sTmp}, 18
    s_add_u32 s{sOffC}, s{sTmp}, s{sBaseC}
    s_add_u32 s{sCst}, s{sTmp}, s{sBaseCo}
    s_add_u32 s{sC1}, s{sOffC}, 4096
    s_add_u32 s{sC2}, s{sOffC}, 8192
    s_add_u32 s{sC3}, s{sOffC}, 12288
    s_add_u32 s{sTmp}, s{sStep}, 1
    s_and_b32 s{sTmp}, s{sTmp}, 3
    s_lshl_b32 s{sTmp}, s{sTmp}, 17
    s_add_u32 s{sOffDn}, s{sTmp}, s{sBaseD}
    v_mov_b32 v{vSM}, 0xff800000
    v_mov_b32 v{vSM+1}, 0xff800000
    v_mov_b32 v{vSM+2}, 0xff800000
    v_mov_b32 v{vSM+3}, 0xff800000
    v_mov_b32 v{vPMh}, 0
    v_mov_b32 v{vPMh+1}, 0
    """.strip().split('\n')
    sal = [x.strip() for x in sal]

    A.label(f"{name}_loop")
    stamp_acc(8)
    stamp(0)
    A(f"s_mov_b32 s{sOffD}, s{sOffDn}")
    if ddelay: A(f"s_sleep {ddelay}")
    for l in dl: A(l)
    A.label(f"{name}_p1")
    for x in sal: A(x)
    for i in range(4):
        A(f"s_waitcnt vmcnt({3-i})")
        spin_site(f"{name}_pD", i, dl[i:], [vM+4*i, vM+4*i+2], 92)
        if i == 3: stamp(1)
        rot = [f"v_mov_b32_dpp v{vRM+4*i+j}, v{vM+4*i+j} row_ror:8 row_mask:0xf bank_mask:0xf" for j in range(4)]
        interleave(A, [p1m(t, i, False) for t in range(4)], rot)
        A.nop(2)
        for t in range(4): A(p1m(t, i, True))
    vm_list = [p1m(t, i, r) for i in range(4) for r in (False, True) for t in (4, 5)]
    A(vm_list[0]); A(vm_list[1])
    A.nop(4)
    for pair in range(2):
        for r in range(4):
            A(f"v_mov_b32_dpp v{acc(2*pair)+r}, v{acc(2*pair+1)+r} quad_perm:[0,1,2,3] row_mask:0xf bank_mask:0xc")
    for p in range(2):
        A(f"ds_write_b128 v{vLds1w}, {v(acc(2*p),4)} offset:{LDS_P1 + p*1024}")
    A(vm_list[2]); A(vm_list[3])
    A("s_waitcnt lgkmcnt(0)")
    A("s_barrier")
    A(f"""
    s_cmp_ge_u32 s{sW}, 2
    s_cbranch_scc1 {name}_skipA
    """)
    for w in range(4):
        A(f"ds_read_b128 {v(vRd+4*w,4)}, v{vLds1r} offset:{LDS_P1 + w*3072}")
    A(vm_list[4]); A(vm_list[5]); A(vm_list[6]); A(vm_list[7])
    A("s_waitcnt lgkmcnt(0)")
    for r in range(4):
        A(f"v_add_f32 v{vRd+r}, v{vRd+r}, v{vRd+4+r}")
        A(f"v_add_f32 v{vRd+8+r}, v{vRd+8+r}, v{vRd+12+r}")
    for r in range(4):
        A(f"v_add_f32 v{vRd+r}, v{vRd+r}, v{vRd+8+r}")
    A(f"""
    v_cvt_pk_bf16_f32 v{vRd+4}, v{vRd}, v{vRd+1}
    v_cvt_pk_bf16_f32 v{vRd+5}, v{vRd+2}, v{vRd+3}
    s_nop 0
    v_min_u32 v{vRd+4}, -2, v{vRd+4}
    v_min_u32 v{vRd+5}, -2, v{vRd+5}
    buffer_store_dwordx2 {v(vRd+4,2)}, v{vOffAst}, {ws}, s{sOffA} offen{intra}
    """)
    stamp(2)
    for x in vm_list[8:]: A(x)
    A(f"s_branch {name}_vdone")
    A.label(f"{name}_skipA")
    stamp(2)
    for x in vm_list[4:]: A(x)
    A.label(f"{name}_vdone")
    A.nop(8)
    for r in range(4):
        A(f"v_mov_b32_dpp v{acc(4)+r}, v{acc(5)+r} quad_perm:[0,1,2,3] row_mask:0xc bank_mask:0xf")
    A(f"ds_write_b128 v{vLds1w}, {v(acc(4),4)} offset:{LDS_P1 + 2048}")
    ql = [f"buffer_load_dwordx4 {v(vQ+4*i,4)}, v{vOffAq}, {ws}, s{sOffA} offen offset:{i*1024} {ldf}" for i in range(2)]
    kl = [f"buffer_load_dwordx4 {v(vK+4*i,4)}, v{vOffAq}, {ws}, s{sOffA} offen offset:{2048+i*1024} {ldf}" for i in range(2)]
    vl = [f"buffer_load_dwordx2 {v(vVm+2*i,2)}, v{vOffAv}, {ws}, s{sOffA} offen offset:{i*512} {ldf}" for i in range(4)]
    for l in ql + kl: A(l)
    A("s_waitcnt lgkmcnt(0)")
    A("s_barrier")
    A(f"""
    s_cmp_lg_u32 s{sW}, 2
    s_cbranch_scc1 {name}_skipV
    """)
    for w in range(4):
        A(f"ds_read_b128 {v(vRd+4*w,4)}, v{vLds1r} offset:{LDS_P1 + w*3072}")
    A("s_waitcnt lgkmcnt(0)")
    for r in range(4):
        A(f"v_add_f32 v{vRd+r}, v{vRd+r}, v{vRd+4+r}")
        A(f"v_add_f32 v{vRd+8+r}, v{vRd+8+r}, v{vRd+12+r}")
    for r in range(4):
        A(f"v_add_f32 v{vRd+r}, v{vRd+r}, v{vRd+8+r}")
    A(f"""
    v_cvt_pk_bf16_f32 v{vRd+4}, v{vRd}, v{vRd+1}
    v_cvt_pk_bf16_f32 v{vRd+5}, v{vRd+2}, v{vRd+3}
    s_nop 0
    v_min_u32 v{vRd+4}, -2, v{vRd+4}
    v_min_u32 v{vRd+5}, -2, v{vRd+5}
    buffer_store_dwordx2 {v(vRd+4,2)}, v{vOffAst}, {ws}, s{sOffA} offen{intra}
    s_waitcnt vmcnt(1)
    s_branch {name}_skipV2
    {name}_skipV:
    s_waitcnt vmcnt(0)
    {name}_skipV2:
    """)
    spin_site(f"{name}_pA", 0, ql + kl, [vQ, vQ+2, vQ+4, vQ+6, vK, vK+2, vK+4, vK+6], 93)
    stamp(3)
    for l in vl: A(l)
    if embedded:
        A(f"""
        s_add_u32 s{sTmp}, s{sStep}, 1
        s_lshr_b32 s{sTmp}, s{sTmp}, 2
        s_lshl_b32 s{sTmp}, s{sTmp}, 7
        s_add_u32 s{sTmp}, s{sTmp}, s{sFlg}
        buffer_load_dword v{vFlag}, v{vZero}, {ws}, s{sTmp} offen sc1
        s_sub_u32 s{sTmp}, s{sStep}, 1
        s_and_b32 s{sTmp2}, s{sTmp}, 15
        s_cmp_lg_u32 s{sTmp2}, s{sC}
        s_cbranch_scc1 {name}_nopub
        s_cmp_eq_u32 s{sStep}, 0
        s_cbranch_scc1 {name}_nopub
        s_lshl_b32 s{sTmp}, s{sTmp}, 6
        s_add_u32 s{sTmp}, s{sTmp}, s{sKvmF}
        v_mov_b32 v{vT2}, 1
        s_mov_b64 exec, 1
        buffer_atomic_add v{vT2}, v{vZero}, {ws}, s{sTmp} offen
        s_mov_b64 exec, -1
        {name}_nopub:
        """)
    A(f"""
    s_cmp_eq_u32 s{sStep}, {nsteps-1}
    s_cbranch_scc1 {name}_last
    """)
    def sm(kind, i):
        if kind == 'm':
            c = '0' if i == 0 else v(vSm,4)
            return f"v_mfma_f32_16x16x32_bf16 {v(vSm,4)}, {v(vK+4*i,4)}, {v(vQ+4*i,4)}, {c}"
        t, rot = kind
        d = vS1 if t == 0 else vS2
        ks = 2*i + ((1 if rot else 0) if t == 0 else (0 if rot else 1))
        src = v((vRQ if rot else vQ) + 4*i, 4)
        c = '0' if (i == 0 and not rot) else v(d,4)
        return f"v_mfma_f32_16x16x32_bf16 {v(d,4)}, {v(vKx+(t*4+ks)*4,4)}, {src}, {c}"
    mainl = [sm('m',0), sm('m',1), sm((0,False),0), sm((1,False),0), sm((0,False),1), sm((1,False),1)]
    fill = [f"v_mov_b32_dpp v{vRQ+j}, v{vQ+j} row_ror:8 row_mask:0xf bank_mask:0xf" for j in range(8)]
    interleave(A, mainl, fill)
    A.nop(1)
    mainl = [sm((0,True),0), sm((1,True),0), sm((0,True),1), sm((1,True),1)]
    fill = [f"v_permlane32_swap_b32 v{vSm+r}, v{vTT+r}" for r in range(4)]
    interleave(A, mainl, fill)
    A(f"""
    s_add_u32 s{sOffKx}, s{sOffKx}, {1<<18}
    s_add_u32 s{sOffKx1}, s{sOffKx1}, {1<<18}
    s_add_u32 s{sOffVx}, s{sOffVx}, {1<<18}
    s_add_u32 s{sOffVx1}, s{sOffVx1}, {1<<18}
    """)
    for r in range(4):
        A(f"v_add_f32_dpp v{vSM+r}, v{vTT+r}, v{vSm+r} row_ror:8 row_mask:0x3 bank_mask:0x3")
    A(f"""
    v_max3_f32 v{vMax}, v{vSM}, v{vSM+1}, v{vSM+2}
    v_max_f32 v{vMax}, v{vMax}, v{vSM+3}
    s_nop 1
    """)
    for r in range(4):
        A(f"v_mov_b32_dpp v{vS1+r}, v{vS2+r} quad_perm:[0,1,2,3] row_mask:0xf bank_mask:0xc")
    vSX = vS1
    A(f"""
    v_max3_f32 v{vMax}, v{vMax}, v{vSX}, v{vSX+1}
    v_max3_f32 v{vMax}, v{vMax}, v{vSX+2}, v{vSX+3}
    s_nop 1
    v_max_f32_dpp v{vMx2}, v{vMax}, v{vMax} row_ror:8 row_mask:0xf bank_mask:0xf
    v_max_f32_dpp v{vMax}, v{vMax}, v{vMax} row_ror:8 row_mask:0xf bank_mask:0xf
    s_nop 1
    v_permlane16_swap_b32 v{vMax}, v{vMx2}
    s_nop 0
    v_max_f32 v{vSu2}, v{vMax}, v{vMx2}
    v_max_f32 v{vMax}, v{vMax}, v{vMx2}
    s_nop 1
    v_permlane32_swap_b32 v{vMax}, v{vSu2}
    s_nop 0
    v_max_f32 v{vMax}, v{vMax}, v{vSu2}
    v_mul_f32 v{vMax}, s{sCexp}, v{vMax}
    """)
    for r in range(4):
        A(f"v_fma_f32 v{vSX+r}, v{vSX+r}, s{sCexp}, -v{vMax}")
    for r in range(4):
        A(f"v_exp_f32 v{vSX+r}, v{vSX+r}")
    for r in range(4):
        A(f"v_fma_f32 v{vSM+r}, v{vSM+r}, s{sCexp}, -v{vMax}")
    A(f"""
    v_cvt_pk_bf16_f32 v{vBX}, v{vSX}, v{vSX+1}
    v_cvt_pk_bf16_f32 v{vBX+1}, v{vSX+2}, v{vSX+3}
    v_exp_f32 v{vSM}, v{vSM}
    v_exp_f32 v{vSM+1}, v{vSM+1}
    v_mov_b32_dpp v{vBX+2}, v{vBX} row_ror:8 row_mask:0xf bank_mask:0xf
    v_mov_b32_dpp v{vBX+3}, v{vBX+1} row_ror:8 row_mask:0xf bank_mask:0xf
    v_exp_f32 v{vSM+2}, v{vSM+2}
    v_exp_f32 v{vSM+3}, v{vSM+3}
    """)
    stamp(4)
    def pvx(t): return f"v_mfma_f32_16x16x32_bf16 {v(vO+4*t,4)}, {v(vVx+4*t,4)}, {v(vBX,4)}, 0"
    def pvm(t):
        b = vPM if t % 2 == 0 else vPMh
        return f"v_mfma_f32_16x16x16_bf16 {v(vO+4*t,4)}, {v(vVm+2*(t//2),2)}, {v(b,2)}, {v(vO+4*t,4)}"
    A(pvx(0))
    A(f"v_cvt_pk_bf16_f32 v{vPM}, v{vSM}, v{vSM+1}")
    A(f"v_cvt_pk_bf16_f32 v{vPMc}, v{vSM}, v{vSM+1}")
    A(pvx(1))
    A(f"v_cvt_pk_bf16_f32 v{vPM+1}, v{vSM+2}, v{vSM+3}")
    A(f"v_cvt_pk_bf16_f32 v{vPMc+1}, v{vSM+2}, v{vSM+3}")
    A(pvx(2))
    A(f"v_add_f32 v{vSum}, v{vSX}, v{vSX+1}")
    A(f"v_permlane32_swap_b32 v{vPMh}, v{vPMc}")
    A(pvx(3))
    A(f"v_add_f32 v{vSu2}, v{vSX+2}, v{vSX+3}")
    A(f"v_permlane32_swap_b32 v{vPMh+1}, v{vPMc+1}")
    A("s_waitcnt vmcnt(0)")
    spin_site(f"{name}_pV", 0, vl, [vVm, vVm+2, vVm+4, vVm+6], 93)
    if kvpos != 'late': kvchk('a')
    cv = []
    for u in range(4):
        c4 = []
        for hh in range(2):
            t = 2*u + hh
            c4.append(f"v_cvt_pk_bf16_f32 v{vOB+4*u+2*hh}, v{vO+4*t}, v{vO+4*t+1}")
            c4.append(f"v_cvt_pk_bf16_f32 v{vOB+4*u+2*hh+1}, v{vO+4*t+2}, v{vO+4*t+3}")
        cv.append(c4)
    def p3(tn, u): return f"v_mfma_f32_16x16x32_bf16 {v(vE+4*tn,4)}, {Wo(tn,u)}, {v(vOB+4*u,4)}, {'0' if u == 0 else v(vE+4*tn,4)}"
    kxl = kx_loads(); vxl = vx_loads()
    sums = [f"v_add_f32 v{vMx2}, v{vSM}, v{vSM+1}",
            f"v_add_f32 v{vSum}, v{vSum}, v{vSu2}",
            f"v_add_f32 v{vSu2}, v{vSM+2}, v{vSM+3}",
            f"v_add_f32 v{vSum}, v{vSum}, v{vMx2}",
            f"v_add_f32 v{vSum}, v{vSum}, v{vSu2}"]
    seq = [pvm(0), sums[0], pvm(1), sums[1], pvm(2), sums[2], pvm(3), sums[3],
           pvx(4), sums[4], pvx(5), kxl[0], pvm(4),
           f"v_add_f32_dpp v{vMx2}, v{vSum}, v{vSum} row_ror:8 row_mask:0xf bank_mask:0xf",
           pvm(5),
           f"v_add_f32_dpp v{vSum}, v{vSum}, v{vSum} row_ror:8 row_mask:0xf bank_mask:0xf",
           pvx(6), cv[0][0], cv[0][1], pvx(7), cv[0][2], cv[0][3], pvm(6),
           f"v_permlane16_swap_b32 v{vSum}, v{vMx2}", kxl[1], pvm(7), cv[1][0], cv[1][1],
           p3(0,0), cv[1][2], cv[1][3], p3(1,0), f"v_add_f32 v{vSu2}, v{vSum}, v{vMx2}", kxl[2], p3(2,0), f"v_add_f32 v{vSum}, v{vSum}, v{vMx2}", kxl[3], p3(3,0),
           kxl[4],
           p3(0,1), cv[2][0], cv[2][1], p3(1,1), cv[2][2], cv[2][3], p3(2,1), f"v_permlane32_swap_b32 v{vSum}, v{vSu2}", kxl[5], p3(3,1),
           cv[3][0], cv[3][1],
           p3(0,2), cv[3][2], cv[3][3], p3(1,2), f"v_add_f32 v{vSum}, v{vSum}, v{vSu2}", kxl[6], p3(2,2), kxl[7], vxl[0], p3(3,2),
           f"v_rcp_f32 v{vSum}, v{vSum}", vxl[1],
           p3(0,3), vxl[2], vxl[3], p3(1,3), vxl[4], vxl[5], p3(2,3), vxl[6], vxl[7], p3(3,3)]
    if kvpos == 'late':
        seq = [x for x in seq if x not in kxl and x not in vxl]
    for x in seq: A(x)
    A(f"""
    s_cmp_eq_u32 s{sW}, 3
    s_cbranch_scc1 {name}_rs3
    buffer_store_dwordx2 {v(vSent,2)}, v{vOffAst}, {ws}, s{sOffAr} offen{intra}
    {name}_rs3:
    """)
    A.nop(4)
    for r in range(4):
        A(f"v_mov_b32_dpp v{vE+r}, v{vE+4+r} row_ror:8 row_mask:0xf bank_mask:0xc")
    A(f"v_pk_mul_f32 {v(vE,2)}, {v(vE,2)}, {v(vSumP,2)}") if False else None
    for r in range(4):
        A(f"v_mul_f32 v{vE+r}, v{vE+r}, v{vSum}")
    for r in range(4):
        A(f"v_mov_b32_dpp v{vE+8+r}, v{vE+12+r} row_ror:8 row_mask:0xf bank_mask:0xc")
    A(f"ds_write_b128 v{vLds3w}, {v(vE,4)} offset:0")
    for r in range(4):
        A(f"v_mul_f32 v{vE+8+r}, v{vE+8+r}, v{vSum}")
    A(f"ds_write_b128 v{vLds3w}, {v(vE+8,4)} offset:1024")
    A("s_waitcnt lgkmcnt(0)")
    A("s_barrier")
    stamp(5); stamp(6); stamp(7)
    A(f"""
    s_cmp_ge_u32 s{sW}, 2
    s_cbranch_scc1 {name}_cpoll
    """)
    for w in range(4):
        A(f"ds_read_b128 {v(vRd+4*w,4)}, v{vLds3r} offset:{w*2048}")
    A("s_waitcnt lgkmcnt(0)")
    for r in range(4):
        A(f"v_add_f32 v{vRd+r}, v{vRd+r}, v{vRd+4+r}")
        A(f"v_add_f32 v{vRd+8+r}, v{vRd+8+r}, v{vRd+12+r}")
    for r in range(4):
        A(f"v_add_f32 v{vRd+r}, v{vRd+r}, v{vRd+8+r}")
    for r in range(4):
        A(f"v_min_u32 v{vRd+r}, -2, v{vRd+r}")
    A(f"buffer_store_dwordx4 {v(vRd,4)}, v{vOffC}, {ws}, s{sCst} offen sc1")
    stamp(6); stamp(7)
    A(f"buffer_store_dwordx4 {v(vSent,4)}, v{vOffC}, {ws}, s{sOffCr} offen sc1")
    if kvpos == 'late':
        kvchk('b')
        for l in kxl + vxl: A(l)
    A(kvm_copy.replace('XX', '1'))
    A(f"s_add_u32 s{sStep}, s{sStep}, 1")
    A(f"s_branch {name}_b3")
    A.label(f"{name}_cpoll")
    if kvpos == 'late':
        kvchk('c')
        for l in kxl + vxl: A(l)
    A(f"buffer_store_dwordx2 {v(vSent,2)}, v{vOffDst}, {ws}, s{sOffDr} offen{intra}")
    A(kvm_copy.replace('XX', '3'))
    A(f"s_add_u32 s{sStep}, s{sStep}, 1")
    if cdelay: A(f"s_sleep {cdelay}")
    stamp(6)
    cl = []
    for y in range(8):
        so = [sOffC, sC1, sC2, sC3][y//2]
        cl.append(f"buffer_load_dwordx4 {v(vRd+4*y,4)}, v{vOffC}, {ws}, s{so} offen offset:{(y%2)*2048} sc1")
    for l in cl: A(l)
    A("s_waitcnt vmcnt(0)")
    spin_site(f"{name}_pC", 0, cl, [vRd+4*y for y in range(8)], 94)
    for r in range(4):
        A(f"v_add_f32 v{vRd+r}, v{vRd+r}, v{vRd+4+r}")
        A(f"v_add_f32 v{vRd+8+r}, v{vRd+8+r}, v{vRd+12+r}")
        A(f"v_add_f32 v{vRd+16+r}, v{vRd+16+r}, v{vRd+20+r}")
        A(f"v_add_f32 v{vRd+24+r}, v{vRd+24+r}, v{vRd+28+r}")
    for r in range(4):
        A(f"v_add_f32 v{vRd+r}, v{vRd+r}, v{vRd+8+r}")
        A(f"v_add_f32 v{vRd+16+r}, v{vRd+16+r}, v{vRd+24+r}")
    for r in range(4):
        A(f"v_add_f32 v{vRd+r}, v{vRd+r}, v{vRd+16+r}")
    A(f"""
    v_cvt_pk_bf16_f32 v{vRd+4}, v{vRd}, v{vRd+1}
    v_cvt_pk_bf16_f32 v{vRd+5}, v{vRd+2}, v{vRd+3}
    s_nop 0
    v_min_u32 v{vRd+4}, -2, v{vRd+4}
    v_min_u32 v{vRd+5}, -2, v{vRd+5}
    buffer_store_dwordx2 {v(vRd+4,2)}, v{vOffDst}, {ws}, s{sOffDn} offen{intra}
    """)
    stamp(7)
    A(f"""
    {name}_b3:
    s_barrier
    s_branch {name}_loop
    """)
    for blk in spin_blocks:
        for x in blk: A(x)
    A.label(f"{name}_last")
    A.label(f"{name}_lastspin")
    for l in vl: A(l)
    A("s_waitcnt vmcnt(0)")
    A(f"v_max3_u32 v{vT1}, v{vVm}, v{vVm+2}, v{vVm+4}")
    A(f"v_max_u32 v{vT1}, v{vT1}, v{vVm+6}")
    A(f"v_cmp_eq_u32 vcc, -1, v{vT1}")
    A(f"s_cbranch_vccz {name}_lastok")
    A(f"s_sub_u32 s{sBud}, s{sBud}, 1")
    A(f"s_cbranch_scc1 {name}_exit")
    A(f"s_branch {name}_lastspin")
    A.label(f"{name}_lastok")
    A(kvm_copy.replace('XX', '2'))
    if embedded:
        A(f"""
        s_and_b32 s{sTmp}, s{sStep}, 15
        s_cmp_lg_u32 s{sTmp}, s{sC}
        s_cbranch_scc1 {name}_done
        s_waitcnt vmcnt(0)
        s_lshl_b32 s{sTmp}, s{sStep}, 6
        s_add_u32 s{sTmp}, s{sTmp}, s{sKvmF}
        v_mov_b32 v{vT2}, 1
        s_mov_b64 exec, 1
        buffer_atomic_add v{vT2}, v{vZero}, {ws}, s{sTmp} offen
        s_mov_b64 exec, -1
        """)
    A.label(f"{name}_done")
    if timing:
        A(f"""
        s_memrealtime s[{sT0+2}:{sT0+3}]
        s_waitcnt lgkmcnt(0)
        s_sub_u32 s{sTmp}, s{sT0+2}, s{sT0}
        v_mov_b32 v{vT1}, s{sTmp}
        s_lshl_b32 s{sTmp2}, s{sX}, 2
        s_add_u32 s{sTmp2}, s{sTmp2}, 64
        v_mov_b32 v{vT2}, s{sTmp2}
        buffer_store_dword v{vT1}, v{vT2}, s[{sDBG}:{sDBG+3}], 0 offen
        v_mov_b32 v{vT1}, s{sBud}
        v_add_u32 v{vT2}, 32, v{vT2}
        buffer_store_dword v{vT1}, v{vT2}, s[{sDBG}:{sDBG+3}], 0 offen
        s_lshl_b32 s{sTmp}, s{sX}, 4
        s_add_u32 s{sTmp}, s{sTmp}, s{sC}
        s_lshl_b32 s{sTmp}, s{sTmp}, 2
        s_add_u32 s{sTmp}, s{sTmp}, s{sW}
        s_lshl_b32 s{sTmp}, s{sTmp}, 6
        s_add_u32 s{sTmp}, s{sTmp}, {WS['END']}
        """)
        for i in range(11):
            A(f"v_mov_b32 v{vT1}, s{80+i if i < 8 else 92+i-8}")
            A(f"v_mov_b32 v{vT2}, {4*i}")
            A(f"buffer_store_dword v{vT1}, v{vT2}, {ws}, s{sTmp} offen")
    if done_label: A(f"s_branch {done_label}")
    A.label(f"{name}_exit")
    A("s_endpgm")
    A.label(f"{name}_fail")
    A(f"""
    s_lshl_b32 s{sTmp}, s{sX}, 4
    s_add_u32 s{sTmp}, s{sTmp}, s{sC}
    s_lshl_b32 s{sTmp}, s{sTmp}, 2
    s_add_u32 s{sTmp}, s{sTmp}, s{sW}
    s_lshl_b32 s{sTmp}, s{sTmp}, 2
    s_add_u32 s{sTmp}, s{sTmp}, {WS['END'] + 65536}
    s_lshl_b32 s{sTmp2}, s{sStep}, 8
    s_or_b32 s{sTmp2}, s{sTmp2}, s{sMask}
    s_or_b32 s{sTmp2}, s{sTmp2}, 0x10000
    v_mov_b32 v{vT1}, s{sTmp2}
    v_mov_b32 v{vT2}, 0
    buffer_store_dword v{vT1}, v{vT2}, {ws}, s{sTmp} offen
    s_endpgm
    """)
    return A.text()

def chain_desc(name='chain_kernel'):
    return kernel_desc(name, 512, 96, 256)
```

```python
from asmlib import *

class Side:
    def __init__(self, typ, nsub, ksps):
        self.typ = typ; self.n = nsub; self.ksps = ksps
        self.E = 32 * nsub
        self.stage_bytes = self.E * 32 * ksps * 2
        self.ndma = self.stage_bytes // 1024 // 4
        assert self.ndma >= 1

def mix(main, fill):
    n, m = len(main), len(fill)
    out = []; fi = 0
    for i, x in enumerate(main):
        out.append(x)
        tgt = (i+1) * m // n
        while fi < tgt:
            out.append(fill[fi]); fi += 1
    out += fill[fi:]
    return out

def frontmix(main, fill, frac=0.65):
    import math
    n, m = len(main), len(fill)
    per = max(1, math.ceil(m / (frac * n)))
    out = []; fi = 0
    for x in main:
        out.append(x)
        for _ in range(per):
            if fi < m:
                out.append(fill[fi]); fi += 1
    out += fill[fi:]
    return out

def gen_gemm_core(A, sR, sC, nst, S, srdR, srdC, sOffR, sOffC, stepR, stepC, regs, pfx='g', ldflagR='', ldflagC='', nst_sreg=None, dbg=''):
    ksps = sR.ksps
    nR, nC = sR.n, sC.n
    vFR, vFC = regs['vFR'], regs['vFC']
    acc = regs['acc']
    assert (S * ksps) % 2 == 0
    assert S * sR.stage_bytes <= 65536 and S * sC.stage_bytes <= 65536

    def dma(side, srd, soff, vD, sM0, stage, fl):
        out = []
        for m in range(side.ndma):
            if m % 4 == 0:
                out.append(f"s_add_u32 m0, s{sM0}, {stage*side.stage_bytes + (m//4)*4096}")
                out.append("s_nop 0")
            out.append(f"buffer_load_dwordx4 v{vD[m]}, {srd}, s{soff} offen offset:{(m%4)*1024}{fl} lds")
        return out
    def dma_stage(stage):
        o = dma(sR, srdR, sOffR, regs['vDmaR'], regs['sM0R'], stage, ldflagR)
        o.append(f"s_add_u32 s{sOffR}, s{sOffR}, {stepR}")
        o += dma(sC, srdC, sOffC, regs['vDmaC'], regs['sM0C'], stage, ldflagC)
        o.append(f"s_add_u32 s{sOffC}, s{sOffC}, {stepC}")
        return o
    def reads(side, vF, vRd, stage, kb, bufsel):
        out = []
        base = vF + bufsel * side.n * 4
        for j in range(side.n):
            if side.typ == 'F':
                off = stage*side.stage_bytes + (j*ksps + kb)*1024
                out.append(f"ds_read_b128 {v(base+4*j,4)}, v{vRd[0]} offset:{off}")
            else:
                pitch = side.E * 2
                for hh in range(2):
                    off = stage*side.stage_bytes + (32*kb + 16*hh)*pitch
                    out.append(f"ds_read_b64_tr_b16 {v(base+4*j+2*hh,2)}, v{vRd[j]} offset:{off}")
        return out
    def frag_reads(stage, kb, bufsel):
        r = reads(sR, vFR, regs['vRdR'], stage, kb, bufsel); c = reads(sC, vFC, regs['vRdC'], stage, kb, bufsel)
        nper = len(r)//nR
        return r[:nper] + c + r[nper:]
    def mfmas(bufsel):
        out = []
        for i in range(nR):
            for j in range(nC):
                d = a(acc(i,j), 4)
                ra = v(vFR + bufsel*nR*4 + 4*i, 4); cb = v(vFC + bufsel*nC*4 + 4*j, 4)
                out.append(f"v_mfma_f32_16x16x32_bf16 {d}, {ra}, {cb}, {d}")
        return out
    nd = sR.ndma + sC.ndma
    assert S*nd <= 63
    for st in range(S):
        for x in dma_stage(st): A(x)
    for i in range(nR):
        for j in range(nC):
            for r in range(4): A(f"v_accvgpr_write_b32 a{acc(i,j)+r}, 0")
    if nst_sreg is None:
        A(f"s_mov_b32 s{regs['sCnt']}, {nst // S}")
        assert nst % S == 0
    else:
        A(f"s_mov_b32 s{regs['sCnt']}, s{nst_sreg}")
    A(f"s_waitcnt vmcnt({(S-1)*nd})")
    A("s_barrier")
    for x in frag_reads(0, 0, 0): A(x)
    A.label(f"{pfx}_loop")
    for st in range(S):
        for kb in range(ksps):
            q = st*ksps + kb
            buf = q & 1
            lastk = (kb == ksps-1)
            A("s_waitcnt lgkmcnt(0)")
            if not lastk:
                fill = frag_reads(st, kb+1, buf ^ 1)
            else:
                A(f"s_waitcnt vmcnt({(S-2)*(nd//2 if ('nodR' in dbg or 'nodC' in dbg) else nd)})")
                A("s_barrier")
                fl = frag_reads((st+1) % S, 0, buf ^ 1)
                dm = dma_stage(st)
                fill = fl + dm
            if 'nodma' in dbg: fill = [x for x in fill if 'lds' not in x.split()[-1:] and not x.startswith('s_add_u32 m0')]
            if 'nodR' in dbg: fill = [x for x in fill if srdR not in x]
            if 'nodC' in dbg: fill = [x for x in fill if srdC not in x]
            if 'noread' in dbg: fill = [x for x in fill if not x.startswith('ds_')]
            mf = mfmas(buf) if 'nomfma' not in dbg else ['s_nop 0']
            for x in frontmix(mf, fill, 0.65 if lastk else 0.5): A(x)
    A(f"s_sub_u32 s{regs['sCnt']}, s{regs['sCnt']}, 1")
    A(f"s_cmp_lg_u32 s{regs['sCnt']}, 0")
    A(f"s_cbranch_scc1 {pfx}_loop")

def setup_side(A, side, regs, tag, sWv, sWhalf, vLane, vCol, vG, tmp, ld_bytes, nK, ldsbase):
    vD = regs['vDma'+tag]; vRd = regs['vRd'+tag]
    t1, t2, t3 = tmp['v']; s1, s2 = tmp['s']
    nd = side.ndma
    A(f"s_mul_i32 s{regs['sM0'+tag]}, s{sWv}, {nd*1024}")
    A(f"s_add_u32 s{regs['sM0'+tag]}, s{regs['sM0'+tag]}, {ldsbase}")
    if side.typ == 'F':
        A(f"v_lshlrev_b32 v{t1}, 4, v{vLane}")
        assert nd % side.ksps == 0
        tiles_per_wave = nd // side.ksps
        A(f"s_mul_i32 s{s1}, s{sWv}, {tiles_per_wave*nK*1024}")
        A(f"v_add_u32 v{t1}, s{s1}, v{t1}")
        for m in range(nd):
            off = ((m // side.ksps)*nK + (m % side.ksps))*1024 - (m % 4)*1024
            assert off >= 0, (m, off)
            A(f"v_add_u32 v{vD[m]}, {off}, v{t1}")
        A(f"s_mul_i32 s{s1}, s{sWhalf}, {side.n*side.ksps*1024}")
        A(f"s_add_u32 s{s1}, s{s1}, {ldsbase}")
        A(f"v_lshlrev_b32 v{vRd[0]}, 4, v{vLane}")
        A(f"v_add_u32 v{vRd[0]}, s{s1}, v{vRd[0]}")
    else:
        pitch = side.E * 2
        lpr = pitch // 16
        rpi = 1024 // pitch
        assert pitch >= 256 and rpi >= 1
        sh = lpr.bit_length() - 1
        A(f"v_lshrrev_b32 v{t1}, {sh}, v{vLane}")
        A(f"s_mul_i32 s{s1}, s{sWv}, {nd*rpi}")
        A(f"v_add_u32 v{t1}, s{s1}, v{t1}")
        A(f"v_and_b32 v{t2}, {lpr-1}, v{vLane}")
        A(f"s_mov_b32 s{s2}, {ld_bytes}")
        for m in range(nd):
            A(f"v_add_u32 v{t3}, {m*rpi}, v{t1}")
            A(f"v_and_b32 v{vD[m]}, 7, v{t3}")
            A(f"v_lshlrev_b32 v{vD[m]}, 1, v{vD[m]}")
            A(f"v_xor_b32 v{vD[m]}, v{vD[m]}, v{t2}")
            A(f"v_lshlrev_b32 v{vD[m]}, 4, v{vD[m]}")
            A(f"v_mul_lo_u32 v{t3}, v{t3}, s{s2}")
            A(f"v_add_u32 v{vD[m]}, v{vD[m]}, v{t3}")
            if m % 4:
                A(f"v_subrev_u32 v{vD[m]}, {(m%4)*1024}, v{vD[m]}")
        A(f"v_lshrrev_b32 v{t1}, 2, v{vCol}")
        A(f"v_lshl_add_u32 v{t1}, v{vG}, 2, v{t1}")
        A(f"v_and_b32 v{t2}, 7, v{t1}")
        A(f"v_lshlrev_b32 v{t2}, 5, v{t2}")
        A(f"v_mul_u32_u24 v{t1}, {pitch}, v{t1}")
        A(f"v_and_b32 v{t3}, 3, v{vCol}")
        A(f"v_lshl_add_u32 v{t1}, v{t3}, 3, v{t1}")
        A(f"v_add_u32 v{t1}, {ldsbase}, v{t1}")
        A(f"s_mul_i32 s{s1}, s{sWhalf}, {side.n}")
        for j in range(side.n):
            A(f"s_add_u32 s{s2}, s{s1}, {j}")
            A(f"s_lshl_b32 s{s2}, s{s2}, 5")
            A(f"v_xor_b32 v{vRd[j]}, s{s2}, v{t2}")
            A(f"v_add_u32 v{vRd[j]}, v{vRd[j]}, v{t1}")
```

```python
from asmlib import *
from gemm import *

def common_regs(nR, nC, sR, sC):
    R = RegAlloc(0, 256)
    R.alloc('tid')
    d = {}
    d['vLane'] = R.alloc('lane'); d['vCol'] = R.alloc('col'); d['vG'] = R.alloc('g'); d['vL16'] = R.alloc('l16')
    d['t'] = [R.alloc('t1'), R.alloc('t2'), R.alloc('t3')]
    d['vDmaR'] = [R.alloc(f'dr{i}') for i in range(sR.ndma)]
    d['vDmaC'] = [R.alloc(f'dc{i}') for i in range(sC.ndma)]
    d['vRdR'] = [R.alloc(f'rr{i}') for i in range(sR.n if sR.typ == 'T' else 1)]
    d['vRdC'] = [R.alloc(f'rc{i}') for i in range(sC.n if sC.typ == 'T' else 1)]
    d['vFR'] = R.alloc('FR', 2*nR*4, 4); d['vFC'] = R.alloc('FC', 2*nC*4, 4)
    d['vEp'] = R.alloc('ep', 32, 4)
    d['R'] = R
    return d

def lane_setup(A, d, sW):
    A(f"""
    v_and_b32 v{d['vLane']}, 63, v0
    v_lshrrev_b32 v{d['t'][0]}, 6, v0
    s_nop 0
    v_readfirstlane_b32 s{sW}, v{d['t'][0]}
    v_and_b32 v{d['vCol']}, 15, v{d['vLane']}
    v_lshrrev_b32 v{d['vG']}, 4, v{d['vLane']}
    v_lshlrev_b32 v{d['vL16']}, 4, v{d['vLane']}
    """)

def gen_g1(name='g1_kernel', ntn=48, ntm=8, ksps=1, S=4):
    A = Asm()
    A.raw(kernel_header(name))
    sWS=8; sWt=12; sW=20; sWr=21; sWc=22; sTn=23; sTm=24; sOffR=25; sOffC=26; sCnt=27; sM0R=28; sM0C=29; s1=30; s2=31; sMat=32; sHead=33; sSeg=34; sBase=35
    ntiles = ntn*ntm
    A(f"""
    s_cmp_ge_u32 s2, {ntiles}
    s_cbranch_scc1 {name}_exit
    s_load_dwordx2 s[4:5], s[0:1], {KA['Wq']}
    s_load_dwordx2 s[6:7], s[0:1], {KA['Wk']}
    s_load_dwordx2 s[36:37], s[0:1], {KA['Wv']}
    s_load_dwordx2 s[38:39], s[0:1], {KA['ws']}
    """)
    sF = Side('F', 8, ksps); sT = Side('T', 8, ksps)
    A(f"""
    s_and_b32 s{s1}, s2, 7
    s_lshr_b32 s{s2}, s2, 3
    s_mul_i32 s{sTm}, s{s2}, 43691
    s_lshr_b32 s{sTm}, s{sTm}, 18          ; idx / 6
    s_mul_i32 s{sTn}, s{sTm}, 6
    s_sub_u32 s{sTn}, s{s2}, s{sTn}        ; idx % 6
    s_mul_i32 s{s1}, s{s1}, 6
    s_add_u32 s{sTn}, s{sTn}, s{s1}
    s_lshr_b32 s{sMat}, s{sTn}, 4          ; 0=q 1=k 2=v
    s_and_b32 s{sTn}, s{sTn}, 15
    """)
    dQK = common_regs(8, 8, sT, sF)
    lane_setup(A, dQK, sW)
    A(f"""
    s_lshr_b32 s{sWr}, s{sW}, 1
    s_and_b32 s{sWc}, s{sW}, 1
    s_waitcnt lgkmcnt(0)
    s_mov_b32 s{sWS}, s38
    s_mov_b32 s{sWS+1}, s39
    s_mov_b32 s{sWS+2}, {WS_SIZE}
    s_mov_b32 s{sWS+3}, 0x20000
    s_cmp_eq_u32 s{sMat}, 1
    s_cselect_b32 s{sWt}, s6, s4
    s_cselect_b32 s{sWt+1}, s7, s5
    s_cmp_eq_u32 s{sMat}, 2
    s_cselect_b32 s{sWt}, s36, s{sWt}
    s_cselect_b32 s{sWt+1}, s37, s{sWt+1}
    s_mov_b32 s{sWt+2}, {1024*4096*2}
    s_mov_b32 s{sWt+3}, 0x20000
    s_cmp_eq_u32 s{sMat}, 2
    s_cbranch_scc1 {name}_v
    """)
    ws = f"s[{sWS}:{sWS+3}]"; wt = f"s[{sWt}:{sWt+3}]"
    def body(isv):
        sR, sC = (sF, sT) if isv else (sT, sF)
        d = common_regs(8, 8, sR, sC)
        regs = dict(d); regs.update(sM0R=sM0R, sM0C=sM0C, sCnt=sCnt, ldsR=0, ldsC=65536, acc=lambda i,j: (i*8+j)*4)
        tmp = {'v': d['t'], 's': (s1, s2)}
        if isv: lane_setup(A, d, sW)
        setup_side(A, sR, regs, 'R', sW, sWr, d['vLane'], d['vCol'], d['vG'], tmp, 8192, 32, 0)
        setup_side(A, sC, regs, 'C', sW, sWc, d['vLane'], d['vCol'], d['vG'], tmp, 8192, 32, 65536)
        sH, sWo = (sOffR, sOffC) if isv else (sOffC, sOffR)
        A(f"""
        s_lshl_b32 s{sH}, s{sTm}, 19
        s_add_u32 s{sH}, s{sH}, {WS['H']}
        s_lshl_b32 s{sWo}, s{sTn}, 9
        """)
        stepH, stepW = ksps*1024, 32*ksps*8192
        if isv: gen_gemm_core(A, sR, sC, 32//ksps, S, ws, wt, sOffR, sOffC, stepH, stepW, regs, pfx=name+'_v')
        else:   gen_gemm_core(A, sR, sC, 32//ksps, S, wt, ws, sOffR, sOffC, stepW, stepH, regs, pfx=name+'_q')
        ep = d['vEp']
        A.nop(8)
        if not isv:
            A(f"""
            s_lshl_b32 s{sHead}, s{sTn}, 1
            s_add_u32 s{sHead}, s{sHead}, s{sWr}
            s_lshl_b32 s{sSeg}, s{sTm}, 3
            s_lshl_b32 s{s1}, s{sWc}, 2
            s_add_u32 s{sSeg}, s{sSeg}, s{s1}
            s_lshl_b32 s{sBase}, s{sSeg}, 5
            s_add_u32 s{sBase}, s{sBase}, s{sHead}
            s_lshl_b32 s{sBase}, s{sBase}, 13
            s_lshl_b32 s{s1}, s{sMat}, 24
            s_add_u32 s{sBase}, s{sBase}, s{s1}
            s_add_u32 s{sBase}, s{sBase}, {WS['Q']}
            """)
            assert WS['K'] == WS['Q'] + (16 << 20)
            k = 0
            for j in range(8):
                A(f"s_add_u32 s{s1}, s{sBase}, {(j>>1)*(1<<18) + (j&1)*4096}")
                for p in range(4):
                    e = ep + (k % 4)*8; k += 1
                    for hh in range(2):
                        for r in range(4):
                            A(f"v_accvgpr_read_b32 v{e+4+r if hh else e+r}, a{regs['acc'](2*p+hh, j)+r}") if False else None
                    for hh in range(2):
                        for r in range(4):
                            A(f"v_accvgpr_read_b32 v{e+4*hh+r}, a{regs['acc'](2*p+hh, j)+r}")
                    A(f"v_cvt_pk_bf16_f32 v{e}, v{e}, v{e+1}")
                    A(f"v_cvt_pk_bf16_f32 v{e+1}, v{e+2}, v{e+3}")
                    A(f"v_cvt_pk_bf16_f32 v{e+2}, v{e+4}, v{e+5}")
                    A(f"v_cvt_pk_bf16_f32 v{e+3}, v{e+6}, v{e+7}")
                    A(f"buffer_store_dwordx4 {v(e,4)}, v{d['vL16']}, {ws}, s{s1} offen offset:{p*1024}")
        else:
            A(f"""
            s_lshl_b32 s{sHead}, s{sTn}, 1
            s_add_u32 s{sHead}, s{sHead}, s{sWc}
            s_lshl_b32 s{sSeg}, s{sTm}, 3
            s_lshl_b32 s{s1}, s{sWr}, 2
            s_add_u32 s{sSeg}, s{sSeg}, s{s1}
            s_lshl_b32 s{sBase}, s{sSeg}, 5
            s_add_u32 s{sBase}, s{sBase}, s{sHead}
            s_lshl_b32 s{sBase}, s{sBase}, 13
            s_add_u32 s{sBase}, s{sBase}, {WS['VT']}
            """)
            k = 0
            for pp in range(4):
                for j in range(8):
                    if j % 4 == 0:
                        A(f"s_add_u32 s{s1}, s{sBase}, {pp*(1<<18) + (j//4)*4096}")
                    e = ep + (k % 4)*8; k += 1
                    for hh in range(2):
                        for r in range(4):
                            A(f"v_accvgpr_read_b32 v{e+4*hh+r}, a{regs['acc'](2*pp+hh, j)+r}")
                    A(f"v_cvt_pk_bf16_f32 v{e}, v{e}, v{e+1}")
                    A(f"v_cvt_pk_bf16_f32 v{e+1}, v{e+2}, v{e+3}")
                    A(f"v_cvt_pk_bf16_f32 v{e+2}, v{e+4}, v{e+5}")
                    A(f"v_cvt_pk_bf16_f32 v{e+3}, v{e+6}, v{e+7}")
                    A(f"buffer_store_dwordx4 {v(e,4)}, v{d['vL16']}, {ws}, s{s1} offen offset:{(j%4)*1024}")
        print(name, 'isv', isv, 'vgprs', d['R'].next)
    body(False)
    A("s_endpgm")
    A.label(f"{name}_v")
    body(True)
    A.label(f"{name}_exit")
    A("s_endpgm")
    return A.text()

def g1_desc(name='g1_kernel'):
    return kernel_desc(name, 512, 64, 256)
```

```python
from asmlib import *
import struct, math
def f2u(x): return struct.unpack('<I', struct.pack('<f', x))[0]

def srd(A, s, lo, hi, size):
    A(f"s_mov_b32 s{s}, s{lo}")
    A(f"s_mov_b32 s{s+1}, s{hi}")
    A(f"s_mov_b32 s{s+2}, {size}")
    A(f"s_mov_b32 s{s+3}, 0x20000")

RING_BYTES = WS['RING_END'] - WS['RA']

def gen_pre(name='pre_kernel'):
    A = Asm(); A.raw(kernel_header(name))
    NF = 160
    A(f"""
    s_cmp_ge_u32 s2, 256
    s_cbranch_scc1 {name}_exit
    s_load_dwordx2 s[4:5], s[0:1], {KA['c']}
    s_load_dwordx2 s[6:7], s[0:1], {KA['wmod']}
    s_load_dwordx2 s[20:21], s[0:1], {KA['ws']}
    s_waitcnt lgkmcnt(0)
    """)
    srd(A, 8, 4, 5, 2048); srd(A, 12, 6, 7, 1024*6144*2); srd(A, 16, 20, 21, WS_SIZE)
    A(f"""
    s_cmp_ge_u32 s2, 96
    s_cbranch_scc1 {name}_fill
    v_lshlrev_b32 v1, 3, v0
    buffer_load_dwordx2 v[2:3], v1, s[8:11], 0 offen
    s_waitcnt vmcnt(0)
    v_lshlrev_b32 v4, 16, v2
    v_and_b32 v5, 0xffff0000, v2
    v_lshlrev_b32 v6, 16, v3
    v_and_b32 v7, 0xffff0000, v3
    s_mov_b32 s22, {hex(f2u(-math.log2(math.e)))}
    """)
    for r in range(4):
        A(f"v_mul_f32 v{8+r}, s22, v{4+r}")
    for r in range(4):
        A(f"v_exp_f32 v{8+r}, v{8+r}")
    A("s_nop 0")
    for r in range(4):
        A(f"v_add_f32 v{8+r}, 1.0, v{8+r}")
    for r in range(4):
        A(f"v_rcp_f32 v{8+r}, v{8+r}")
    A("s_nop 0")
    for r in range(4):
        A(f"v_mul_f32 v{8+r}, v{8+r}, v{4+r}")
    A(f"""
    v_cvt_pk_bf16_f32 v12, v8, v9
    v_cvt_pk_bf16_f32 v13, v10, v11
    v_lshlrev_b32 v8, 16, v12
    v_and_b32 v9, 0xffff0000, v12
    v_lshlrev_b32 v10, 16, v13
    v_and_b32 v11, 0xffff0000, v13
    v_lshlrev_b32 v1, 4, v0
    ds_write_b128 v1, v[8:11]
    s_waitcnt lgkmcnt(0)
    s_barrier
    v_and_b32 v2, 7, v0
    v_lshrrev_b32 v3, 3, v0
    v_mul_u32_u24 v4, 12288, v3
    v_lshl_add_u32 v4, v2, 4, v4
    s_lshl_b32 s22, s2, 7
    v_add_u32 v4, s22, v4
    v_lshlrev_b32 v5, 2, v3
    """)
    for r in range(8): A(f"v_mov_b32 v{16+r}, 0")
    for b in range(4):
        for i in range(8):
            row = b*8 + i
            A(f"s_mov_b32 s23, {row*32*12288}")
            A(f"buffer_load_dwordx4 v[{32+4*i}:{35+4*i}], v4, s[12:15], s23 offen")
            A(f"ds_read_b32 v{64+i}, v5 offset:{row*128}")
        A("s_waitcnt vmcnt(0) lgkmcnt(0)")
        for i in range(8):
            for q in range(4):
                A(f"v_lshlrev_b32 v24, 16, v{32+4*i+q}")
                A(f"v_and_b32 v25, 0xffff0000, v{32+4*i+q}")
                A(f"v_fmac_f32 v{16+2*q}, v24, v{64+i}")
                A(f"v_fmac_f32 v{17+2*q}, v25, v{64+i}")
    A(f"""
    v_lshlrev_b32 v5, 8, v3
    v_lshl_add_u32 v5, v2, 5, v5
    ds_write_b128 v5, v[16:19] offset:4096
    ds_write_b128 v5, v[20:23] offset:4112
    s_waitcnt lgkmcnt(0)
    s_barrier
    v_cmp_gt_u32 vcc, 64, v0
    s_and_saveexec_b64 s[24:25], vcc
    s_cbranch_execz {name}_exit
    v_lshlrev_b32 v5, 2, v0
    """)
    for i in range(32):
        A(f"ds_read_b32 v{32+i}, v5 offset:{4096+i*256}")
        if i % 8 == 7: A("s_waitcnt lgkmcnt(0)")
    for i in range(1, 32):
        A(f"v_add_f32 v32, v32, v{32+i}")
    A(f"""
    v_cvt_pk_bf16_f32 v33, v32, v32
    v_lshlrev_b32 v33, 16, v33
    v_add_f32 v34, 1.0, v33
    v_cvt_pk_bf16_f32 v34, v34, v34
    v_lshlrev_b32 v34, 16, v34
    s_lshr_b32 s22, s2, 4
    s_cmp_eq_u32 s22, 1
    s_cselect_b32 s23, 1, 0
    s_cmp_eq_u32 s22, 4
    s_cselect_b32 s23, 1, s23
    s_cmp_eq_u32 s23, 1
    s_cbranch_scc0 {name}_nop1
    v_mov_b32 v33, v34
    {name}_nop1:
    s_lshl_b32 s22, s2, 8
    s_add_u32 s22, s22, {WS['MOD']}
    buffer_store_dword v33, v5, s[16:19], s22 offen
    s_endpgm
    {name}_fill:
    s_sub_u32 s22, s2, 96
    s_cmp_ge_u32 s22, 32
    s_cbranch_scc1 {name}_fill2
    s_lshl_b32 s23, s22, 12
    s_add_u32 s23, s23, {WS['FLAGS']}
    v_lshlrev_b32 v1, 4, v0
    v_mov_b32 v4, 0
    v_mov_b32 v5, 0
    v_mov_b32 v6, 0
    v_mov_b32 v7, 0
    buffer_store_dwordx4 v[4:7], v1, s[16:19], s23 offen
    s_nop 1
    {name}_fill2:
    s_lshl_b32 s22, s22, 12
    s_add_u32 s22, s22, {WS['RA']}
    v_lshlrev_b32 v1, 4, v0
    v_mov_b32 v4, -1
    v_mov_b32 v5, -1
    v_mov_b32 v6, -1
    v_mov_b32 v7, -1
    {name}_floop:
    buffer_store_dwordx4 v[4:7], v1, s[16:19], s22 offen
    s_add_u32 s22, s22, {NF*4096}
    s_cmp_lt_u32 s22, {WS['RING_END']}
    s_cbranch_scc1 {name}_floop
    {name}_exit:
    s_endpgm
    """)
    assert RING_BYTES % 4096 == 0
    return A.text(), kernel_desc(name, 72, 32, 72)

def gen_ln(name, which):
    A = Asm(); A.raw(kernel_header(name))
    vX = 32
    vL = 96
    vM = 128
    A(f"""
    s_cmp_ge_u32 s2, 128
    s_cbranch_scc1 {name}_exit
    s_load_dwordx2 s[4:5], s[0:1], {KA['x']}
    s_load_dwordx2 s[20:21], s[0:1], {KA['ws']}
    v_and_b32 v1, 63, v0                    ; lane
    v_lshrrev_b32 v2, 6, v0
    s_nop 0
    v_readfirstlane_b32 s22, v2             ; wave
    v_and_b32 v3, 15, v1                    ; col
    v_lshrrev_b32 v4, 4, v1                 ; g
    v_lshlrev_b32 v5, 4, v1                 ; lane*16
    s_waitcnt lgkmcnt(0)
    """)
    srd(A, 8, 4, 5, 2048*1024*2); srd(A, 16, 20, 21, WS_SIZE)
    if which == 1:
        A(f"""
        v_lshlrev_b32 v6, 11, v3
        v_lshl_add_u32 v6, v4, 3, v6
        s_lshl_b32 s23, s2, 15              ; 16 tokens * 2048
        s_lshl_b32 s24, s22, 9              ; w*256*2
        s_add_u32 s23, s23, s24
        """)
        for kb in range(8):
            A(f"buffer_load_dwordx2 v[{vL+4*kb}:{vL+4*kb+1}], v6, s[8:11], s23 offen offset:{kb*64}")
            A(f"buffer_load_dwordx2 v[{vL+4*kb+2}:{vL+4*kb+3}], v6, s[8:11], s23 offen offset:{kb*64+32}")
    else:
        A(f"""
        s_lshl_b32 s23, s2, 15              ; tile*32*1024
        s_lshl_b32 s24, s22, 13             ; w*8*1024
        s_add_u32 s23, s23, s24
        s_add_u32 s23, s23, {WS['X1']}
        s_add_u32 s25, s23, 4096
        """)
        for kb in range(8):
            A(f"buffer_load_dwordx4 v[{vL+4*kb}:{vL+4*kb+3}], v5, s[16:19], s{23 if kb < 4 else 25} offen offset:{(kb%4)*1024}")
    rowS, rowP = (0, 1) if which == 1 else (3, 4)
    A(f"""
    v_lshlrev_b32 v7, 4, v4                 ; g*16 bytes
    s_lshl_b32 s24, s22, 10                 ; 256w*4
    s_add_u32 s26, s24, {WS['MOD'] + rowS*4096}
    s_add_u32 s27, s24, {WS['MOD'] + rowP*4096}
    """)
    for kb in range(8):
        m = vM + kb*16
        A(f"buffer_load_dwordx4 v[{m}:{m+3}], v7, s[16:19], s27 offen offset:{kb*128}")
        A(f"buffer_load_dwordx4 v[{m+4}:{m+7}], v7, s[16:19], s27 offen offset:{kb*128+64}")
        A(f"buffer_load_dwordx4 v[{m+8}:{m+11}], v7, s[16:19], s26 offen offset:{kb*128}")
        A(f"buffer_load_dwordx4 v[{m+12}:{m+15}], v7, s[16:19], s26 offen offset:{kb*128+64}")
    A("s_waitcnt vmcnt(32)")
    for q in range(32):
        A(f"v_lshlrev_b32 v{vX+2*q}, 16, v{vL+q}")
        A(f"v_and_b32 v{vX+2*q+1}, 0xffff0000, v{vL+q}")
    def reduce_all(reg, ldsoff):
        A(f"""
        v_mov_b32 v9, v{reg}
        s_nop 1
        v_permlane16_swap_b32 v{reg}, v9
        s_nop 1
        v_add_f32 v{reg}, v{reg}, v9
        v_mov_b32 v9, v{reg}
        s_nop 1
        v_permlane32_swap_b32 v{reg}, v9
        s_nop 1
        v_add_f32 v{reg}, v{reg}, v9
        v_lshlrev_b32 v10, 2, v3
        s_lshl_b32 s24, s22, 6
        v_add_u32 v11, s24, v10
        ds_write_b32 v11, v{reg} offset:{ldsoff}
        s_waitcnt lgkmcnt(0)
        s_barrier
        ds_read_b32 v12, v10 offset:{ldsoff}
        ds_read_b32 v13, v10 offset:{ldsoff+64}
        ds_read_b32 v14, v10 offset:{ldsoff+128}
        ds_read_b32 v15, v10 offset:{ldsoff+192}
        s_waitcnt lgkmcnt(0)
        v_add_f32 v12, v12, v13
        v_add_f32 v14, v14, v15
        v_add_f32 v{reg}, v12, v14
        """)
    A(f"v_add_f32 v8, v{vX}, v{vX+1}")
    for q in range(2, 64): A(f"v_add_f32 v8, v8, v{vX+q}")
    reduce_all(8, 0)
    A(f"v_mul_f32 v16, {hex(f2u(1/1024))}, v8")
    for q in range(64): A(f"v_sub_f32 v{vX+q}, v{vX+q}, v16")
    A(f"v_mul_f32 v8, v{vX}, v{vX}")
    for q in range(1, 64): A(f"v_fmac_f32 v8, v{vX+q}, v{vX+q}")
    reduce_all(8, 256)
    A(f"""
    v_mov_b32 v17, {hex(f2u(1e-5))}
    v_fmac_f32 v17, {hex(f2u(1/1024))}, v8
    v_rsq_f32 v17, v17
    s_nop 0
    """)
    if which == 2:
        A(f"""
        v_lshlrev_b32 v18, 11, v3
        v_and_b32 v19, 1, v4
        v_lshl_add_u32 v18, v19, 5, v18
        v_lshrrev_b32 v19, 1, v4
        v_lshl_add_u32 v18, v19, 4, v18
        s_lshl_b32 s28, s2, 15
        s_lshl_b32 s24, s22, 9
        s_add_u32 s28, s28, s24
        s_add_u32 s28, s28, {WS['H2']}
        """)
    else:
        A(f"""
        s_lshl_b32 s28, s2, 15
        s_lshl_b32 s24, s22, 13
        s_add_u32 s28, s28, s24
        s_add_u32 s28, s28, {WS['H']}
        s_add_u32 s29, s28, 4096
        """)
    for kb in range(8):
        m = vM + kb*16
        if kb == 0: A("s_waitcnt vmcnt(0)")
        x0 = vX + 8*kb
        for e in range(8):
            A(f"v_mul_f32 v{x0+e}, v{x0+e}, v17")
        for e in range(8):
            A(f"v_fma_f32 v{x0+e}, v{x0+e}, v{m+e}, v{m+8+e}")
        o = 20 + (kb % 2)*4
        for q in range(4):
            A(f"v_cvt_pk_bf16_f32 v{o+q}, v{x0+2*q}, v{x0+2*q+1}")
        if which == 1:
            A(f"buffer_store_dwordx4 v[{o}:{o+3}], v5, s[16:19], s{28 if kb < 4 else 29} offen offset:{(kb%4)*1024}")
        else:
            A(f"""
            s_nop 1
            v_permlane16_swap_b32 v{o}, v{o+2}
            v_permlane16_swap_b32 v{o+1}, v{o+3}
            s_nop 1
            buffer_store_dwordx4 v[{o}:{o+3}], v18, s[16:19], s28 offen offset:{kb*64}
            """)
    A.label(f"{name}_exit")
    A("s_endpgm")
    return A.text(), kernel_desc(name, 256, 32, 256)
```

```python
from asmlib import *
from kern_misc import srd, f2u
import math

def gen_pre2(name='pre_kernel'):
    A = Asm(); A.raw(kernel_header(name))
    A(f"""
    s_cmp_ge_u32 s2, 256
    s_cbranch_scc1 {name}_exit
    s_load_dwordx2 s[4:5], s[0:1], {KA['c']}
    s_load_dwordx2 s[6:7], s[0:1], {KA['wmod']}
    s_load_dwordx2 s[20:21], s[0:1], {KA['ws']}
    s_load_dwordx2 s[30:31], s[0:1], {KA['x']}
    s_load_dwordx2 s[32:33], s[0:1], {KA['dbg']}
    s_waitcnt lgkmcnt(0)
    """)
    srd(A, 16, 20, 21, WS_SIZE); srd(A, 36, 32, 33, 256)
    A(f"""
    s_cmp_ge_u32 s2, 224
    s_cbranch_scc1 {name}_fill
    s_cmp_ge_u32 s2, 96
    s_cbranch_scc1 {name}_ln
    """)
    srd(A, 8, 4, 5, 2048); srd(A, 12, 6, 7, 1024*6144*2)
    A(f"""
    v_and_b32 v2, 7, v0
    v_lshrrev_b32 v3, 3, v0
    v_mul_u32_u24 v4, 12288, v3
    v_lshl_add_u32 v4, v2, 4, v4
    s_lshl_b32 s22, s2, 7
    v_add_u32 v4, s22, v4
    v_lshlrev_b32 v1, 3, v0
    buffer_load_dwordx2 v[10:11], v1, s[8:11], 0 offen
    """)
    for row in range(32):
        A(f"s_mov_b32 s23, {row*32*12288}")
        A(f"buffer_load_dwordx4 v[{64+4*row}:{67+4*row}], v4, s[12:15], s23 offen")
    A(f"""
    s_waitcnt vmcnt(32)
    v_lshlrev_b32 v12, 16, v10
    v_and_b32 v13, 0xffff0000, v10
    v_lshlrev_b32 v14, 16, v11
    v_and_b32 v15, 0xffff0000, v11
    s_mov_b32 s22, {hex(f2u(-math.log2(math.e)))}
    """)
    for r in range(4): A(f"v_mul_f32 v{16+r}, s22, v{12+r}")
    for r in range(4): A(f"v_exp_f32 v{16+r}, v{16+r}")
    A("s_nop 0")
    for r in range(4): A(f"v_add_f32 v{16+r}, 1.0, v{16+r}")
    for r in range(4): A(f"v_rcp_f32 v{16+r}, v{16+r}")
    A("s_nop 0")
    for r in range(4): A(f"v_mul_f32 v{16+r}, v{16+r}, v{12+r}")
    A(f"""
    v_cvt_pk_bf16_f32 v20, v16, v17
    v_cvt_pk_bf16_f32 v21, v18, v19
    v_lshlrev_b32 v16, 16, v20
    v_and_b32 v17, 0xffff0000, v20
    v_lshlrev_b32 v18, 16, v21
    v_and_b32 v19, 0xffff0000, v21
    v_lshlrev_b32 v1, 4, v0
    ds_write_b128 v1, v[16:19]
    s_waitcnt lgkmcnt(0)
    s_barrier
    v_lshlrev_b32 v5, 2, v3
    """)
    for i in range(32):
        A(f"ds_read_b32 v{24+i}, v5 offset:{i*128}")
        if i % 8 == 7: A("s_waitcnt lgkmcnt(0)")
    for r in range(8): A(f"v_mov_b32 v{56+r}, 0")
    for i in range(32):
        if i % 8 == 0: A(f"s_waitcnt vmcnt({24 - i})")
        for q in range(4):
            A(f"v_lshlrev_b32 v22, 16, v{64+4*i+q}")
            A(f"v_and_b32 v23, 0xffff0000, v{64+4*i+q}")
            A(f"v_fmac_f32 v{56+2*q}, v22, v{24+i}")
            A(f"v_fmac_f32 v{57+2*q}, v23, v{24+i}")
    A(f"""
    v_lshlrev_b32 v5, 8, v3
    v_lshl_add_u32 v5, v2, 5, v5
    ds_write_b128 v5, v[56:59] offset:4096
    ds_write_b128 v5, v[60:63] offset:4112
    s_waitcnt lgkmcnt(0)
    s_barrier
    v_cmp_gt_u32 vcc, 64, v0
    s_and_saveexec_b64 s[24:25], vcc
    s_cbranch_execz {name}_exit
    v_lshlrev_b32 v5, 2, v0
    """)
    for i in range(32):
        A(f"ds_read_b32 v{64+i}, v5 offset:{4096+i*256}")
        if i % 8 == 7: A("s_waitcnt lgkmcnt(0)")
    for st in (16, 8, 4, 2, 1):
        for i in range(st): A(f"v_add_f32 v{64+i}, v{64+i}, v{64+i+st}")
    A(f"""
    v_cvt_pk_bf16_f32 v33, v64, v64
    v_lshlrev_b32 v33, 16, v33
    v_add_f32 v34, 1.0, v33
    v_cvt_pk_bf16_f32 v34, v34, v34
    v_lshlrev_b32 v34, 16, v34
    s_lshr_b32 s22, s2, 4
    s_cmp_eq_u32 s22, 1
    s_cselect_b32 s23, 1, 0
    s_cmp_eq_u32 s22, 4
    s_cselect_b32 s23, 1, s23
    s_cmp_eq_u32 s23, 1
    s_cbranch_scc0 {name}_nop1
    v_mov_b32 v33, v34
    {name}_nop1:
    s_lshl_b32 s22, s2, 8
    s_add_u32 s22, s22, {WS['MOD']}
    buffer_store_dword v33, v5, s[16:19], s22 offen sc1
    s_cmp_ge_u32 s2, 32
    s_cbranch_scc1 {name}_exit
    s_waitcnt vmcnt(0)
    s_mov_b64 exec, 1
    v_mov_b32 v6, 0
    v_mov_b32 v7, 1
    buffer_atomic_add v7, v6, s[36:39], 0 offen
    s_endpgm
    """)
    A.label(f"{name}_fill")
    A(f"""
    s_sub_u32 s22, s2, 224
    s_lshl_b32 s23, s22, 12
    s_add_u32 s23, s23, {WS['FLAGS']}
    v_lshlrev_b32 v1, 4, v0
    v_mov_b32 v4, 0
    v_mov_b32 v5, 0
    v_mov_b32 v6, 0
    v_mov_b32 v7, 0
    buffer_store_dwordx4 v[4:7], v1, s[16:19], s23 offen
    v_mov_b32 v8, -1
    v_mov_b32 v9, -1
    v_mov_b32 v10, -1
    v_mov_b32 v11, -1
    s_lshl_b32 s22, s22, 12
    s_add_u32 s22, s22, {WS['RA']}
    {name}_floop:
    buffer_store_dwordx4 v[8:11], v1, s[16:19], s22 offen
    s_add_u32 s22, s22, {32*4096}
    s_cmp_lt_u32 s22, {WS['RING_END']}
    s_cbranch_scc1 {name}_floop
    s_endpgm
    """)
    A.label(f"{name}_ln")
    vX = 32; vL = 96; vM = 128
    srd(A, 8, 30, 31, 2048*1024*2)
    A(f"""
    s_sub_u32 s2, s2, 96
    v_and_b32 v1, 63, v0
    v_lshrrev_b32 v2, 6, v0
    s_nop 0
    v_readfirstlane_b32 s22, v2
    v_and_b32 v3, 15, v1
    v_lshrrev_b32 v4, 4, v1
    v_lshlrev_b32 v5, 4, v1
    v_lshlrev_b32 v6, 11, v3
    v_lshl_add_u32 v6, v4, 3, v6
    s_lshl_b32 s23, s2, 15
    s_lshl_b32 s24, s22, 9
    s_add_u32 s23, s23, s24
    """)
    for kb in range(8):
        A(f"buffer_load_dwordx2 v[{vL+4*kb}:{vL+4*kb+1}], v6, s[8:11], s23 offen offset:{kb*64}")
        A(f"buffer_load_dwordx2 v[{vL+4*kb+2}:{vL+4*kb+3}], v6, s[8:11], s23 offen offset:{kb*64+32}")
    A(f"""
    v_lshlrev_b32 v7, 4, v4
    s_lshl_b32 s24, s22, 10
    s_add_u32 s26, s24, {WS['MOD']}
    s_add_u32 s27, s24, {WS['MOD'] + 4096}
    s_waitcnt vmcnt(0)
    """)
    for q in range(32):
        A(f"v_lshlrev_b32 v{vX+2*q}, 16, v{vL+q}")
        A(f"v_and_b32 v{vX+2*q+1}, 0xffff0000, v{vL+q}")
    def reduce_all(reg, ldsoff):
        A(f"""
        v_mov_b32 v9, v{reg}
        s_nop 1
        v_permlane16_swap_b32 v{reg}, v9
        s_nop 1
        v_add_f32 v{reg}, v{reg}, v9
        v_mov_b32 v9, v{reg}
        s_nop 1
        v_permlane32_swap_b32 v{reg}, v9
        s_nop 1
        v_add_f32 v{reg}, v{reg}, v9
        v_lshlrev_b32 v10, 2, v3
        s_lshl_b32 s24, s22, 6
        v_add_u32 v11, s24, v10
        ds_write_b32 v11, v{reg} offset:{ldsoff}
        s_waitcnt lgkmcnt(0)
        s_barrier
        ds_read_b32 v12, v10 offset:{ldsoff}
        ds_read_b32 v13, v10 offset:{ldsoff+64}
        ds_read_b32 v14, v10 offset:{ldsoff+128}
        ds_read_b32 v15, v10 offset:{ldsoff+192}
        s_waitcnt lgkmcnt(0)
        v_add_f32 v12, v12, v13
        v_add_f32 v14, v14, v15
        v_add_f32 v{reg}, v12, v14
        """)
    A(f"v_add_f32 v8, v{vX}, v{vX+1}"); A(f"v_add_f32 v16, v{vX+2}, v{vX+3}"); A(f"v_add_f32 v17, v{vX+4}, v{vX+5}"); A(f"v_add_f32 v18, v{vX+6}, v{vX+7}")
    for q in range(8, 64, 4):
        A(f"v_add_f32 v8, v8, v{vX+q}"); A(f"v_add_f32 v16, v16, v{vX+q+1}"); A(f"v_add_f32 v17, v17, v{vX+q+2}"); A(f"v_add_f32 v18, v18, v{vX+q+3}")
    A("v_add_f32 v8, v8, v16"); A("v_add_f32 v17, v17, v18"); A("v_add_f32 v8, v8, v17")
    reduce_all(8, 0)
    A(f"v_mul_f32 v16, {hex(f2u(1/1024))}, v8")
    for q in range(64): A(f"v_sub_f32 v{vX+q}, v{vX+q}, v16")
    A(f"v_mul_f32 v8, v{vX}, v{vX}"); A(f"v_mul_f32 v17, v{vX+1}, v{vX+1}")
    for q in range(2, 64, 2):
        A(f"v_fmac_f32 v8, v{vX+q}, v{vX+q}"); A(f"v_fmac_f32 v17, v{vX+q+1}, v{vX+q+1}")
    A("v_add_f32 v8, v8, v17")
    reduce_all(8, 256)
    A(f"""
    v_mov_b32 v17, {hex(f2u(1e-5))}
    v_fmac_f32 v17, {hex(f2u(1/1024))}, v8
    v_rsq_f32 v17, v17
    s_nop 0
    """)
    for q in range(64): A(f"v_mul_f32 v{vX+q}, v{vX+q}, v17")
    A(f"""
    v_mov_b32 v18, 0
    s_mov_b32 s34, 4000000
    {name}_wm:
    buffer_load_dword v19, v18, s[36:39], 0 offen sc1
    s_waitcnt vmcnt(0)
    v_readfirstlane_b32 s35, v19
    s_cmp_ge_u32 s35, 32
    s_cbranch_scc1 {name}_wmok
    s_sub_u32 s34, s34, 1
    s_cbranch_scc1 {name}_exit
    s_sleep 2
    s_branch {name}_wm
    {name}_wmok:
    """)
    for kb in range(8):
        m = vM + kb*16
        A(f"buffer_load_dwordx4 v[{m}:{m+3}], v7, s[16:19], s27 offen offset:{kb*128} sc1")
        A(f"buffer_load_dwordx4 v[{m+4}:{m+7}], v7, s[16:19], s27 offen offset:{kb*128+64} sc1")
        A(f"buffer_load_dwordx4 v[{m+8}:{m+11}], v7, s[16:19], s26 offen offset:{kb*128} sc1")
        A(f"buffer_load_dwordx4 v[{m+12}:{m+15}], v7, s[16:19], s26 offen offset:{kb*128+64} sc1")
    A(f"""
    s_lshl_b32 s28, s2, 15
    s_lshl_b32 s24, s22, 13
    s_add_u32 s28, s28, s24
    s_add_u32 s28, s28, {WS['H']}
    s_add_u32 s29, s28, 4096
    """)
    for kb in range(8):
        m = vM + kb*16
        A(f"s_waitcnt vmcnt({4*(7-kb) + kb})") if False else None
        if kb == 0: A("s_waitcnt vmcnt(0)")
        x0 = vX + 8*kb
        for e in range(8):
            A(f"v_fma_f32 v{x0+e}, v{x0+e}, v{m+e}, v{m+8+e}")
        o = 20 + (kb % 2)*4
        for q in range(4):
            A(f"v_cvt_pk_bf16_f32 v{o+q}, v{x0+2*q}, v{x0+2*q+1}")
        A(f"buffer_store_dwordx4 v[{o}:{o+3}], v5, s[16:19], s{28 if kb < 4 else 29} offen offset:{(kb%4)*1024}")
    A.label(f"{name}_exit")
    A("s_endpgm")
    return A.text(), kernel_desc(name, 256, 48, 256)
```

```python
from asmlib import *
from gemm import *
from kern_g1 import common_regs, lane_setup
import struct, math
def f2u(x): return struct.unpack('<I', struct.pack('<f', x))[0]

def gen_small(name, kind, ksps=2, S=4, dbg='', splitk=False):
    A = Asm(); A.raw(kernel_header(name))
    sWS=8; sWt=12; sX=16; sW=20; sWr=21; sWc=22; sTr=23; sTc=24; sOffR=25; sOffC=26; sCnt=27; sM0R=28; sM0C=29; s1=30; s2=31; s3=32; s4=33; sB=40
    cfg = dict(
        g4=dict(R='T', C='F', ntr=8, ntc=16, nst=32, wt='Wo', wsize=4096*1024*2),
        g5=dict(R='T', C='T', ntr=28, ntc=8, nst=16, wt='w1', wsize=2048*3584*2),
        g6=dict(R='F', C='T', ntr=8, ntc=16, nst=28, wt='w2', wsize=3584*2048*2))[kind]
    ntiles = cfg['ntr']*cfg['ntc']
    if splitk: ntiles *= 2
    sKh = 48
    sR = Side(cfg['R'], 4, ksps); sC = Side(cfg['C'], 4, ksps)
    nst = cfg['nst']*4//ksps; bk = 32*ksps
    d = common_regs(4, 4, sR, sC)
    A(f"""
    s_cmp_ge_u32 s2, {ntiles}
    s_cbranch_scc1 {name}_exit
    s_load_dwordx2 s[4:5], s[0:1], {KA[cfg['wt']]}
    s_load_dwordx2 s[6:7], s[0:1], {KA['ws']}
    s_load_dwordx2 s[34:35], s[0:1], {KA['x'] if kind == 'g4' else (KA['b1'] if kind == 'g5' else KA['b2'])}
    s_load_dwordx2 s[36:37], s[0:1], {KA['out']}
    """)
    lane_setup(A, d, sW)
    dside, oside, per = (sTr, sTc, 4) if kind != 'g5' else (sTc, sTr, 7)
    A(f"""
    s_and_b32 s{s1}, s2, 7
    s_lshr_b32 s{s2}, s2, 3
    {'s_and_b32 s%d, s%d, 1' % (sKh, s2) if splitk else ''}
    {'s_lshr_b32 s%d, s%d, 1' % (s2, s2) if splitk else ''}
    s_and_b32 s{dside}, s{s1}, 1
    s_lshl_b32 s{dside}, s{dside}, 2
    s_and_b32 s{s3}, s{s2}, 3
    s_add_u32 s{dside}, s{dside}, s{s3}
    s_lshr_b32 s{oside}, s{s1}, 1
    s_mul_i32 s{oside}, s{oside}, {per}
    s_lshr_b32 s{s3}, s{s2}, 2
    s_add_u32 s{oside}, s{oside}, s{s3}
    """)
    if 'same' in dbg:
        A(f"s_mov_b32 s{sTr}, 0"); A(f"s_mov_b32 s{sTc}, 0")
    A(f"""
    s_lshr_b32 s{sWr}, s{sW}, 1
    s_and_b32 s{sWc}, s{sW}, 1
    s_waitcnt lgkmcnt(0)
    s_mov_b32 s{sWS}, s6
    s_mov_b32 s{sWS+1}, s7
    s_mov_b32 s{sWS+2}, {WS_SIZE}
    s_mov_b32 s{sWS+3}, 0x20000
    s_mov_b32 s{sWt}, s4
    s_mov_b32 s{sWt+1}, s5
    s_mov_b32 s{sWt+2}, {cfg['wsize']}
    s_mov_b32 s{sWt+3}, 0x20000
    s_mov_b32 s{sX}, s34
    s_mov_b32 s{sX+1}, s35
    s_mov_b32 s{sX+2}, {2048*1024*2 if kind == 'g4' else (3584*2 if kind == 'g5' else 2048*2)}
    s_mov_b32 s{sX+3}, 0x20000
    """)
    ws = f"s[{sWS}:{sWS+3}]"; wt = f"s[{sWt}:{sWt+3}]"; xs = f"s[{sX}:{sX+3}]"
    regs = dict(d); regs.update(sM0R=sM0R, sM0C=sM0C, sCnt=sCnt, ldsR=0, ldsC=65536, acc=lambda i,j: (i*4+j)*4)
    tmp = {'v': d['t'], 's': (s1, s2)}
    if kind == 'g4':
        setup_side(A, sR, regs, 'R', sW, sWr, d['vLane'], d['vCol'], d['vG'], tmp, 2048, None, 0)
        setup_side(A, sC, regs, 'C', sW, sWc, d['vLane'], d['vCol'], d['vG'], tmp, None, 128, 65536)
        A(f"s_lshl_b32 s{sOffR}, s{sTr}, 8")
        A(f"s_lshl_b32 s{sOffC}, s{sTc}, 20")
        A(f"s_add_u32 s{sOffC}, s{sOffC}, {WS['O']}")
        gen_gemm_core(A, sR, sC, nst, S, wt, ws, sOffR, sOffC, bk*2048, ksps*1024, regs, pfx=name, dbg=dbg)
    elif kind == 'g5':
        setup_side(A, sR, regs, 'R', sW, sWr, d['vLane'], d['vCol'], d['vG'], tmp, 7168, None, 0)
        setup_side(A, sC, regs, 'C', sW, sWc, d['vLane'], d['vCol'], d['vG'], tmp, 2048, None, 65536)
        A(f"s_lshl_b32 s{sOffR}, s{sTr}, 8")
        A(f"s_lshl_b32 s{sOffC}, s{sTc}, 8")
        A(f"s_add_u32 s{sOffC}, s{sOffC}, {WS['H2']}")
        gen_gemm_core(A, sR, sC, nst, S, wt, ws, sOffR, sOffC, bk*7168, bk*2048, regs, pfx=name, dbg=dbg)
    else:
        setup_side(A, sR, regs, 'R', sW, sWr, d['vLane'], d['vCol'], d['vG'], tmp, None, 112, 0)
        setup_side(A, sC, regs, 'C', sW, sWc, d['vLane'], d['vCol'], d['vG'], tmp, 4096, None, 65536)
        A(f"s_mul_i32 s{sOffR}, s{sTr}, {8*112*1024}")
        A(f"s_add_u32 s{sOffR}, s{sOffR}, {WS['U']}")
        A(f"s_lshl_b32 s{sOffC}, s{sTc}, 8")
        if splitk:
            nst //= 2
            A(f"s_mul_i32 s{s1}, s{sKh}, {56*1024}")
            A(f"s_add_u32 s{sOffR}, s{sOffR}, s{s1}")
            A(f"s_mul_i32 s{s1}, s{sKh}, {1792*4096}")
            A(f"s_add_u32 s{sOffC}, s{sOffC}, s{s1}")
        gen_gemm_core(A, sR, sC, nst, S, ws, wt, sOffR, sOffC, ksps*1024, bk*4096, regs, pfx=name, dbg=dbg)
    acc = regs['acc']; ep = d['vEp']; t1, t2, t3 = d['t']
    vF = d['vFR']
    vF2 = d['vFC']
    A.nop(8)
    if kind == 'g4':
        A(f"""
        v_lshlrev_b32 v{t1}, 11, v{d['vCol']}
        v_lshl_add_u32 v{t1}, v{d['vG']}, 3, v{t1}          ; col*2048 + g*8
        v_lshlrev_b32 v{t2}, 4, v{d['vG']}                  ; g*16
        s_lshl_b32 s{s1}, s{sTr}, 7
        s_lshl_b32 s{s2}, s{sWr}, 6
        s_add_u32 s{s1}, s{s1}, s{s2}                       ; dbase
        s_lshl_b32 s{s3}, s{s1}, 2
        s_add_u32 s{s3}, s{s3}, {WS['MOD'] + 2*4096}
        """)
        for p in range(2):
            for hh in range(2):
                A(f"buffer_load_dwordx4 {v(vF2+8*p+4*hh,4)}, v{t2}, {ws}, s{s3} offen offset:{(32*p+16*hh)*4}")
        A(f"""
        s_lshl_b32 s{s2}, s{sTc}, 3
        s_lshl_b32 s{s4}, s{sWc}, 2
        s_add_u32 s{s2}, s{s2}, s{s4}
        s_lshl_b32 s{s4}, s{s2}, 15                         ; *16*2048
        s_lshl_b32 s{s3}, s{s1}, 1
        s_add_u32 s{s4}, s{s4}, s{s3}                       ; x soffset
        s_lshl_b32 s{s2}, s{s2}, 15
        s_lshl_b32 s{s3}, s{s1}, 5
        s_add_u32 s{s2}, s{s2}, s{s3}
        s_add_u32 s{s2}, s{s2}, {WS['X1']}
        """)
        for j in range(4):
            A(f"s_add_u32 s{s3}, s{s4}, {j*16*2048}")
            for p in range(2):
                for hh in range(2):
                    A(f"buffer_load_dwordx2 {v(vF+(j*2+p)*4+2*hh,2)}, v{t1}, {xs}, s{s3} offen offset:{(32*p+16*hh)*2}")
        A("s_waitcnt vmcnt(0)")
        k = 0
        for j in range(4):
            A(f"s_add_u32 s{s3}, s{s2}, {j*32768}")
            for p in range(2):
                e = ep + (k % 4)*8; k += 1
                xr = vF + (j*2+p)*4
                for hh in range(2):
                    for r in range(4):
                        A(f"v_accvgpr_read_b32 v{e+4*hh+r}, a{acc(2*p+hh, j)+r}")
                for hh in range(2):
                    for q in range(2):
                        A(f"v_lshlrev_b32 v{t3}, 16, v{xr+2*hh+q}")
                        A(f"v_fma_f32 v{e+4*hh+2*q}, v{e+4*hh+2*q}, v{vF2+8*p+4*hh+2*q}, v{t3}")
                        A(f"v_and_b32 v{t3}, 0xffff0000, v{xr+2*hh+q}")
                        A(f"v_fma_f32 v{e+4*hh+2*q+1}, v{e+4*hh+2*q+1}, v{vF2+8*p+4*hh+2*q+1}, v{t3}")
                for q in range(4):
                    A(f"v_cvt_pk_bf16_f32 v{e+q}, v{e+2*q}, v{e+2*q+1}")
                A(f"buffer_store_dwordx4 {v(e,4)}, v{d['vL16']}, {ws}, s{s3} offen offset:{p*1024}")
    elif kind == 'g5':
        A(f"""
        v_lshlrev_b32 v{t1}, 3, v{d['vG']}
        s_lshl_b32 s{s1}, s{sTr}, 7
        s_lshl_b32 s{s2}, s{sWr}, 6
        s_add_u32 s{s1}, s{s1}, s{s2}                       ; fbase
        s_lshl_b32 s{s3}, s{s1}, 1
        """)
        for p in range(2):
            for hh in range(2):
                A(f"buffer_load_dwordx2 {v(vF+4*p+2*hh,2)}, v{t1}, {xs}, s{s3} offen offset:{(32*p+16*hh)*2}")
        A(f"""
        s_lshl_b32 s{s2}, s{sTc}, 3
        s_lshl_b32 s{s4}, s{sWc}, 2
        s_add_u32 s{s2}, s{s2}, s{s4}
        s_mul_i32 s{s2}, s{s2}, {112*1024}
        s_lshl_b32 s{s3}, s{s1}, 5
        s_add_u32 s{s2}, s{s2}, s{s3}
        s_add_u32 s{s2}, s{s2}, {WS['U']}
        s_mov_b32 s{sB}, {hex(f2u(0.044715))}
        s_mov_b32 s{sB+1}, {hex(f2u(-2.0*math.sqrt(2.0/math.pi)*math.log2(math.e)))}
        s_waitcnt vmcnt(0)
        """)
        for p in range(2):
            for hh in range(2):
                for q in range(2):
                    A(f"v_lshlrev_b32 v{vF2+8*p+4*hh+2*q}, 16, v{vF+4*p+2*hh+q}")
                    A(f"v_and_b32 v{vF2+8*p+4*hh+2*q+1}, 0xffff0000, v{vF+4*p+2*hh+q}")
        k = 0
        for j in range(4):
            A(f"s_add_u32 s{s3}, s{s2}, {j*112*1024}")
            for p in range(2):
                e = ep + (k % 2)*16; k += 1
                w = e + 8
                for hh in range(2):
                    for r in range(4):
                        A(f"v_accvgpr_read_b32 v{e+4*hh+r}, a{acc(2*p+hh, j)+r}")
                for q in range(8): A(f"v_add_f32 v{e+q}, v{e+q}, v{vF2+8*p+q}")
                for q in range(8): A(f"v_mul_f32 v{w+q}, v{e+q}, v{e+q}")
                for q in range(8): A(f"v_fma_f32 v{w+q}, v{w+q}, s{sB}, 1.0")
                for q in range(8): A(f"v_mul_f32 v{w+q}, v{w+q}, v{e+q}")
                for q in range(8): A(f"v_mul_f32 v{w+q}, s{sB+1}, v{w+q}")
                for q in range(8): A(f"v_exp_f32 v{w+q}, v{w+q}")
                A("s_nop 0")
                for q in range(8): A(f"v_add_f32 v{w+q}, 1.0, v{w+q}")
                for q in range(8): A(f"v_rcp_f32 v{w+q}, v{w+q}")
                A("s_nop 0")
                for q in range(8): A(f"v_mul_f32 v{e+q}, v{e+q}, v{w+q}")
                for q in range(4):
                    A(f"v_cvt_pk_bf16_f32 v{e+q}, v{e+2*q}, v{e+2*q+1}")
                A(f"buffer_store_dwordx4 {v(e,4)}, v{d['vL16']}, {ws}, s{s3} offen offset:{p*1024}")
    else:
        A(f"""
        s_mov_b32 s{sX+4}, s36
        s_mov_b32 s{sX+5}, s37
        s_mov_b32 s{sX+6}, {2048*1024*2}
        s_mov_b32 s{sX+7}, 0x20000
        """) if False else None
        sO = 44
        A(f"""
        s_mov_b32 s{sO}, s36
        s_mov_b32 s{sO+1}, s37
        s_mov_b32 s{sO+2}, {2048*1024*2}
        s_mov_b32 s{sO+3}, 0x20000
        v_lshlrev_b32 v{t2}, 4, v{d['vG']}
        s_lshl_b32 s{s1}, s{sTr}, 7
        s_lshl_b32 s{s2}, s{sWr}, 6
        s_add_u32 s{s1}, s{s1}, s{s2}                       ; dbase
        s_lshl_b32 s{s3}, s{s1}, 2
        s_add_u32 s{s3}, s{s3}, {WS['MOD'] + 5*4096}
        """)
        for p in range(2):
            for hh in range(2):
                A(f"buffer_load_dwordx4 {v(vF2+8*p+4*hh,4)}, v{t2}, {ws}, s{s3} offen offset:{(32*p+16*hh)*4}")
        A(f"""
        s_lshl_b32 s{s2}, s{sTc}, 3
        s_lshl_b32 s{s4}, s{sWc}, 2
        s_add_u32 s{s2}, s{s2}, s{s4}
        v_lshlrev_b32 v{t1}, 1, v{d['vCol']}                ; col*2
        s_lshl_b32 s{s3}, s{s2}, 5                          ; s tile*16*2
        """)
        for j in range(4):
            A(f"buffer_load_ushort v{vF2+16+j}, v{t1}, {xs}, s{s3} offen offset:{j*32}")
        A(f"""
        s_lshl_b32 s{s4}, s{s2}, 15
        s_lshl_b32 s{s3}, s{s1}, 5
        s_add_u32 s{s4}, s{s4}, s{s3}
        s_add_u32 s{s4}, s{s4}, {WS['X1']}                   ; X1C base
        """)
        for j in range(4):
            A(f"s_add_u32 s{s3}, s{s4}, {j*32768}")
            for p in range(2):
                A(f"buffer_load_dwordx4 {v(vF+(j*2+p)*4,4)}, v{d['vL16']}, {ws}, s{s3} offen offset:{p*1024}")
        A(f"""
        v_lshlrev_b32 v{t1}, 11, v{d['vCol']}
        v_and_b32 v{t3}, 1, v{d['vG']}
        v_lshl_add_u32 v{t1}, v{t3}, 5, v{t1}
        v_lshrrev_b32 v{t3}, 1, v{d['vG']}
        v_lshl_add_u32 v{t1}, v{t3}, 4, v{t1}
        s_lshl_b32 s{s2}, s{s2}, 15
        s_lshl_b32 s{s3}, s{s1}, 1
        s_add_u32 s{s2}, s{s2}, s{s3}
        s_waitcnt vmcnt(0)
        """)
        for j in range(4):
            A(f"v_lshlrev_b32 v{vF2+16+j}, 16, v{vF2+16+j}")
        def fin(js, part):
            k = 0
            for j in js:
                A(f"s_add_u32 s{s3}, s{s2}, {j*16*2048}")
                for p in range(2):
                    e = ep + (k % 4)*8
                    xr = vF + (j*2+p)*4
                    for hh in range(2):
                        for r in range(4):
                            A(f"v_accvgpr_read_b32 v{e+4*hh+r}, a{acc(2*p+hh, j)+r}")
                    if part is not None:
                        jj = js.index(j)
                        for hh in range(2):
                            for r in range(4):
                                A(f"v_add_f32 v{e+4*hh+r}, v{e+4*hh+r}, v{part + (jj*4 + 2*p+hh)*4 + r}")
                    k += 1
                    for q in range(8): A(f"v_add_f32 v{e+q}, v{e+q}, v{vF2+16+j}")
                    for q in range(4):
                        A(f"v_lshlrev_b32 v{t3}, 16, v{xr+q}")
                        A(f"v_fma_f32 v{e+2*q}, v{e+2*q}, v{vF2+8*p+2*q}, v{t3}")
                        A(f"v_and_b32 v{t3}, 0xffff0000, v{xr+q}")
                        A(f"v_fma_f32 v{e+2*q+1}, v{e+2*q+1}, v{vF2+8*p+2*q+1}, v{t3}")
                    for q in range(4):
                        A(f"v_cvt_pk_bf16_f32 v{e+q}, v{e+2*q}, v{e+2*q+1}")
                    A(f"""
                    s_nop 1
                    v_permlane16_swap_b32 v{e}, v{e+2}
                    v_permlane16_swap_b32 v{e+1}, v{e+3}
                    s_nop 1
                    buffer_store_dwordx4 {v(e,4)}, v{t1}, s[{sO}:{sO+3}], s{s3} offen offset:{p*64}
                    """)
        if not splitk:
            fin([0,1,2,3], None)
        else:
            vP = 160
            sE1, sE2, sE3 = 49, 50, 51
            A(f"""
            s_lshl_b32 s{sE1}, s{sTr}, 4
            s_add_u32 s{sE1}, s{sE1}, s{sTc}
            s_lshl_b32 s{sE1}, s{sE1}, 1
            s_add_u32 s{sE2}, s{sE1}, s{sKh}
            s_xor_b32 s{sE3}, s{sE2}, 1
            s_lshl_b32 s{sE2}, s{sE2}, 2
            s_add_u32 s{sE2}, s{sE2}, s{sW}
            s_lshl_b32 s{sE3}, s{sE3}, 2
            s_add_u32 s{sE3}, s{sE3}, s{sW}
            s_lshl_b32 s{sE1}, s{sE2}, 13
            s_add_u32 s{sE1}, s{sE1}, {WS['PX']}
            s_add_u32 s52, s{sE1}, 4096
            s_cmp_eq_u32 s{sKh}, 0
            s_cbranch_scc0 {name}_k1s
            """)
            def send(js):
                for jj, j in enumerate(js):
                    for i in range(4):
                        b = jj*4 + i
                        A(f"buffer_store_dwordx4 {a(acc(i,j),4)}, v{d['vL16']}, {ws}, s{sE1 if b < 4 else 52} offen offset:{(b%4)*1024} sc1")
            send([2,3]); A(f"s_branch {name}_sent"); A.label(f"{name}_k1s"); send([0,1]); A.label(f"{name}_sent")
            A(f"""
            s_waitcnt vmcnt(0)
            s_lshl_b32 s{sE2}, s{sE2}, 4
            s_add_u32 s{sE2}, s{sE2}, {FL_G6}
            v_mov_b32 v{vP}, 1
            v_mov_b32 v{vP+1}, 0
            s_mov_b64 s[54:55], exec
            s_mov_b64 exec, 1
            buffer_store_dword v{vP}, v{vP+1}, {ws}, s{sE2} offen sc1
            s_mov_b64 exec, s[54:55]
            s_lshl_b32 s{sE1}, s{sE3}, 13
            s_add_u32 s{sE1}, s{sE1}, {WS['PX']}
            s_add_u32 s52, s{sE1}, 4096
            s_lshl_b32 s{sE3}, s{sE3}, 4
            s_add_u32 s{sE3}, s{sE3}, {FL_G6}
            s_mov_b32 s53, 2000000
            {name}_wp:
            buffer_load_dword v{vP}, v{vP+1}, {ws}, s{sE3} offen sc1
            s_waitcnt vmcnt(0)
            v_readfirstlane_b32 s{sE2}, v{vP}
            s_cmp_eq_u32 s{sE2}, 1
            s_cbranch_scc1 {name}_wpok
            s_sub_u32 s53, s53, 1
            s_cbranch_scc1 {name}_exit
            s_sleep 1
            s_branch {name}_wp
            {name}_wpok:
            """)
            for b in range(8):
                A(f"buffer_load_dwordx4 {v(vP+4*b,4)}, v{d['vL16']}, {ws}, s{sE1 if b < 4 else 52} offen offset:{(b%4)*1024} sc1")
            A("s_waitcnt vmcnt(0)")
            A(f"s_cmp_eq_u32 s{sKh}, 0")
            A(f"s_cbranch_scc0 {name}_k1f")
            fin([0,1], vP); A(f"s_branch {name}_exit"); A.label(f"{name}_k1f"); fin([2,3], vP)
    print(name, 'vgprs', d['R'].next)
    A.label(f"{name}_exit")
    A("s_endpgm")
    acc_off = (d['R'].next + 3)//4*4
    return A.text(), kernel_desc(name, 256+64, 64, 256)
```

```python
from asmlib import *
from gemm import *
from kern_g1 import common_regs
from kern_attn import attn_body
import chain as chainmod
import struct, math
def f2u(x): return struct.unpack('<I', struct.pack('<f', x))[0]

sWS=8; sWt=12; sAux=16; sW=20; sWr=21; sWc=22; sTn=23; sTm=24; sOffR=25; sOffC=26; sCnt=27; sM0R=28; sM0C=29
s1=30; s2=31; sMat=32; sHead=33; sSeg=34; sBase=35; s3=36; s4=37; sX=38; sTask=39; sBud=40; sSig=41; sEx=42
sPq=44; sPk=46; sPv=48; sPo=50; sPx=52; sCexp=54; sTg=55; sA1=56; sA2=57; sA3=58; sA4=59; sI=60
LDS_TASK = 131072
ws = f"s[{sWS}:{sWS+3}]"; wt = f"s[{sWt}:{sWt+3}]"; aux = f"s[{sAux}:{sAux+3}]"
vLane, vCol, vG, vL16 = 1, 2, 3, 4
WBUD = 2000000

def wait_counter(A, name, soff_expr_lines, target, lbl, sleep=12):
    A(soff_expr_lines)
    A(f"""
    s_cmp_lg_u32 s{sW}, 0
    s_cbranch_scc1 {lbl}_ok
    v_mov_b32 v5, 0
    {lbl}:
    buffer_load_dword v6, v5, {ws}, s{s1} offen sc1
    s_waitcnt vmcnt(0)
    v_readfirstlane_b32 s{s2}, v6
    s_cmp_ge_u32 s{s2}, {target}
    s_cbranch_scc1 {lbl}_ok
    s_sub_u32 s{sBud}, s{sBud}, 1
    s_cbranch_scc1 {name}_exit
    s_sleep {sleep}
    s_branch {lbl}
    {lbl}_ok:
    s_barrier
    """)

def set_wt(A, p, size):
    A(f"s_mov_b32 s{sWt}, s{p}"); A(f"s_mov_b32 s{sWt+1}, s{p+1}"); A(f"s_mov_b32 s{sWt+2}, {size}"); A(f"s_mov_b32 s{sWt+3}, 0x20000")

def store_pack(A, e, srcs, addr_v, soff, off, fl):
    for hh in range(2):
        for r in range(4): A(f"v_accvgpr_read_b32 v{e+4*hh+r}, a{srcs[hh]+r}")
    A(f"v_cvt_pk_bf16_f32 v{e}, v{e}, v{e+1}")
    A(f"v_cvt_pk_bf16_f32 v{e+1}, v{e+2}, v{e+3}")
    A(f"v_cvt_pk_bf16_f32 v{e+2}, v{e+4}, v{e+5}")
    A(f"v_cvt_pk_bf16_f32 v{e+3}, v{e+6}, v{e+7}")
    A(f"buffer_store_dwordx4 {v(e,4)}, v{addr_v}, {ws}, s{soff} offen offset:{off}{fl}")

def g1_tile(A, name, n, ksps, S, isv, fl):
    sF = Side('F', n, ksps); sT = Side('T', n, ksps)
    sR, sC = (sF, sT) if isv else (sT, sF)
    d = common_regs(n, n, sR, sC)
    regs = dict(d); regs.update(sM0R=sM0R, sM0C=sM0C, sCnt=sCnt, ldsR=0, ldsC=65536, acc=lambda i,j: (i*n+j)*4)
    tmp = {'v': d['t'], 's': (s1, s2)}
    setup_side(A, sR, regs, 'R', sW, sWr, vLane, vCol, vG, tmp, 8192, 32, 0)
    setup_side(A, sC, regs, 'C', sW, sWc, vLane, vCol, vG, tmp, 8192, 32, 65536)
    sH, sWo = (sOffR, sOffC) if isv else (sOffC, sOffR)
    A(f"""
    s_lshl_b32 s{sH}, s{sTm}, 15
    s_add_u32 s{sH}, s{sH}, {WS['H']}
    s_lshl_b32 s{sWo}, s{sHead}, 8
    """)
    stepH, stepW = ksps*1024, 32*ksps*8192
    if isv: gen_gemm_core(A, sR, sC, 32//ksps, S, ws, wt, sOffR, sOffC, stepH, stepW, regs, pfx=name)
    else:   gen_gemm_core(A, sR, sC, 32//ksps, S, wt, ws, sOffR, sOffC, stepW, stepH, regs, pfx=name)
    ep = d['vEp']; acc = regs['acc']
    A.nop(8)
    tokhalf, feathalf = (sWr, sWc) if isv else (sWc, sWr)
    A(f"""
    s_lshr_b32 s{sSeg}, s{sTm}, 1
    s_mul_i32 s{s1}, s{tokhalf}, {n//2}
    s_add_u32 s{sSeg}, s{sSeg}, s{s1}
    s_lshl_b32 s{sBase}, s{sSeg}, 5
    s_add_u32 s{sBase}, s{sBase}, s{sHead}
    """)
    if n == 8: A(f"s_add_u32 s{sBase}, s{sBase}, s{feathalf}")
    A(f"s_lshl_b32 s{sBase}, s{sBase}, 13")
    if n == 4:
        A(f"s_lshl_b32 s{s1}, s{feathalf}, {12 if isv else 11}")
        A(f"s_add_u32 s{sBase}, s{sBase}, s{s1}")
    if not isv:
        A(f"s_lshl_b32 s{s1}, s{sMat}, 24")
        A(f"s_add_u32 s{sBase}, s{sBase}, s{s1}")
        A(f"s_add_u32 s{sBase}, s{sBase}, {WS['Q']}")
        k = 0
        for j in range(n):
            A(f"s_add_u32 s{s1}, s{sBase}, {(j>>1)*(1<<18) + (j&1)*4096}")
            for p in range(n//2):
                e = ep + (k % 4)*8; k += 1
                store_pack(A, e, (acc(2*p, j), acc(2*p+1, j)), vL16, s1, p*1024, fl)
    else:
        A(f"s_add_u32 s{sBase}, s{sBase}, {WS['VT']}")
        k = 0
        for pp in range(n//2):
            for j in range(n):
                if j % 4 == 0:
                    A(f"s_add_u32 s{s1}, s{sBase}, {pp*(1<<18) + (j//4)*4096}")
                e = ep + (k % 4)*8; k += 1
                store_pack(A, e, (acc(2*pp, j), acc(2*pp+1, j)), vL16, s1, (j%4)*1024, fl)

def g4_tile(A, name, ksps, S, fl, ldfl, split=False, wname=None):
    sR = Side('T', 4, ksps); sC = Side('F', 4, ksps)
    d = common_regs(4, 4, sR, sC)
    regs = dict(d); regs.update(sM0R=sM0R, sM0C=sM0C, sCnt=sCnt, ldsR=0, ldsC=65536, acc=lambda i,j: (i*4+j)*4)
    tmp = {'v': d['t'], 's': (s1, s2)}
    set_wt(A, sPo, 4096*1024*2)
    A(f"s_mov_b32 s{sAux}, s{sPx}"); A(f"s_mov_b32 s{sAux+1}, s{sPx+1}"); A(f"s_mov_b32 s{sAux+2}, {2048*1024*2}"); A(f"s_mov_b32 s{sAux+3}, 0x20000")
    setup_side(A, sR, regs, 'R', sW, sWr, vLane, vCol, vG, tmp, 2048, None, 0)
    setup_side(A, sC, regs, 'C', sW, sWc, vLane, vCol, vG, tmp, None, 128, 65536)
    A(f"s_lshl_b32 s{sOffR}, s{sX}, 8")
    A(f"s_lshl_b32 s{sOffC}, s{sTg}, 20")
    A(f"s_add_u32 s{sOffC}, s{sOffC}, {WS['O']}")
    bk = 32*ksps
    if split:
        A(f"s_lshl_b32 s{s1}, s{sI}, 20")
        A(f"s_add_u32 s{sOffR}, s{sOffR}, s{s1}")
        A(f"s_lshl_b32 s{s1}, s{sI}, 14")
        A(f"s_add_u32 s{sOffC}, s{sOffC}, s{s1}")
    gen_gemm_core(A, sR, sC, (512 if split else 4096)//bk, S, wt, ws, sOffR, sOffC, bk*2048, ksps*1024, regs, pfx=name, ldflagC=ldfl)
    if split:
        acc = regs['acc']
        A.nop(8)
        A(f"""
        s_sub_u32 s{s1}, s{sTg}, 13
        s_lshl_b32 s{s1}, s{s1}, 3
        s_add_u32 s{s1}, s{s1}, s{sI}
        s_lshl_b32 s{s1}, s{s1}, 19
        s_lshl_b32 s{s2}, s{sWc}, 18
        s_add_u32 s{s1}, s{s1}, s{s2}
        s_lshl_b32 s{s2}, s{sX}, 13
        s_add_u32 s{s1}, s{s1}, s{s2}
        s_lshl_b32 s{s2}, s{sWr}, 12
        s_add_u32 s{s1}, s{s1}, s{s2}
        s_add_u32 s{s1}, s{s1}, {WS['P4']}
        v_lshlrev_b32 v5, 5, v{vLane}
        """)
        for j in range(4):
            A(f"s_add_u32 s{s2}, s{s1}, {j*65536}")
            for p in range(2):
                for hh in range(2):
                    A(f"buffer_store_dwordx4 {a(acc(2*p+hh, j),4)}, v5, {ws}, s{s2} offen offset:{p*2048 + hh*16} sc1")
        A(f"""
        s_sub_u32 s{s3}, s{sTg}, 13
        s_lshl_b32 s{s3}, s{s3}, 3
        s_add_u32 s{s3}, s{s3}, s{sX}
        s_lshl_b32 s{s3}, s{s3}, 7
        s_add_u32 s{s3}, s{s3}, {FL_X1RDY}
        s_waitcnt vmcnt(0)
        s_barrier
        s_cmp_lg_u32 s{sW}, 0
        s_cbranch_scc1 {name}_ns
        s_mov_b64 s[{sEx}:{sEx+1}], exec
        s_mov_b64 exec, 1
        v_mov_b32 v6, 0
        v_mov_b32 v7, 1
        buffer_atomic_add v7, v6, {ws}, s{s3} offen
        s_mov_b64 exec, s[{sEx}:{sEx+1}]
        {name}_ns:
        """)
        wait_counter(A, wname, f"s_mov_b32 s{s1}, s{s3}", 8, f"{name}_wp")
        vP = 16
        A(f"""
        s_sub_u32 s{s1}, s{sTg}, 13
        s_lshl_b32 s{s1}, s{s1}, 22
        s_lshl_b32 s{s2}, s{sI}, 16
        s_add_u32 s{s1}, s{s1}, s{s2}
        s_lshl_b32 s{s2}, s{sX}, 2
        s_add_u32 s{s2}, s{s2}, s{sW}               ; dblk
        s_lshl_b32 s{s3}, s{s2}, 11
        s_add_u32 s{s1}, s{s1}, s{s3}
        s_add_u32 s{s1}, s{s1}, {WS['P4']}
        v_lshlrev_b32 v5, 5, v{vLane}
        """)
        for kq in range(8):
            if kq: A(f"s_add_u32 s{s1}, s{s1}, {1<<19}")
            A(f"buffer_load_dwordx4 {v(vP+8*kq,4)}, v5, {ws}, s{s1} offen sc1")
            A(f"buffer_load_dwordx4 {v(vP+8*kq+4,4)}, v5, {ws}, s{s1} offen offset:16 sc1")
        A(f"""
        v_lshlrev_b32 v6, 11, v{vCol}
        v_lshl_add_u32 v6, v{vG}, 3, v6
        s_lshl_b32 s{s3}, s{sTg}, 3
        s_add_u32 s{s3}, s{s3}, s{sI}
        s_lshl_b32 s{s4}, s{s3}, 15
        s_lshl_b32 s{s1}, s{s2}, 6
        s_add_u32 s{s4}, s{s4}, s{s1}
        buffer_load_dwordx2 v[88:89], v6, {aux}, s{s4} offen
        buffer_load_dwordx2 v[90:91], v6, {aux}, s{s4} offen offset:32
        v_lshlrev_b32 v7, 4, v{vG}
        s_lshl_b32 s{s1}, s{s2}, 7
        s_add_u32 s{s1}, s{s1}, {WS['MOD'] + 2*4096}
        buffer_load_dwordx4 v[92:95], v7, {ws}, s{s1} offen
        buffer_load_dwordx4 v[96:99], v7, {ws}, s{s1} offen offset:64
        s_lshl_b32 s{s3}, s{s3}, 15
        s_lshl_b32 s{s1}, s{s2}, 10
        s_add_u32 s{s3}, s{s3}, s{s1}
        s_add_u32 s{s3}, s{s3}, {WS['X1']}
        s_waitcnt vmcnt(0)
        """)
        for kq in range(1, 8):
            for q in range(8): A(f"v_add_f32 v{vP+q}, v{vP+q}, v{vP+8*kq+q}")
        for q in range(4):
            A(f"v_lshlrev_b32 v100, 16, v{88+q}")
            A(f"v_fma_f32 v{vP+2*q}, v{vP+2*q}, v{92+2*q}, v100")
            A(f"v_and_b32 v100, 0xffff0000, v{88+q}")
            A(f"v_fma_f32 v{vP+2*q+1}, v{vP+2*q+1}, v{92+2*q+1}, v100")
        for q in range(4):
            A(f"v_cvt_pk_bf16_f32 v{vP+q}, v{vP+2*q}, v{vP+2*q+1}")
        A(f"buffer_store_dwordx4 {v(vP,4)}, v{vL16}, {ws}, s{s3} offen")
        return
    acc = regs['acc']; ep = d['vEp']; t1, t2, t3 = d['t']
    vF = d['vFR']; vF2 = d['vFC']
    A.nop(8)
    A(f"""
    v_lshlrev_b32 v{t1}, 11, v{vCol}
    v_lshl_add_u32 v{t1}, v{vG}, 3, v{t1}
    v_lshlrev_b32 v{t2}, 4, v{vG}
    s_lshl_b32 s{s1}, s{sX}, 7
    s_lshl_b32 s{s2}, s{sWr}, 6
    s_add_u32 s{s1}, s{s1}, s{s2}
    s_lshl_b32 s{s3}, s{s1}, 2
    s_add_u32 s{s3}, s{s3}, {WS['MOD'] + 2*4096}
    """)
    for p in range(2):
        for hh in range(2):
            A(f"buffer_load_dwordx4 {v(vF2+8*p+4*hh,4)}, v{t2}, {ws}, s{s3} offen offset:{(32*p+16*hh)*4}")
    A(f"""
    s_lshl_b32 s{s2}, s{sTg}, 3
    s_lshl_b32 s{s4}, s{sWc}, 2
    s_add_u32 s{s2}, s{s2}, s{s4}
    s_lshl_b32 s{s4}, s{s2}, 15
    s_lshl_b32 s{s3}, s{s1}, 1
    s_add_u32 s{s4}, s{s4}, s{s3}
    s_lshl_b32 s{s2}, s{s2}, 15
    s_lshl_b32 s{s3}, s{s1}, 5
    s_add_u32 s{s2}, s{s2}, s{s3}
    s_add_u32 s{s2}, s{s2}, {WS['X1']}
    """)
    for j in range(4):
        A(f"s_add_u32 s{s3}, s{s4}, {j*16*2048}")
        for p in range(2):
            for hh in range(2):
                A(f"buffer_load_dwordx2 {v(vF+(j*2+p)*4+2*hh,2)}, v{t1}, {aux}, s{s3} offen offset:{(32*p+16*hh)*2}")
    A("s_waitcnt vmcnt(0)")
    k = 0
    for j in range(4):
        A(f"s_add_u32 s{s3}, s{s2}, {j*32768}")
        for p in range(2):
            e = ep + (k % 4)*8; k += 1
            xr = vF + (j*2+p)*4
            for hh in range(2):
                for r in range(4):
                    A(f"v_accvgpr_read_b32 v{e+4*hh+r}, a{acc(2*p+hh, j)+r}")
            for hh in range(2):
                for q in range(2):
                    A(f"v_lshlrev_b32 v{t3}, 16, v{xr+2*hh+q}")
                    A(f"v_fma_f32 v{e+4*hh+2*q}, v{e+4*hh+2*q}, v{vF2+8*p+4*hh+2*q}, v{t3}")
                    A(f"v_and_b32 v{t3}, 0xffff0000, v{xr+2*hh+q}")
                    A(f"v_fma_f32 v{e+4*hh+2*q+1}, v{e+4*hh+2*q+1}, v{vF2+8*p+4*hh+2*q+1}, v{t3}")
            for q in range(4):
                A(f"v_cvt_pk_bf16_f32 v{e+q}, v{e+2*q}, v{e+2*q+1}")
            A(f"buffer_store_dwordx4 {v(e,4)}, v{vL16}, {ws}, s{s3} offen offset:{p*1024}{fl}")

NT_KVS, NT_KVB, NT_QB = 16, 28, 16
def gen_worker(A, name, timing=False):
    fl = ' sc1'
    A(f"s_mov_b32 s{sTask}, 0")
    A.label(f"{name}_init")
    A(f"""
    s_load_dwordx2 s[{sPq}:{sPq+1}], s[0:1], {KA['Wq']}
    s_load_dwordx2 s[{sPk}:{sPk+1}], s[0:1], {KA['Wk']}
    s_load_dwordx2 s[{sPv}:{sPv+1}], s[0:1], {KA['Wv']}
    s_load_dwordx2 s[{sPo}:{sPo+1}], s[0:1], {KA['Wo']}
    s_load_dwordx2 s[{sPx}:{sPx+1}], s[0:1], {KA['x']}
    s_lshr_b32 s{sWr}, s{sW}, 1
    s_and_b32 s{sWc}, s{sW}, 1
    s_mov_b32 s{sBud}, {WBUD}
    s_mov_b32 s{sCexp}, {hex(f2u((128 ** -0.5) * math.log2(math.e)))}
    s_mov_b32 s{sSig}, 0
    s_waitcnt lgkmcnt(0)
    s_mov_b32 s62, -1
    s_cmp_eq_u32 s{sTask}, -2
    s_cbranch_scc1 {name}_g4s
    {name}_next:
    s_waitcnt vmcnt(0) lgkmcnt(0)
    s_barrier
    s_cmp_lg_u32 s{sW}, 0
    s_cbranch_scc1 {name}_nf
    s_mov_b64 s[{sEx}:{sEx+1}], exec
    s_mov_b64 exec, 1
    TRACE_END
    v_mov_b32 v5, 0
    v_mov_b32 v6, 1
    s_cmp_eq_u32 s{sSig}, 0
    s_cbranch_scc1 {name}_nosig
    s_and_b32 s{s1}, s{sSig}, 0xfffffffe
    s_bitcmp1_b32 s{sSig}, 0
    s_cbranch_scc0 {name}_sig1
    v_mov_b32 v6, 2
    buffer_atomic_add v6, v5, {ws}, s{s1} offen offset:128
    {name}_sig1:
    buffer_atomic_add v6, v5, {ws}, s{s1} offen
    {name}_nosig:
    v_mov_b32 v7, 1
    s_lshl_b32 s{s1}, s{sX}, 7
    s_add_u32 s{s1}, s{s1}, {FL_QHEAD}
    buffer_atomic_add v7, v5, {ws}, s{s1} offen sc0
    s_waitcnt vmcnt(0)
    v_mov_b32 v5, {LDS_TASK}
    ds_write_b32 v5, v7
    s_waitcnt lgkmcnt(0)
    s_mov_b64 exec, s[{sEx}:{sEx+1}]
    {name}_nf:
    s_barrier
    v_mov_b32 v5, {LDS_TASK}
    ds_read_b32 v6, v5
    s_waitcnt lgkmcnt(0)
    s_nop 0
    v_readfirstlane_b32 s{sTask}, v6
    s_mov_b32 s{sSig}, 0
    s_nop 2
    TRACE_START
    s_cmp_lt_u32 s{sTask}, {NT_KVS}
    s_cbranch_scc1 {name}_kvs
    s_cmp_lt_u32 s{sTask}, {NT_KVS+NT_KVB}
    s_cbranch_scc1 {name}_kvb
    s_cmp_lt_u32 s{sTask}, {NT_KVS+NT_KVB+NT_QB}
    s_cbranch_scc1 {name}_qb
    s_sub_u32 s{sTask}, s{sTask}, {NT_KVS+NT_KVB+NT_QB}
    """)
    seq = []
    for tg in range(16):
        seq.append(('att', tg))
        if tg >= 1 and tg-1 <= 13: seq.append(('g4', tg-1))
        if tg == 9:
            for k in range(4): seq.append(('pf', k))
    for kq in range(8): seq.append(('g4s', 8 + kq))
    print('worker tail sequence length', len(seq))
    tcode = {'att': 0, 'g4': 1, 'g4s': 2, 'pf': 3}
    codes = [tcode[t]*32 + a for t, a in seq]
    while len(codes) % 4: codes.append(0xff)
    A(f"s_cmp_ge_u32 s{sTask}, {len(seq)}")
    A(f"s_cbranch_scc1 {name}_exit")
    A(f"s_lshr_b32 s{s1}, s{sTask}, 2")
    A(f"s_mov_b32 s{s2}, 0")
    for w in range(len(codes)//4):
        val = codes[4*w] | codes[4*w+1] << 8 | codes[4*w+2] << 16 | codes[4*w+3] << 24
        A(f"s_cmp_eq_u32 s{s1}, {w}")
        A(f"s_cselect_b32 s{s2}, {hex(val)}, s{s2}")
    A(f"""
    s_and_b32 s{s1}, s{sTask}, 3
    s_lshl_b32 s{s1}, s{s1}, 3
    s_lshr_b32 s{s2}, s{s2}, s{s1}
    s_and_b32 s{sTg}, s{s2}, 31
    s_bfe_u32 s{s2}, s{s2}, 0x30005
    s_cmp_eq_u32 s{s2}, 0
    s_cbranch_scc1 {name}_att
    s_cmp_eq_u32 s{s2}, 1
    s_cbranch_scc1 {name}_g4
    s_cmp_eq_u32 s{s2}, 2
    s_cbranch_scc1 {name}_g4s
    s_branch {name}_pf
    """)
    TR = WS['END'] + 131072
    if timing:
        te = f"""s_cmp_eq_u32 s62, -1
    s_cbranch_scc1 {name}_tr0
    s_memrealtime s[64:65]
    s_waitcnt lgkmcnt(0)
    v_mov_b32 v5, s63
    v_mov_b32 v6, s64
    s_lshl_b32 s66, s{sX}, 7
    s_add_u32 s66, s66, s62
    s_lshl_b32 s66, s66, 3
    s_add_u32 s66, s66, {TR}
    v_mov_b32 v7, 0
    buffer_store_dword v5, v7, {ws}, s66 offen
    buffer_store_dword v6, v7, {ws}, s66 offen offset:4
    s_nop 1
    {name}_tr0:"""
        ts = f"""s_mov_b32 s62, s{sTask}
    s_memrealtime s[64:65]
    s_waitcnt lgkmcnt(0)
    s_mov_b32 s63, s64"""
    else:
        te = ts = ''
    for i, ln in enumerate(A.lines):
        if ln.strip() == 'TRACE_END': A.lines[i] = '\n'.join('    ' + x.strip() if not x.strip().endswith(':') else x.strip() for x in te.split('\n')) if te else ''
        if ln.strip() == 'TRACE_START': A.lines[i] = '\n'.join('    ' + x.strip() for x in ts.split('\n')) if ts else ''
    A.label(f"{name}_kvs")
    A(f"""
    s_lshr_b32 s{sMat}, s{sTask}, 3
    s_add_u32 s{sMat}, s{sMat}, 1
    s_lshr_b32 s{sHead}, s{sTask}, 1
    s_and_b32 s{sHead}, s{sHead}, 3
    s_lshl_b32 s{s1}, s{sX}, 2
    s_add_u32 s{sHead}, s{sHead}, s{s1}
    s_and_b32 s{s2}, s{sTask}, 1
    s_lshl_b32 s{sTm}, s{s2}, 3
    s_lshl_b32 s{sSig}, s{sX}, 4
    s_add_u32 s{sSig}, s{sSig}, s{s2}
    s_lshl_b32 s{sSig}, s{sSig}, 7
    s_add_u32 s{sSig}, s{sSig}, {FL_KVRDY}
    s_cmp_eq_u32 s{sMat}, 2
    s_cbranch_scc1 {name}_kvs_v
    """)
    set_wt(A, sPk, 1024*4096*2)
    g1_tile(A, name+'_sk', 4, 2, 4, False, fl)
    A(f"s_branch {name}_next")
    A.label(f"{name}_kvs_v")
    set_wt(A, sPv, 1024*4096*2)
    g1_tile(A, name+'_sv', 4, 2, 4, True, fl)
    A(f"s_branch {name}_next")
    A.label(f"{name}_kvb")
    A(f"""
    s_sub_u32 s{s2}, s{sTask}, {NT_KVS}
    s_lshr_b32 s{s3}, s{s2}, 2
    s_add_u32 s{s3}, s{s3}, 1                    ; tm
    s_lshl_b32 s{sTm}, s{s3}, 4
    s_lshr_b32 s{sMat}, s{s2}, 1
    s_and_b32 s{sMat}, s{sMat}, 1
    s_add_u32 s{sMat}, s{sMat}, 1
    s_and_b32 s{sHead}, s{s2}, 1
    s_lshl_b32 s{sHead}, s{sHead}, 1
    s_lshl_b32 s{s1}, s{sX}, 2
    s_add_u32 s{sHead}, s{sHead}, s{s1}
    s_lshl_b32 s{sSig}, s{sX}, 4
    s_lshl_b32 s{s3}, s{s3}, 1
    s_add_u32 s{sSig}, s{sSig}, s{s3}
    s_lshl_b32 s{sSig}, s{sSig}, 7
    s_add_u32 s{sSig}, s{sSig}, {FL_KVRDY + 1}
    s_cmp_eq_u32 s{sMat}, 2
    s_cbranch_scc1 {name}_kvb_v
    """)
    set_wt(A, sPk, 1024*4096*2)
    A.label(f"{name}_bqk")
    g1_tile(A, name+'_bk', 8, 1, 4, False, fl)
    A(f"s_branch {name}_next")
    A.label(f"{name}_kvb_v")
    set_wt(A, sPv, 1024*4096*2)
    g1_tile(A, name+'_bv', 8, 1, 4, True, fl)
    A(f"s_branch {name}_next")
    A.label(f"{name}_qb")
    A(f"""
    s_sub_u32 s{s2}, s{sTask}, {NT_KVS+NT_KVB}
    s_lshr_b32 s{s3}, s{s2}, 1
    s_lshl_b32 s{sTm}, s{s3}, 4
    s_mov_b32 s{sMat}, 0
    s_and_b32 s{sHead}, s{s2}, 1
    s_lshl_b32 s{sHead}, s{sHead}, 1
    s_lshl_b32 s{s1}, s{sX}, 2
    s_add_u32 s{sHead}, s{sHead}, s{s1}
    s_lshl_b32 s{sSig}, s{sX}, 3
    s_add_u32 s{sSig}, s{sSig}, s{s3}
    s_lshl_b32 s{sSig}, s{sSig}, 7
    s_add_u32 s{sSig}, s{sSig}, {FL_QRDY}
    """)
    set_wt(A, sPq, 1024*4096*2)
    A(f"s_branch {name}_bqk")
    A.label(f"{name}_att")
    wait_counter(A, name, f"""
    s_lshl_b32 s{s1}, s{sX}, 3
    s_lshr_b32 s{s2}, s{sTg}, 1
    s_add_u32 s{s1}, s{s1}, s{s2}
    s_lshl_b32 s{s1}, s{s1}, 7
    s_add_u32 s{s1}, s{s1}, {FL_QRDY}
    """, 2, f"{name}_wq")
    wait_counter(A, name, f"""
    s_lshl_b32 s{s1}, s{sX}, 4
    s_add_u32 s{s1}, s{s1}, s{sTg}
    s_lshl_b32 s{s1}, s{s1}, 7
    s_add_u32 s{s1}, s{s1}, {FL_KVRDY}
    """, 8, f"{name}_wkv")
    A(f"""
    s_lshl_b32 s{sSeg}, s{sTg}, 2
    s_lshl_b32 s{sHead}, s{sX}, 2
    s_add_u32 s{sHead}, s{sHead}, s{sW}
    s_mov_b32 s{sI}, 4
    {name}_attl:
    """)
    wait_counter(A, name, f"""
    s_lshl_b32 s{s1}, s{sX}, 6
    s_add_u32 s{s1}, s{s1}, s{sSeg}
    s_lshl_b32 s{s1}, s{s1}, 6
    s_add_u32 s{s1}, s{s1}, {FL_KVM}
    """, 4, f"{name}_wm")
    attn_body(A, name, sWS, sSeg, sHead, dict(vLane=vLane, vCol=vCol, vG=vG, vL16=vL16, s=(sA1,sA2,sA3,sA4,sCexp), sexec=sEx, kvmflag=' sc1', stflag=' sc1', ldflag=' sc1'))
    A(f"""
    s_add_u32 s{sSeg}, s{sSeg}, 1
    s_sub_u32 s{sI}, s{sI}, 1
    s_cmp_lg_u32 s{sI}, 0
    s_cbranch_scc1 {name}_attl
    s_lshl_b32 s{sSig}, s{sTg}, 7
    s_add_u32 s{sSig}, s{sSig}, {FL_ORDY}
    s_branch {name}_next
    """)
    A.label(f"{name}_g4")
    wait_counter(A, name, f"""
    s_lshl_b32 s{s1}, s{sTg}, 7
    s_add_u32 s{s1}, s{s1}, {FL_ORDY}
    """, 8, f"{name}_wo")
    g4_tile(A, name+'_g4', 2, 4, '', ' sc1')
    A(f"s_branch {name}_next")
    A.label(f"{name}_g4s")
    A(f"""
    s_and_b32 s{sI}, s{sTg}, 7
    s_lshr_b32 s{sTg}, s{sTg}, 3
    s_add_u32 s{sTg}, s{sTg}, 13
    """)
    wait_counter(A, name, f"""
    s_lshl_b32 s{s1}, s{sTg}, 7
    s_add_u32 s{s1}, s{s1}, {FL_ORDY}
    """, 8, f"{name}_wos")
    g4_tile(A, name+'_g4s', 2, 4, '', ' sc1', split=True, wname=name)
    A(f"s_branch {name}_next")
    A.label(f"{name}_pf")
    A(f"""
    s_load_dwordx2 s[{sPq}:{sPq+1}], s[0:1], {KA['w1']}
    s_load_dwordx2 s[{sPk}:{sPk+1}], s[0:1], {KA['w2']}
    s_lshl_b32 s{s1}, s{sX}, 2
    s_add_u32 s{s1}, s{s1}, s{sTg}                 ; chunk 0..31
    s_waitcnt lgkmcnt(0)
    s_cmp_lt_u32 s{s1}, 16
    s_cselect_b32 s{sWt}, s{sPq}, s{sPk}
    s_cselect_b32 s{sWt+1}, s{sPq+1}, s{sPk+1}
    s_mov_b32 s{sWt+2}, {2048*3584*2}
    s_mov_b32 s{sWt+3}, 0x20000
    s_and_b32 s{s1}, s{s1}, 15
    s_mul_i32 s{s1}, s{s1}, {2048*3584*2//16}
    v_lshlrev_b32 v5, 4, v0
    s_mov_b32 s{sI}, {2048*3584*2//16//4096//8}
    {name}_pfl:
    """)
    for q in range(8):
        A(f"buffer_load_dwordx4 {v(16+4*q,4)}, v5, {wt}, s{s1} offen")
        A(f"s_add_u32 s{s1}, s{s1}, 4096")
    A(f"""
    s_waitcnt vmcnt(0)
    s_sub_u32 s{sI}, s{sI}, 1
    s_cmp_lg_u32 s{sI}, 0
    s_cbranch_scc1 {name}_pfl
    s_branch {name}_next
    """)

def gen_mega(name='mega_kernel', cdelay=14, timing=False, stamp_step=21):
    A = Asm()
    A.raw(kernel_header(name))
    A(f"""
    s_cmp_ge_u32 s2, 256
    s_cbranch_scc1 {name}_exit
    s_load_dwordx2 s[4:5], s[0:1], {KA['dbg']}
    s_load_dwordx2 s[6:7], s[0:1], {KA['ws']}
    s_getreg_b32 s{sX}, hwreg(HW_REG_XCC_ID)
    s_and_b32 s{sX}, s{sX}, 7
    v_and_b32 v1, 63, v0
    v_lshrrev_b32 v5, 6, v0
    s_nop 0
    v_readfirstlane_b32 s{sW}, v5
    v_and_b32 v2, 15, v1
    v_lshrrev_b32 v3, 4, v1
    v_lshlrev_b32 v4, 4, v1
    s_waitcnt lgkmcnt(0)
    s_mov_b32 s{sWS}, s6
    s_mov_b32 s{sWS+1}, s7
    s_mov_b32 s{sWS+2}, {WS_SIZE}
    s_mov_b32 s{sWS+3}, 0x20000
    s_mov_b32 s16, s4
    s_mov_b32 s17, s5
    s_mov_b32 s18, 256
    s_mov_b32 s19, 0x20000
    s_cmp_lg_u32 s{sW}, 0
    s_cbranch_scc1 {name}_tk
    v_mov_b32 v5, 1
    s_lshl_b32 s{s1}, s{sX}, 2
    v_mov_b32 v6, s{s1}
    s_mov_b64 s[{sEx}:{sEx+1}], exec
    s_mov_b64 exec, 1
    buffer_atomic_add v5, v6, s[16:19], 0 offen sc0
    s_waitcnt vmcnt(0)
    v_mov_b32 v6, {LDS_TASK}
    ds_write_b32 v6, v5
    s_waitcnt lgkmcnt(0)
    s_mov_b64 exec, s[{sEx}:{sEx+1}]
    {name}_tk:
    s_barrier
    v_mov_b32 v6, {LDS_TASK}
    ds_read_b32 v5, v6
    s_waitcnt lgkmcnt(0)
    s_nop 0
    v_readfirstlane_b32 s{s1}, v5
    s_nop 3
    s_barrier
    s_cmp_lt_u32 s{s1}, 16
    s_cbranch_scc1 {name}_chain
    """)
    gen_worker(A, name+'_w', timing)
    A.label(f"{name}_w_exit")
    A("s_endpgm")
    A.label(f"{name}_chain")
    A(f"""
    s_mov_b32 s21, s{s1}
    s_mov_b32 s22, s{sW}
    s_mov_b32 s20, s{sX}
    """)
    A.raw(chainmod.gen_chain(name=name+'_c', cdelay=cdelay, timing=timing, embedded=True, stamp_step=stamp_step, done_label=name+'_post'))
    A.label(f"{name}_post")
    A(f"""
    s_cmp_ge_u32 s21, 8
    s_cbranch_scc1 {name}_exit
    s_waitcnt vmcnt(0) lgkmcnt(0)
    s_mov_b64 exec, -1
    s_mov_b32 s{sX}, s20
    s_add_u32 s{sTg}, s21, 16
    s_mov_b32 s{sW}, s22
    v_and_b32 v1, 63, v0
    v_and_b32 v2, 15, v1
    v_lshrrev_b32 v3, 4, v1
    v_lshlrev_b32 v4, 4, v1
    s_mov_b32 s{sTask}, -2
    s_branch {name}_w_init
    """)
    A.label(f"{name}_exit")
    A("s_endpgm")
    return A.text()

def mega_desc(name='mega_kernel'):
    return kernel_desc(name, 512, 100, 256)
```

```python
import sys; sys.path.insert(0,'gen')
from asmlib import *
from build import *
from mega import gen_mega, mega_desc
from kern_misc import gen_pre, gen_ln
from kern_small import gen_small
from kern_pre2 import gen_pre2

def build_full(path, cdelay=14, timing=False, stamp_step=21):
    ks = []
    t,d = gen_pre2(); ks.append(('pre_kernel', t, d))
    ks.append(('mega_kernel', gen_mega(cdelay=cdelay, timing=timing, stamp_step=stamp_step), mega_desc()))
    t,d = gen_ln('ln2_kernel', 2); ks.append(('ln2_kernel', t, d))
    t,d = gen_small('g5_kernel', 'g5'); ks.append(('g5_kernel', t, d))
    t,d = gen_small('g6_kernel', 'g6', splitk=True); ks.append(('g6_kernel', t, d))
    L = [('pre_kernel',256,256,16384), ('mega_kernel',256,256,131072+256),
         ('ln2_kernel',128,256,1024), ('g5_kernel',224,256,131072), ('g6_kernel',256,256,131072)]
    out = assemble_file(L, ks, path)
    print('size', len(out))
if __name__ == '__main__':
    build_full(sys.argv[1] if len(sys.argv) > 1 else 'full2.s')
```

```python
from asmlib import *
import struct, math

SENT_BUDGET = 2000000

def interleave(A, main, fill, start=0, every=1):
    fill = list(fill)
    for idx, m in enumerate(main):
        A(m)
        if idx >= start and (idx - start) % every == 0 and fill:
            A(fill.pop(0))
    for f in fill:
        A(f)

def gen_chain(name='chain_kernel', nsteps=64, timing=False, stamp_step=11, full='', cdelay=8, ldf='sc1', ddelay=0, adelay=0, embedded=False, fallback=False, kvpos='early', done_label=None, kxp1=False):
    A = Asm()
    if not embedded: A.raw(kernel_header(name))
    kvf = ' sc1' if embedded else ''
    intra = ' sc1' if fallback else ''
    sWS = 8; sT = 12; sDBG = 16
    sX, sC, sW, sStep, sBud = 20, 21, 22, 23, 24
    sOffD, sOffA, sOffC, sOffKx, sOffVx, sTmp, sTmp2 = 25, 26, 27, 28, 30, 32, 33
    sOffVx1 = 31
    sOffKx1 = 29
    sOffAr, sOffDr, sOffCr, sOffKVM = 34, 35, 36, 37
    sCexp = 38; sH = 39
    sPq, sPk, sPv, sPo, sPm = 40, 42, 44, 46, 48
    sExecSave = 50
    sHL, sJ = 52, 53
    sT0 = 54
    sMask = 58
    sC1, sC2, sC3, sCst, sOffDn = 59, 60, 61, 62, 63
    sBaseA, sBaseD, sBaseC, sBaseCo = 88, 89, 90, 91
    sSt = 64
    sFlg, sKvmF = 95, 96
    R = RegAlloc(0, 256)
    R.alloc('tid')
    vLane = R.alloc('lane'); vCol = R.alloc('col'); vG = R.alloc('g')
    vT1 = R.alloc('t1'); vT2 = R.alloc('t2'); vT3 = R.alloc('t3')
    vOffD = R.alloc('offD'); vOffAq = R.alloc('offAq'); vOffAv = R.alloc('offAv'); vOffAst = R.alloc('offAst')
    vOffC = R.alloc('offC'); vOffDst = R.alloc('offDst'); vL16 = R.alloc('l16')
    vLds1w = R.alloc('lds1w'); vLds1r = R.alloc('lds1r'); vLds3w = R.alloc('lds3w'); vLds3r = R.alloc('lds3r')
    vSent = R.alloc('sent', 4, 4)
    vM = R.alloc('M', 16, 4); vRM = R.alloc('RM', 16, 4)
    vAcc = R.alloc('acc', 48, 4)
    vRd = R.alloc('rd', 32, 4)
    vQ = R.alloc('q', 8, 4); vK = R.alloc('k', 8, 4); vVm = R.alloc('vm', 8, 4)
    vRQ = vRM
    vOB = vM
    vKx = R.alloc('Kx', 32, 4); vVx = R.alloc('Vx', 32, 4)
    vSm = R.alloc('Smm', 4, 4); vS1 = vRd; vS2 = vRd + 4
    vSM = R.alloc('SM', 4, 4); vTT = R.alloc('TT', 4, 4)
    vBX = R.alloc('BX', 4, 4); vPM = R.alloc('PM', 2, 2); vPMh = R.alloc('PMh', 2, 2); vPMc = R.alloc('PMc', 2, 2)
    vFlag = R.alloc('flag'); vZero = R.alloc('zero'); vMax = R.alloc('max'); vMx2 = R.alloc('mx2'); vSum = R.alloc('sum'); vSu2 = R.alloc('su2')
    vO = vAcc; vE = vAcc + 32
    print('chain vgprs used', R.next)
    aW1 = 0; aWo = 192
    def W1(t, ks): return a(aW1 + (t * 8 + ks) * 4, 4)
    def Wo(tn, u): return a(aWo + (tn * 4 + u) * 4, 4)
    def acc(t): return vAcc + t * 4
    LDS_P1 = 0; LDS_P3 = 12288
    ws = f"s[{sWS}:{sWS+3}]"

    if embedded:
        A(f"""
        s_load_dwordx2 s[{sPm}:{sPm+1}], s[0:1], {KA['mem0']}
        s_load_dwordx2 s[{sPq}:{sPq+1}], s[0:1], {KA['Wq']}
        s_load_dwordx2 s[{sPk}:{sPk+1}], s[0:1], {KA['Wk']}
        s_load_dwordx2 s[{sPv}:{sPv+1}], s[0:1], {KA['Wv']}
        s_load_dwordx2 s[{sPo}:{sPo+1}], s[0:1], {KA['Wo']}
        v_and_b32 v{vLane}, 63, v0
        v_and_b32 v{vCol}, 15, v{vLane}
        v_lshrrev_b32 v{vG}, 4, v{vLane}
        v_lshlrev_b32 v{vL16}, 4, v{vLane}
        s_lshr_b32 s{sHL}, s{sC}, 2
        s_and_b32 s{sJ}, s{sC}, 3
        s_waitcnt lgkmcnt(0)
        """)
    else:
        A(f"""
        s_cmp_ge_u32 s2, 256
        s_cbranch_scc1 {name}_exit
        s_load_dwordx2 s[{sPm}:{sPm+1}], s[0:1], {KA['mem0']}
        s_load_dwordx2 s[{sPq}:{sPq+1}], s[0:1], {KA['Wq']}
        s_load_dwordx2 s[{sPk}:{sPk+1}], s[0:1], {KA['Wk']}
        s_load_dwordx2 s[{sPv}:{sPv+1}], s[0:1], {KA['Wv']}
        s_load_dwordx2 s[{sPo}:{sPo+1}], s[0:1], {KA['Wo']}
        s_load_dwordx2 s[4:5], s[0:1], {KA['dbg']}
        s_load_dwordx2 s[6:7], s[0:1], {KA['ws']}
        s_getreg_b32 s{sX}, hwreg(HW_REG_XCC_ID)
        s_and_b32 s{sX}, s{sX}, 7
        v_and_b32 v{vLane}, 63, v0
        v_lshrrev_b32 v{vT1}, 6, v0
        s_nop 0
        v_readfirstlane_b32 s{sW}, v{vT1}
        v_and_b32 v{vCol}, 15, v{vLane}
        v_lshrrev_b32 v{vG}, 4, v{vLane}
        v_lshlrev_b32 v{vL16}, 4, v{vLane}
        s_waitcnt lgkmcnt(0)
        s_mov_b32 s{sWS}, s6
        s_mov_b32 s{sWS+1}, s7
        s_mov_b32 s{sWS+2}, {WS_SIZE}
        s_mov_b32 s{sWS+3}, 0x20000
        s_mov_b32 s{sDBG}, s4
        s_mov_b32 s{sDBG+1}, s5
        s_mov_b32 s{sDBG+2}, 256
        s_mov_b32 s{sDBG+3}, 0x20000
        s_cmp_lg_u32 s{sW}, 0
        s_cbranch_scc1 {name}_tk
        v_mov_b32 v{vT1}, 1
        s_lshl_b32 s{sTmp}, s{sX}, 2
        v_mov_b32 v{vT2}, s{sTmp}
        s_mov_b64 s[{sExecSave}:{sExecSave+1}], exec
        s_mov_b64 exec, 1
        buffer_atomic_add v{vT1}, v{vT2}, s[{sDBG}:{sDBG+3}], 0 offen sc0
        s_waitcnt vmcnt(0)
        v_mov_b32 v{vT2}, 0
        ds_write_b32 v{vT2}, v{vT1}
        s_waitcnt lgkmcnt(0)
        s_mov_b64 exec, s[{sExecSave}:{sExecSave+1}]
        {name}_tk:
        s_barrier
        v_mov_b32 v{vT2}, 0
        ds_read_b32 v{vT1}, v{vT2}
        s_waitcnt lgkmcnt(0)
        s_nop 0
        v_readfirstlane_b32 s{sC}, v{vT1}
        s_nop 3
        s_barrier
        s_cmp_ge_u32 s{sC}, 16
        s_cbranch_scc1 {name}_exit
        s_lshr_b32 s{sHL}, s{sC}, 2
        s_and_b32 s{sJ}, s{sC}, 3
        """)

    if timing:
        A(f"s_memrealtime s[{sT0}:{sT0+1}]")
    A(f"""
    s_lshl_b32 s{sH}, s{sX}, 2
    s_add_u32 s{sH}, s{sH}, s{sHL}
    s_lshl_b32 s{sTmp}, s{sH}, 8
    s_lshl_b32 s{sTmp2}, s{sJ}, 6
    s_add_u32 s{sTmp}, s{sTmp}, s{sTmp2}
    s_lshl_b32 s{sTmp2}, s{sW}, 21
    s_add_u32 s{sTmp}, s{sTmp}, s{sTmp2}
    v_lshrrev_b32 v{vT1}, 2, v{vLane}
    v_lshlrev_b32 v{vT1}, 13, v{vT1}
    v_and_b32 v{vT2}, 3, v{vLane}
    v_lshlrev_b32 v{vT2}, 4, v{vT2}
    v_add3_u32 v{vT1}, v{vT1}, v{vT2}, s{sTmp}
    s_mov_b32 s{sT+2}, {1024*4096*2}
    s_mov_b32 s{sT+3}, 0x20000
    v_lshrrev_b32 v{vT2}, 2, v{vCol}
    v_lshl_add_u32 v{vT2}, v{vG}, 3, v{vT2}
    v_lshlrev_b32 v{vT2}, 6, v{vT2}
    v_and_b32 v{vT3}, 3, v{vCol}
    v_lshl_add_u32 v{vT2}, v{vT3}, 3, v{vT2}
    s_lshl_b32 s{sTmp2}, s{sW}, 15
    v_add_u32 v{vT2}, s{sTmp2}, v{vT2}
    """)
    def dma_w1(ptr, ldsoff):
        A(f"s_mov_b32 s{sT}, s{ptr}")
        A(f"s_mov_b32 s{sT+1}, s{ptr+1}")
        for n in range(16):
            A(f"""
            s_lshl_b32 s{sTmp2}, s{sW}, 15
            s_add_u32 m0, s{sTmp2}, {ldsoff + n*1024}
            s_mov_b32 s{sTmp}, {n*16*8192}
            buffer_load_dwordx4 v{vT1}, s[{sT}:{sT+3}], s{sTmp} offen lds
            """)
    def tr_w1(tile0, ldsoff):
        for tt in range(2):
            for ks in range(8):
                for hh in range(2):
                    off = ldsoff + (32*ks + 4*hh)*64 + tt*32
                    reg = aW1 + ((tile0+tt)*8 + ks)*4 + 2*hh
                    A(f"ds_read_b64_tr_b16 a[{reg}:{reg+1}], v{vT2} offset:{off}")
            A("s_waitcnt lgkmcnt(0)")
    dma_w1(sPq, 0)
    dma_w1(sPk, 16384)
    A("s_waitcnt vmcnt(0)")
    tr_w1(0, 0)
    tr_w1(2, 16384)
    dma_w1(sPv, 0)
    A(f"""
    s_lshl_b32 s{sTmp}, s{sX}, 2
    s_add_u32 s{sTmp}, s{sTmp}, s{sW}
    s_lshl_b32 s{sTmp}, s{sTmp}, 18
    s_lshl_b32 s{sTmp2}, s{sC}, 7
    s_add_u32 s{sTmp}, s{sTmp}, s{sTmp2}
    v_lshrrev_b32 v{vT3}, 3, v{vLane}
    v_lshlrev_b32 v{vT3}, 11, v{vT3}
    v_and_b32 v{vOffD}, 7, v{vLane}
    v_lshlrev_b32 v{vOffD}, 4, v{vOffD}
    v_add3_u32 v{vT3}, v{vT3}, v{vOffD}, s{sTmp}
    s_mov_b32 s{sT}, s{sPo}
    s_mov_b32 s{sT+1}, s{sPo+1}
    s_mov_b32 s{sT+2}, {4096*1024*2}
    """)
    for n in range(16):
        A(f"""
        s_lshl_b32 s{sTmp2}, s{sW}, 15
        s_add_u32 m0, s{sTmp2}, {16384 + n*1024}
        s_mov_b32 s{sTmp}, {n*8*2048}
        buffer_load_dwordx4 v{vT3}, s[{sT}:{sT+3}], s{sTmp} offen lds
        """)
    A("s_waitcnt vmcnt(0)")
    tr_w1(4, 0)
    A(f"""
    v_lshrrev_b32 v{vT2}, 2, v{vCol}
    v_lshl_add_u32 v{vT2}, v{vG}, 2, v{vT2}
    v_lshlrev_b32 v{vT2}, 7, v{vT2}
    v_and_b32 v{vT3}, 3, v{vCol}
    v_lshl_add_u32 v{vT2}, v{vT3}, 4, v{vT2}
    s_lshl_b32 s{sTmp2}, s{sW}, 15
    v_add_u32 v{vT2}, s{sTmp2}, v{vT2}
    """)
    for tn in range(4):
        for u in range(4):
            for hh in range(2):
                off = 16384 + (32*u + 16*hh)*128 + (tn & 1)*64 + (tn >> 1)*8
                reg = aWo + (tn*4+u)*4 + 2*hh
                A(f"ds_read_b64_tr_b16 a[{reg}:{reg+1}], v{vT2} offset:{off}")
        A("s_waitcnt lgkmcnt(0)")
    A(f"""
    v_and_b32 v{vT1}, 7, v{vCol}
    v_lshrrev_b32 v{vT2}, 3, v{vCol}
    v_lshlrev_b32 v{vT3}, 11, v{vT1}
    v_lshl_add_u32 v{vT3}, v{vT2}, 6, v{vT3}
    v_lshl_add_u32 v{vT3}, v{vG}, 4, v{vT3}
    s_lshl_b32 s{sTmp}, s{sW}, 9
    v_add_u32 v{vT3}, s{sTmp}, v{vT3}
    s_mov_b32 s{sT}, s{sPm}
    s_mov_b32 s{sT+1}, s{sPm+1}
    s_mov_b32 s{sT+2}, 16384
    """)
    for i in range(4):
        A(f"buffer_load_dwordx4 {v(vM+4*i,4)}, v{vT3}, s[{sT}:{sT+3}], 0 offen offset:{i*128}")
    A(f"""
    s_lshl_b32 s{sTmp}, s{sW}, 12
    v_add_u32 v{vOffD}, s{sTmp}, v{vL16}                 ; w*4096 + lane*16
    s_mul_i32 s{sTmp}, s{sW}, 6144
    v_add_u32 v{vOffAq}, s{sTmp}, v{vL16}                ; w*6144 + lane*16
    v_lshlrev_b32 v{vOffAv}, 3, v{vLane}
    s_add_u32 s{sTmp}, s{sTmp}, 4096
    v_add_u32 v{vOffAv}, s{sTmp}, v{vOffAv}              ; w*6144 + 4096 + lane*8
    s_mul_i32 s{sTmp}, s{sHL}, 6144
    s_cmp_eq_u32 s{sW}, 2
    s_cbranch_scc1 {name}_astv
    v_lshlrev_b32 v{vOffAst}, 4, v{vT1}
    v_lshl_add_u32 v{vOffAst}, v{vG}, 8, v{vOffAst}
    v_lshl_add_u32 v{vOffAst}, v{vT2}, 3, v{vOffAst}
    s_lshr_b32 s{sTmp2}, s{sJ}, 1
    s_lshl_b32 s{sTmp2}, s{sTmp2}, 10
    s_add_u32 s{sTmp}, s{sTmp}, s{sTmp2}
    s_and_b32 s{sTmp2}, s{sJ}, 1
    s_lshl_b32 s{sTmp2}, s{sTmp2}, 7
    s_add_u32 s{sTmp}, s{sTmp}, s{sTmp2}
    s_and_b32 s{sTmp2}, s{sW}, 1
    s_lshl_b32 s{sTmp2}, s{sTmp2}, 11
    s_add_u32 s{sTmp}, s{sTmp}, s{sTmp2}
    v_add_u32 v{vOffAst}, s{sTmp}, v{vOffAst}
    s_branch {name}_astd
    {name}_astv:
    v_lshlrev_b32 v{vOffAst}, 3, v{vLane}
    s_lshl_b32 s{sTmp2}, s{sJ}, 9
    s_add_u32 s{sTmp}, s{sTmp}, s{sTmp2}
    s_add_u32 s{sTmp}, s{sTmp}, 4096
    v_add_u32 v{vOffAst}, s{sTmp}, v{vOffAst}
    {name}_astd:
    s_and_b32 s{sTmp}, s{sW}, 1
    s_lshl_b32 s{sTmp2}, s{sTmp}, 10
    v_add_u32 v{vOffC}, s{sTmp2}, v{vL16}                ; p*1024 + lane*16
    s_lshl_b32 s{sTmp2}, s{sTmp}, 3
    s_lshl_b32 s{sTmp}, s{sC}, 10
    s_add_u32 s{sTmp}, s{sTmp}, s{sTmp2}
    v_add_u32 v{vOffDst}, s{sTmp}, v{vL16}               ; c*1024 + lane*16 + 8p
    s_lshl_b32 s{sTmp}, s{sX}, 2
    s_add_u32 s{sTmp}, s{sTmp}, s{sW}
    s_lshl_b32 s{sOffKVM}, s{sTmp}, 12
    s_add_u32 s{sOffKVM}, s{sOffKVM}, {WS['KVM']}
    s_lshl_b32 s{sTmp}, s{sTmp}, 13                      ; head*8192
    s_add_u32 s{sOffKx}, s{sTmp}, {WS['K']}
    s_add_u32 s{sOffKx1}, s{sOffKx}, 4096
    s_add_u32 s{sOffVx}, s{sTmp}, {WS['VT']}
    s_add_u32 s{sOffVx1}, s{sOffVx}, 4096
    s_mul_i32 s{sBaseA}, s{sX}, 24576
    s_add_u32 s{sBaseA}, s{sBaseA}, {WS['RA']}
    s_lshl_b32 s{sBaseD}, s{sX}, 14
    s_add_u32 s{sBaseD}, s{sBaseD}, {WS['RD']}
    s_lshl_b32 s{sBaseC}, s{sC}, 14
    s_add_u32 s{sBaseC}, s{sBaseC}, {WS['RC']}
    s_lshl_b32 s{sBaseCo}, s{sX}, 11
    s_add_u32 s{sBaseCo}, s{sBaseCo}, s{sBaseC}
    s_mul_i32 s{sTmp}, s{sW}, 3072
    v_add_u32 v{vLds1w}, s{sTmp}, v{vL16}
    s_lshl_b32 s{sTmp}, s{sW}, 10
    v_add_u32 v{vLds1r}, s{sTmp}, v{vL16}
    s_lshl_b32 s{sTmp}, s{sW}, 11
    s_add_u32 s{sTmp}, s{sTmp}, {LDS_P3}
    v_add_u32 v{vLds3w}, s{sTmp}, v{vL16}
    s_and_b32 s{sTmp}, s{sW}, 1
    s_lshl_b32 s{sTmp}, s{sTmp}, 10
    s_add_u32 s{sTmp}, s{sTmp}, {LDS_P3}
    v_add_u32 v{vLds3r}, s{sTmp}, v{vL16}
    v_mov_b32 v{vSent}, -1
    v_mov_b32 v{vSent+1}, -1
    v_mov_b32 v{vSent+2}, -1
    v_mov_b32 v{vSent+3}, -1
    s_mov_b32 s{sBud}, {SENT_BUDGET}
    s_mov_b32 s{sStep}, 0
    """)
    cexp = struct.unpack('<I', struct.pack('<f', (128 ** -0.5) * math.log2(math.e)))[0]
    A(f"s_mov_b32 s{sCexp}, {hex(cexp)}")
    A("s_barrier")
    def kx_loads():
        return [f"buffer_load_dwordx4 {v(vKx + (t*4+ks)*4, 4)}, v{vL16}, {ws}, s{sOffKx if t == 0 else sOffKx1} offen offset:{ks*1024}{kvf}" for t in range(2) for ks in range(4)]
    def vx_loads():
        return [f"buffer_load_dwordx4 {v(vVx + t*4, 4)}, v{vL16}, {ws}, s{sOffVx if t < 4 else sOffVx1} offen offset:{(t%4)*1024}{kvf}" for t in range(8)]
    if embedded:
        A(f"""
        v_mov_b32 v{vZero}, 0
        s_lshl_b32 s{sFlg}, s{sX}, 11
        s_add_u32 s{sFlg}, s{sFlg}, {FL_KVRDY}
        s_lshl_b32 s{sKvmF}, s{sX}, 12
        s_add_u32 s{sKvmF}, s{sKvmF}, {FL_KVM}
        {name}_w0:
        buffer_load_dword v{vFlag}, v{vZero}, {ws}, s{sFlg} offen sc1
        s_waitcnt vmcnt(0)
        v_readfirstlane_b32 s{sTmp}, v{vFlag}
        s_cmp_ge_u32 s{sTmp}, 8
        s_cbranch_scc1 {name}_w0ok
        s_sub_u32 s{sBud}, s{sBud}, 1
        s_cbranch_scc1 {name}_exit
        s_sleep 2
        s_branch {name}_w0
        {name}_w0ok:
        """)
    if not kxp1:
        for l in kx_loads(): A(l)
    if timing:
        for i in range(8): A(f"s_mov_b32 s{80+i}, 0")
        for i in range(92,95): A(f"s_mov_b32 s{i}, 0")
        for i in range(16): A(f"s_mov_b32 s{64+i}, 0")
    A("s_waitcnt vmcnt(0)")
    for i in range(4):
        A(f"v_min_u32 v{vM+4*i}, -2, v{vM+4*i}")
        A(f"v_min_u32 v{vM+4*i+2}, -2, v{vM+4*i+2}")
    A(f"s_mov_b32 s{sOffD}, s{sBaseD}")
    A(f"s_branch {name}_p1")

    spin_blocks = []
    def spin_site(lbl, j, loads_from_j, chk_regs, cnt=None):
        def chk():
            out = []
            if len(chk_regs) == 2:
                out.append(f"v_max_u32 v{vT1}, v{chk_regs[0]}, v{chk_regs[1]}")
                out.append(f"v_cmp_eq_u32 vcc, -1, v{vT1}")
            elif len(chk_regs) == 1:
                out.append(f"v_cmp_eq_u32 vcc, -1, v{chk_regs[0]}")
            else:
                rs = list(chk_regs)
                out.append(f"v_max3_u32 v{vT1}, v{rs[0]}, v{rs[1]}, v{rs[2]}"); i = 3
                while i < len(rs):
                    if i + 1 < len(rs):
                        out.append(f"v_max3_u32 v{vT1}, v{vT1}, v{rs[i]}, v{rs[i+1]}"); i += 2
                    else:
                        out.append(f"v_max_u32 v{vT1}, v{vT1}, v{rs[i]}"); i += 1
                out.append(f"v_cmp_eq_u32 vcc, -1, v{vT1}")
            return out
        for x in chk(): A(x)
        A(f"s_cbranch_vccnz {lbl}_s{j}")
        A.label(f"{lbl}_k{j}")
        blk = [f"{lbl}_s{j}:"]
        blk += list(loads_from_j)
        if timing and cnt is not None: blk.append(f"s_add_u32 s{cnt}, s{cnt}, 1")
        blk.append(f"s_sub_u32 s{sBud}, s{sBud}, 1")
        sid = {'pD': 1, 'pA': 2, 'pV': 3, 'pC': 4}[lbl.split('_')[-1]]
        blk.append(f"s_movk_i32 s{sMask}, {sid*16 + j}")
        blk.append(f"s_cbranch_scc1 {name}_fail")
        blk.append("s_waitcnt vmcnt(0)")
        blk += chk()
        blk.append(f"s_cbranch_vccnz {lbl}_s{j}")
        blk.append(f"s_branch {lbl}_k{j}")
        spin_blocks.append(blk)

    def stamp(i):
        if timing: A(f"s_memrealtime s[{sSt+2*i}:{sSt+2*i+1}]")
    def stamp_acc(n):
        if timing:
            A("s_mov_b32 s97, s98")
            A("s_memtime s[98:99]")
            A("s_waitcnt lgkmcnt(0)")
            lb = A.newlabel('sk')
            A(f"s_cmp_lg_u32 s{sStep}, {stamp_step}")
            A(f"s_cbranch_scc1 {lb}")
            for i in range(n):
                A(f"s_mov_b32 s{80+i}, s{sSt+2*i}")
            A("s_sub_u32 s55, s98, s97")
            A.label(lb)

    kvm_copy = f"""
    s_and_b32 s{sTmp}, s{sStep}, 15
    s_cmp_lg_u32 s{sTmp}, s{sC}
    s_cbranch_scc1 {name}_nokvmXX
    s_lshl_b32 s{sTmp}, s{sStep}, 17
    s_add_u32 s{sTmp}, s{sTmp}, s{sOffKVM}
    s_add_u32 s{sTmp2}, s{sTmp}, 2048
    v_lshlrev_b32 v{vT2}, 3, v{vLane}
    buffer_store_dwordx4 {v(vK,4)}, v{vL16}, {ws}, s{sTmp} offen offset:0{kvf}
    buffer_store_dwordx4 {v(vK+4,4)}, v{vL16}, {ws}, s{sTmp} offen offset:1024{kvf}
    buffer_store_dwordx2 {v(vVm,2)}, v{vT2}, {ws}, s{sTmp2} offen offset:0{kvf}
    buffer_store_dwordx2 {v(vVm+2,2)}, v{vT2}, {ws}, s{sTmp2} offen offset:512{kvf}
    buffer_store_dwordx2 {v(vVm+4,2)}, v{vT2}, {ws}, s{sTmp2} offen offset:1024{kvf}
    buffer_store_dwordx2 {v(vVm+6,2)}, v{vT2}, {ws}, s{sTmp2} offen offset:1536{kvf}
    {name}_nokvmXX:
    """
    def kvchk(tag):
        if not embedded: return
        A(f"""
        {name}_kvchk{tag}:
        v_readfirstlane_b32 s{sTmp}, v{vFlag}
        s_cmp_ge_u32 s{sTmp}, 8
        s_cbranch_scc1 {name}_kvok{tag}
        s_add_u32 s{sTmp}, s{sStep}, 1
        s_lshr_b32 s{sTmp}, s{sTmp}, 2
        s_lshl_b32 s{sTmp}, s{sTmp}, 7
        s_add_u32 s{sTmp}, s{sTmp}, s{sFlg}
        buffer_load_dword v{vFlag}, v{vZero}, {ws}, s{sTmp} offen sc1
        s_sub_u32 s{sBud}, s{sBud}, 1
        s_cbranch_scc1 {name}_exit
        s_waitcnt vmcnt(0)
        s_branch {name}_kvchk{tag}
        {name}_kvok{tag}:
        """)
    def publish(tag):
        if not embedded: return
        A(f"""
        s_sub_u32 s{sTmp}, s{sStep}, 1
        s_and_b32 s{sTmp2}, s{sTmp}, 15
        s_cmp_lg_u32 s{sTmp2}, s{sC}
        s_cbranch_scc1 {name}_nopub{tag}
        s_cmp_eq_u32 s{sStep}, 0
        s_cbranch_scc1 {name}_nopub{tag}
        s_lshl_b32 s{sTmp}, s{sTmp}, 6
        s_add_u32 s{sTmp}, s{sTmp}, s{sKvmF}
        v_mov_b32 v{vT2}, 1
        s_mov_b64 exec, 1
        buffer_atomic_add v{vT2}, v{vZero}, {ws}, s{sTmp} offen
        s_mov_b64 exec, -1
        {name}_nopub{tag}:
        """)
    dl = [f"buffer_load_dwordx4 {v(vM+4*i,4)}, v{vOffD}, {ws}, s{sOffD} offen offset:{i*1024} {ldf}" for i in range(4)]
    def p1m(t, i, rot):
        odd_tile = t & 1
        ks = 2*i + ((0 if not rot else 1) if not odd_tile else (1 if not rot else 0))
        src = v((vRM if rot else vM) + 4*i, 4)
        first = (i == 0 and not rot)
        c = '0' if first else v(acc(t), 4)
        if t < 4: return f"v_mfma_f32_16x16x32_bf16 {v(acc(t),4)}, {W1(t,ks)}, {src}, {c}"
        else:     return f"v_mfma_f32_16x16x32_bf16 {v(acc(t),4)}, {src}, {W1(t,ks)}, {c}"
    sal = f"""
    s_and_b32 s{sTmp}, s{sStep}, 3
    s_mul_i32 s{sTmp}, s{sTmp}, {8*24576}
    s_add_u32 s{sOffA}, s{sTmp}, s{sBaseA}
    s_add_u32 s{sTmp}, s{sStep}, 3
    s_and_b32 s{sTmp}, s{sTmp}, 3
    s_mul_i32 s{sOffAr}, s{sTmp}, {8*24576}
    s_add_u32 s{sOffAr}, s{sOffAr}, s{sBaseA}
    s_lshl_b32 s{sOffDr}, s{sTmp}, 17
    s_add_u32 s{sOffDr}, s{sOffDr}, s{sBaseD}
    s_add_u32 s{sTmp}, s{sStep}, 2
    s_and_b32 s{sTmp}, s{sTmp}, 3
    s_lshl_b32 s{sOffCr}, s{sTmp}, 18
    s_add_u32 s{sOffCr}, s{sOffCr}, s{sBaseCo}
    s_and_b32 s{sTmp}, s{sStep}, 3
    s_lshl_b32 s{sTmp}, s{sTmp}, 18
    s_add_u32 s{sOffC}, s{sTmp}, s{sBaseC}
    s_add_u32 s{sCst}, s{sTmp}, s{sBaseCo}
    s_add_u32 s{sC1}, s{sOffC}, 4096
    s_add_u32 s{sC2}, s{sOffC}, 8192
    s_add_u32 s{sC3}, s{sOffC}, 12288
    s_add_u32 s{sTmp}, s{sStep}, 1
    s_and_b32 s{sTmp}, s{sTmp}, 3
    s_lshl_b32 s{sTmp}, s{sTmp}, 17
    s_add_u32 s{sOffDn}, s{sTmp}, s{sBaseD}
    v_mov_b32 v{vSM}, 0xff800000
    v_mov_b32 v{vSM+1}, 0xff800000
    v_mov_b32 v{vSM+2}, 0xff800000
    v_mov_b32 v{vSM+3}, 0xff800000
    v_mov_b32 v{vPMh}, 0
    v_mov_b32 v{vPMh+1}, 0
    """.strip().split('\n')
    sal = [x.strip() for x in sal]

    A.label(f"{name}_loop")
    stamp_acc(8)
    stamp(0)
    A(f"s_mov_b32 s{sOffD}, s{sOffDn}")
    if ddelay: A(f"s_sleep {ddelay}")
    for l in dl: A(l)
    A.label(f"{name}_p1")
    for x in sal: A(x)
    for i in range(4):
        A(f"s_waitcnt vmcnt({3-i})")
        spin_site(f"{name}_pD", i, dl[i:], [vM+4*i, vM+4*i+2], 92)
        if i == 3: stamp(1)
        rot = [f"v_mov_b32_dpp v{vRM+4*i+j}, v{vM+4*i+j} row_ror:8 row_mask:0xf bank_mask:0xf" for j in range(4)]
        interleave(A, [p1m(t, i, False) for t in range(4)], rot)
        A.nop(2)
        for t in range(4): A(p1m(t, i, True))
    vm_list = [p1m(t, i, r) for i in range(4) for r in (False, True) for t in (4, 5)]
    A(vm_list[0]); A(vm_list[1])
    A.nop(4)
    for pair in range(2):
        for r in range(4):
            A(f"v_mov_b32_dpp v{acc(2*pair)+r}, v{acc(2*pair+1)+r} quad_perm:[0,1,2,3] row_mask:0xf bank_mask:0xc")
    for p in range(2):
        A(f"ds_write_b128 v{vLds1w}, {v(acc(2*p),4)} offset:{LDS_P1 + p*1024}")
    A(vm_list[2]); A(vm_list[3])
    A("s_waitcnt lgkmcnt(0)")
    A("s_barrier")
    A(f"""
    s_cmp_ge_u32 s{sW}, 2
    s_cbranch_scc1 {name}_skipA
    """)
    for w in range(4):
        A(f"ds_read_b128 {v(vRd+4*w,4)}, v{vLds1r} offset:{LDS_P1 + w*3072}")
    A(vm_list[4]); A(vm_list[5]); A(vm_list[6]); A(vm_list[7])
    A("s_waitcnt lgkmcnt(0)")
    for r in range(4):
        A(f"v_add_f32 v{vRd+r}, v{vRd+r}, v{vRd+4+r}")
        A(f"v_add_f32 v{vRd+8+r}, v{vRd+8+r}, v{vRd+12+r}")
    for r in range(4):
        A(f"v_add_f32 v{vRd+r}, v{vRd+r}, v{vRd+8+r}")
    A(f"""
    v_cvt_pk_bf16_f32 v{vRd+4}, v{vRd}, v{vRd+1}
    v_cvt_pk_bf16_f32 v{vRd+5}, v{vRd+2}, v{vRd+3}
    s_nop 0
    v_min_u32 v{vRd+4}, -2, v{vRd+4}
    v_min_u32 v{vRd+5}, -2, v{vRd+5}
    buffer_store_dwordx2 {v(vRd+4,2)}, v{vOffAst}, {ws}, s{sOffA} offen{intra}
    """)
    stamp(2)
    interleave(A, vm_list[8:], (kx_loads() if kxp1 else []) + vx_loads())
    A(f"s_branch {name}_vdone")
    A.label(f"{name}_skipA")
    stamp(2)
    interleave(A, vm_list[4:], (kx_loads() if kxp1 else []) + vx_loads())
    A.label(f"{name}_vdone")
    A.nop(8)
    for r in range(4):
        A(f"v_mov_b32_dpp v{acc(4)+r}, v{acc(5)+r} quad_perm:[0,1,2,3] row_mask:0xc bank_mask:0xf")
    A(f"ds_write_b128 v{vLds1w}, {v(acc(4),4)} offset:{LDS_P1 + 2048}")
    ql = [f"buffer_load_dwordx4 {v(vQ+4*i,4)}, v{vOffAq}, {ws}, s{sOffA} offen offset:{i*1024} {ldf}" for i in range(2)]
    kl = [f"buffer_load_dwordx4 {v(vK+4*i,4)}, v{vOffAq}, {ws}, s{sOffA} offen offset:{2048+i*1024} {ldf}" for i in range(2)]
    vl = [f"buffer_load_dwordx2 {v(vVm+2*i,2)}, v{vOffAv}, {ws}, s{sOffA} offen offset:{i*512} {ldf}" for i in range(4)]
    for l in ql + kl: A(l)
    A("s_waitcnt lgkmcnt(0)")
    A("s_barrier")
    A(f"""
    s_cmp_lg_u32 s{sW}, 2
    s_cbranch_scc1 {name}_skipV
    """)
    for w in range(4):
        A(f"ds_read_b128 {v(vRd+4*w,4)}, v{vLds1r} offset:{LDS_P1 + w*3072}")
    A("s_waitcnt lgkmcnt(0)")
    for r in range(4):
        A(f"v_add_f32 v{vRd+r}, v{vRd+r}, v{vRd+4+r}")
        A(f"v_add_f32 v{vRd+8+r}, v{vRd+8+r}, v{vRd+12+r}")
    for r in range(4):
        A(f"v_add_f32 v{vRd+r}, v{vRd+r}, v{vRd+8+r}")
    A(f"""
    v_cvt_pk_bf16_f32 v{vRd+4}, v{vRd}, v{vRd+1}
    v_cvt_pk_bf16_f32 v{vRd+5}, v{vRd+2}, v{vRd+3}
    s_nop 0
    v_min_u32 v{vRd+4}, -2, v{vRd+4}
    v_min_u32 v{vRd+5}, -2, v{vRd+5}
    buffer_store_dwordx2 {v(vRd+4,2)}, v{vOffAst}, {ws}, s{sOffA} offen{intra}
    s_waitcnt vmcnt(1)
    s_branch {name}_skipV2
    {name}_skipV:
    s_waitcnt vmcnt(0)
    {name}_skipV2:
    """)
    spin_site(f"{name}_pA", 0, ql + kl, [vQ, vQ+2, vQ+4, vQ+6, vK, vK+2, vK+4, vK+6], 93)
    stamp(3)
    kvchk('a')
    for l in vl: A(l)
    if embedded:
        A(f"""
        s_add_u32 s{sTmp}, s{sStep}, 2
        s_lshr_b32 s{sTmp}, s{sTmp}, 2
        s_min_u32 s{sTmp}, s{sTmp}, 15
        s_lshl_b32 s{sTmp}, s{sTmp}, 7
        s_add_u32 s{sTmp}, s{sTmp}, s{sFlg}
        buffer_load_dword v{vFlag}, v{vZero}, {ws}, s{sTmp} offen sc1
        """)
    A(f"""
    s_cmp_eq_u32 s{sStep}, {nsteps-1}
    s_cbranch_scc1 {name}_last
    """)
    def sm(kind, i):
        if kind == 'm':
            c = '0' if i == 0 else v(vSm,4)
            return f"v_mfma_f32_16x16x32_bf16 {v(vSm,4)}, {v(vK+4*i,4)}, {v(vQ+4*i,4)}, {c}"
        t, rot = kind
        d = vS1 if t == 0 else vS2
        ks = 2*i + ((1 if rot else 0) if t == 0 else (0 if rot else 1))
        src = v((vRQ if rot else vQ) + 4*i, 4)
        c = '0' if (i == 0 and not rot) else v(d,4)
        return f"v_mfma_f32_16x16x32_bf16 {v(d,4)}, {v(vKx+(t*4+ks)*4,4)}, {src}, {c}"
    mainl = [sm('m',0), sm('m',1), sm((0,False),0), sm((1,False),0), sm((0,False),1), sm((1,False),1)]
    fill = [f"v_mov_b32_dpp v{vRQ+j}, v{vQ+j} row_ror:8 row_mask:0xf bank_mask:0xf" for j in range(8)]
    interleave(A, mainl, fill)
    A.nop(1)
    mainl = [sm((0,True),0), sm((1,True),0), sm((0,True),1), sm((1,True),1)]
    fill = [f"v_permlane32_swap_b32 v{vSm+r}, v{vTT+r}" for r in range(4)]
    interleave(A, mainl, fill)
    A(f"""
    s_add_u32 s{sOffKx}, s{sOffKx}, {1<<18}
    s_add_u32 s{sOffKx1}, s{sOffKx1}, {1<<18}
    s_add_u32 s{sOffVx}, s{sOffVx}, {1<<18}
    s_add_u32 s{sOffVx1}, s{sOffVx1}, {1<<18}
    """)
    for r in range(4):
        A(f"v_add_f32_dpp v{vSM+r}, v{vTT+r}, v{vSm+r} row_ror:8 row_mask:0x3 bank_mask:0x3")
    A(f"""
    v_max3_f32 v{vMax}, v{vSM}, v{vSM+1}, v{vSM+2}
    v_max_f32 v{vMax}, v{vMax}, v{vSM+3}
    s_nop 1
    """)
    for r in range(4):
        A(f"v_mov_b32_dpp v{vS1+r}, v{vS2+r} quad_perm:[0,1,2,3] row_mask:0xf bank_mask:0xc")
    vSX = vS1
    A(f"""
    v_max3_f32 v{vMax}, v{vMax}, v{vSX}, v{vSX+1}
    v_max3_f32 v{vMax}, v{vMax}, v{vSX+2}, v{vSX+3}
    s_nop 1
    v_max_f32_dpp v{vMx2}, v{vMax}, v{vMax} row_ror:8 row_mask:0xf bank_mask:0xf
    v_max_f32_dpp v{vMax}, v{vMax}, v{vMax} row_ror:8 row_mask:0xf bank_mask:0xf
    s_nop 1
    v_permlane16_swap_b32 v{vMax}, v{vMx2}
    s_nop 0
    v_max_f32 v{vSu2}, v{vMax}, v{vMx2}
    v_max_f32 v{vMax}, v{vMax}, v{vMx2}
    s_nop 1
    v_permlane32_swap_b32 v{vMax}, v{vSu2}
    s_nop 0
    v_max_f32 v{vMax}, v{vMax}, v{vSu2}
    v_mul_f32 v{vMax}, s{sCexp}, v{vMax}
    """)
    for r in range(4):
        A(f"v_fma_f32 v{vSX+r}, v{vSX+r}, s{sCexp}, -v{vMax}")
    for r in range(4):
        A(f"v_exp_f32 v{vSX+r}, v{vSX+r}")
    for r in range(4):
        A(f"v_fma_f32 v{vSM+r}, v{vSM+r}, s{sCexp}, -v{vMax}")
    A(f"""
    v_cvt_pk_bf16_f32 v{vBX}, v{vSX}, v{vSX+1}
    v_cvt_pk_bf16_f32 v{vBX+1}, v{vSX+2}, v{vSX+3}
    v_exp_f32 v{vSM}, v{vSM}
    v_exp_f32 v{vSM+1}, v{vSM+1}
    v_mov_b32_dpp v{vBX+2}, v{vBX} row_ror:8 row_mask:0xf bank_mask:0xf
    v_mov_b32_dpp v{vBX+3}, v{vBX+1} row_ror:8 row_mask:0xf bank_mask:0xf
    v_exp_f32 v{vSM+2}, v{vSM+2}
    v_exp_f32 v{vSM+3}, v{vSM+3}
    """)
    stamp(4)
    def pvx(t): return f"v_mfma_f32_16x16x32_bf16 {v(vO+4*t,4)}, {v(vVx+4*t,4)}, {v(vBX,4)}, 0"
    def pvm(t):
        b = vPM if t % 2 == 0 else vPMh
        return f"v_mfma_f32_16x16x16_bf16 {v(vO+4*t,4)}, {v(vVm+2*(t//2),2)}, {v(b,2)}, {v(vO+4*t,4)}"
    A(pvx(0))
    A(f"v_cvt_pk_bf16_f32 v{vPM}, v{vSM}, v{vSM+1}")
    A(f"v_cvt_pk_bf16_f32 v{vPMc}, v{vSM}, v{vSM+1}")
    A(pvx(1))
    A(f"v_cvt_pk_bf16_f32 v{vPM+1}, v{vSM+2}, v{vSM+3}")
    A(f"v_cvt_pk_bf16_f32 v{vPMc+1}, v{vSM+2}, v{vSM+3}")
    A(pvx(2))
    A(f"v_add_f32 v{vSum}, v{vSX}, v{vSX+1}")
    A(f"v_permlane32_swap_b32 v{vPMh}, v{vPMc}")
    A(pvx(3))
    A(f"v_add_f32 v{vSu2}, v{vSX+2}, v{vSX+3}")
    A(f"v_permlane32_swap_b32 v{vPMh+1}, v{vPMc+1}")
    A("s_waitcnt vmcnt(1)" if embedded else "s_waitcnt vmcnt(0)")
    spin_site(f"{name}_pV", 0, vl, [vVm, vVm+2, vVm+4, vVm+6], 93)
    cv = []
    for u in range(4):
        c4 = []
        for hh in range(2):
            t = 2*u + hh
            c4.append(f"v_cvt_pk_bf16_f32 v{vOB+4*u+2*hh}, v{vO+4*t}, v{vO+4*t+1}")
            c4.append(f"v_cvt_pk_bf16_f32 v{vOB+4*u+2*hh+1}, v{vO+4*t+2}, v{vO+4*t+3}")
        cv.append(c4)
    def p3(tn, u): return f"v_mfma_f32_16x16x32_bf16 {v(vE+4*tn,4)}, {Wo(tn,u)}, {v(vOB+4*u,4)}, {'0' if u == 0 else v(vE+4*tn,4)}"
    kxl = kx_loads(); vxl = vx_loads()
    sums = [f"v_add_f32 v{vMx2}, v{vSM}, v{vSM+1}",
            f"v_add_f32 v{vSum}, v{vSum}, v{vSu2}",
            f"v_add_f32 v{vSu2}, v{vSM+2}, v{vSM+3}",
            f"v_add_f32 v{vSum}, v{vSum}, v{vMx2}",
            f"v_add_f32 v{vSum}, v{vSum}, v{vSu2}"]
    seq = [pvm(0), sums[0], pvm(1), sums[1], pvm(2), sums[2], pvm(3), sums[3],
           pvx(4), sums[4], pvx(5), kxl[0], pvm(4),
           f"v_add_f32_dpp v{vMx2}, v{vSum}, v{vSum} row_ror:8 row_mask:0xf bank_mask:0xf",
           pvm(5),
           f"v_add_f32_dpp v{vSum}, v{vSum}, v{vSum} row_ror:8 row_mask:0xf bank_mask:0xf",
           pvx(6), cv[0][0], cv[0][1], pvx(7), cv[0][2], cv[0][3], pvm(6),
           f"v_permlane16_swap_b32 v{vSum}, v{vMx2}", kxl[1], pvm(7), cv[1][0], cv[1][1],
           p3(0,0), cv[1][2], cv[1][3], p3(1,0), f"v_add_f32 v{vSu2}, v{vSum}, v{vMx2}", kxl[2], p3(2,0), f"v_add_f32 v{vSum}, v{vSum}, v{vMx2}", kxl[3], p3(3,0),
           kxl[4],
           p3(0,1), cv[2][0], cv[2][1], p3(1,1), cv[2][2], cv[2][3], p3(2,1), f"v_permlane32_swap_b32 v{vSum}, v{vSu2}", kxl[5], p3(3,1),
           cv[3][0], cv[3][1],
           p3(0,2), cv[3][2], cv[3][3], p3(1,2), f"v_add_f32 v{vSum}, v{vSum}, v{vSu2}", kxl[6], p3(2,2), kxl[7], vxl[0], p3(3,2),
           f"v_rcp_f32 v{vSum}, v{vSum}", vxl[1],
           p3(0,3), vxl[2], vxl[3], p3(1,3), vxl[4], vxl[5], p3(2,3), vxl[6], vxl[7], p3(3,3)]
    seq = [x for x in seq if x not in vxl and not (kxp1 and x in kxl)]
    if kvpos == 'late':
        seq = [x for x in seq if x not in kxl and x not in vxl]
    for x in seq: A(x)
    A(f"""
    s_cmp_eq_u32 s{sW}, 3
    s_cbranch_scc1 {name}_rs3
    buffer_store_dwordx2 {v(vSent,2)}, v{vOffAst}, {ws}, s{sOffAr} offen{intra}
    {name}_rs3:
    """)
    A.nop(4)
    for r in range(4):
        A(f"v_mov_b32_dpp v{vE+r}, v{vE+4+r} row_ror:8 row_mask:0xf bank_mask:0xc")
    A(f"v_pk_mul_f32 {v(vE,2)}, {v(vE,2)}, {v(vSumP,2)}") if False else None
    for r in range(4):
        A(f"v_mul_f32 v{vE+r}, v{vE+r}, v{vSum}")
    for r in range(4):
        A(f"v_mov_b32_dpp v{vE+8+r}, v{vE+12+r} row_ror:8 row_mask:0xf bank_mask:0xc")
    A(f"ds_write_b128 v{vLds3w}, {v(vE,4)} offset:0")
    for r in range(4):
        A(f"v_mul_f32 v{vE+8+r}, v{vE+8+r}, v{vSum}")
    A(f"ds_write_b128 v{vLds3w}, {v(vE+8,4)} offset:1024")
    A("s_waitcnt lgkmcnt(0)")
    A("s_barrier")
    stamp(5); stamp(6); stamp(7)
    A(f"""
    s_cmp_ge_u32 s{sW}, 2
    s_cbranch_scc1 {name}_cpoll
    """)
    for w in range(4):
        A(f"ds_read_b128 {v(vRd+4*w,4)}, v{vLds3r} offset:{w*2048}")
    A("s_waitcnt lgkmcnt(0)")
    for r in range(4):
        A(f"v_add_f32 v{vRd+r}, v{vRd+r}, v{vRd+4+r}")
        A(f"v_add_f32 v{vRd+8+r}, v{vRd+8+r}, v{vRd+12+r}")
    for r in range(4):
        A(f"v_add_f32 v{vRd+r}, v{vRd+r}, v{vRd+8+r}")
    for r in range(4):
        A(f"v_min_u32 v{vRd+r}, -2, v{vRd+r}")
    A(f"buffer_store_dwordx4 {v(vRd,4)}, v{vOffC}, {ws}, s{sCst} offen sc1")
    stamp(6); stamp(7)
    A(f"buffer_store_dwordx4 {v(vSent,4)}, v{vOffC}, {ws}, s{sOffCr} offen sc1")
    if kvpos == 'late':
        kvchk('b')
        for l in kxl + vxl: A(l)
    publish('1')
    A(kvm_copy.replace('XX', '1'))
    A(f"s_add_u32 s{sStep}, s{sStep}, 1")
    A(f"s_branch {name}_b3")
    A.label(f"{name}_cpoll")
    if kvpos == 'late':
        kvchk('c')
        for l in kxl + vxl: A(l)
    A(f"buffer_store_dwordx2 {v(vSent,2)}, v{vOffDst}, {ws}, s{sOffDr} offen{intra}")
    publish('3')
    A(kvm_copy.replace('XX', '3'))
    A(f"s_add_u32 s{sStep}, s{sStep}, 1")
    if cdelay: A(f"s_sleep {cdelay}")
    stamp(6)
    cl = []
    for y in range(8):
        so = [sOffC, sC1, sC2, sC3][y//2]
        cl.append(f"buffer_load_dwordx4 {v(vRd+4*y,4)}, v{vOffC}, {ws}, s{so} offen offset:{(y%2)*2048} sc1")
    for l in cl: A(l)
    A("s_waitcnt vmcnt(0)")
    spin_site(f"{name}_pC", 0, cl, [vRd+4*y for y in range(8)], 94)
    for r in range(4):
        A(f"v_add_f32 v{vRd+r}, v{vRd+r}, v{vRd+4+r}")
        A(f"v_add_f32 v{vRd+8+r}, v{vRd+8+r}, v{vRd+12+r}")
        A(f"v_add_f32 v{vRd+16+r}, v{vRd+16+r}, v{vRd+20+r}")
        A(f"v_add_f32 v{vRd+24+r}, v{vRd+24+r}, v{vRd+28+r}")
    for r in range(4):
        A(f"v_add_f32 v{vRd+r}, v{vRd+r}, v{vRd+8+r}")
        A(f"v_add_f32 v{vRd+16+r}, v{vRd+16+r}, v{vRd+24+r}")
    for r in range(4):
        A(f"v_add_f32 v{vRd+r}, v{vRd+r}, v{vRd+16+r}")
    A(f"""
    v_cvt_pk_bf16_f32 v{vRd+4}, v{vRd}, v{vRd+1}
    v_cvt_pk_bf16_f32 v{vRd+5}, v{vRd+2}, v{vRd+3}
    s_nop 0
    v_min_u32 v{vRd+4}, -2, v{vRd+4}
    v_min_u32 v{vRd+5}, -2, v{vRd+5}
    buffer_store_dwordx2 {v(vRd+4,2)}, v{vOffDst}, {ws}, s{sOffDn} offen{intra}
    """)
    stamp(7)
    A(f"""
    {name}_b3:
    s_barrier
    s_branch {name}_loop
    """)
    for blk in spin_blocks:
        for x in blk: A(x)
    A.label(f"{name}_last")
    A.label(f"{name}_lastspin")
    for l in vl: A(l)
    A("s_waitcnt vmcnt(0)")
    A(f"v_max3_u32 v{vT1}, v{vVm}, v{vVm+2}, v{vVm+4}")
    A(f"v_max_u32 v{vT1}, v{vT1}, v{vVm+6}")
    A(f"v_cmp_eq_u32 vcc, -1, v{vT1}")
    A(f"s_cbranch_vccz {name}_lastok")
    A(f"s_sub_u32 s{sBud}, s{sBud}, 1")
    A(f"s_cbranch_scc1 {name}_exit")
    A(f"s_branch {name}_lastspin")
    A.label(f"{name}_lastok")
    publish('L')
    A(kvm_copy.replace('XX', '2'))
    if embedded:
        A(f"""
        s_and_b32 s{sTmp}, s{sStep}, 15
        s_cmp_lg_u32 s{sTmp}, s{sC}
        s_cbranch_scc1 {name}_done
        s_waitcnt vmcnt(0)
        s_lshl_b32 s{sTmp}, s{sStep}, 6
        s_add_u32 s{sTmp}, s{sTmp}, s{sKvmF}
        v_mov_b32 v{vT2}, 1
        s_mov_b64 exec, 1
        buffer_atomic_add v{vT2}, v{vZero}, {ws}, s{sTmp} offen
        s_mov_b64 exec, -1
        """)
    A.label(f"{name}_done")
    if timing:
        A(f"""
        s_memrealtime s[{sT0+2}:{sT0+3}]
        s_waitcnt lgkmcnt(0)
        s_sub_u32 s{sTmp}, s{sT0+2}, s{sT0}
        v_mov_b32 v{vT1}, s{sTmp}
        s_lshl_b32 s{sTmp2}, s{sX}, 2
        s_add_u32 s{sTmp2}, s{sTmp2}, 64
        v_mov_b32 v{vT2}, s{sTmp2}
        buffer_store_dword v{vT1}, v{vT2}, s[{sDBG}:{sDBG+3}], 0 offen
        v_mov_b32 v{vT1}, s{sBud}
        v_add_u32 v{vT2}, 32, v{vT2}
        buffer_store_dword v{vT1}, v{vT2}, s[{sDBG}:{sDBG+3}], 0 offen
        s_lshl_b32 s{sTmp}, s{sX}, 4
        s_add_u32 s{sTmp}, s{sTmp}, s{sC}
        s_lshl_b32 s{sTmp}, s{sTmp}, 2
        s_add_u32 s{sTmp}, s{sTmp}, s{sW}
        s_lshl_b32 s{sTmp}, s{sTmp}, 6
        s_add_u32 s{sTmp}, s{sTmp}, {WS['END']}
        """)
        for i in range(12):
            A(f"v_mov_b32 v{vT1}, s{80+i if i < 8 else (92+i-8 if i < 11 else 55)}")
            A(f"v_mov_b32 v{vT2}, {4*i}")
            A(f"buffer_store_dword v{vT1}, v{vT2}, {ws}, s{sTmp} offen")
    if done_label: A(f"s_branch {done_label}")
    A.label(f"{name}_exit")
    A("s_endpgm")
    A.label(f"{name}_fail")
    A(f"""
    s_lshl_b32 s{sTmp}, s{sX}, 4
    s_add_u32 s{sTmp}, s{sTmp}, s{sC}
    s_lshl_b32 s{sTmp}, s{sTmp}, 2
    s_add_u32 s{sTmp}, s{sTmp}, s{sW}
    s_lshl_b32 s{sTmp}, s{sTmp}, 2
    s_add_u32 s{sTmp}, s{sTmp}, {WS['END'] + 65536}
    s_lshl_b32 s{sTmp2}, s{sStep}, 8
    s_or_b32 s{sTmp2}, s{sTmp2}, s{sMask}
    s_or_b32 s{sTmp2}, s{sTmp2}, 0x10000
    v_mov_b32 v{vT1}, s{sTmp2}
    v_mov_b32 v{vT2}, 0
    buffer_store_dword v{vT1}, v{vT2}, {ws}, s{sTmp} offen
    s_endpgm
    """)
    return A.text()

def chain_desc(name='chain_kernel'):
    return kernel_desc(name, 512, 96, 256)
```

```python
from asmlib import *

ST = 8
class FVRegs:
    def __init__(self):
        R = RegAlloc(0, 256)
        R.alloc('tid')
        self.vLane = R.alloc('lane'); self.vCol = R.alloc('col'); self.vG = R.alloc('g'); self.vL16 = R.alloc('l16')
        self.t = [R.alloc('t1'), R.alloc('t2'), R.alloc('t3')]
        self.vDma = [R.alloc(f'dm{i}') for i in range(4)]
        self.vFo = [R.alloc('fo0'), R.alloc('fo1')]
        self.vRd = [[R.alloc(f'rd{h}_{j}') for j in range(8)] for h in range(2)]
        self.vT = R.alloc('Tfr', 64, 4)
        self.vF = R.alloc('Ffr', 128, 4)
        self.vEp = self.vT
        self.R = R

def fv_setup(A, r, sW, sM0, s1, s2, ldT, nK):
    t1, t2, t3 = r.t
    A(f"s_lshl_b32 s{sM0}, s{sW}, 12")
    A(f"v_lshrrev_b32 v{t1}, 4, v{r.vLane}")
    A(f"s_lshl_b32 s{s1}, s{sW}, 4")
    A(f"v_add_u32 v{t1}, s{s1}, v{t1}")
    A(f"v_and_b32 v{t2}, 15, v{r.vLane}")
    A(f"s_mov_b32 s{s2}, {ldT}")
    for m in range(4):
        d = r.vDma[m]
        A(f"v_add_u32 v{t3}, {m*4}, v{t1}")
        A(f"v_and_b32 v{d}, 7, v{t3}")
        A(f"v_lshlrev_b32 v{d}, 1, v{d}")
        A(f"v_xor_b32 v{d}, v{d}, v{t2}")
        A(f"v_lshlrev_b32 v{d}, 4, v{d}")
        A(f"v_mul_lo_u32 v{t3}, v{t3}, s{s2}")
        A(f"v_add_u32 v{d}, v{d}, v{t3}")
        if m: A(f"v_subrev_u32 v{d}, {m*1024}, v{d}")
    A(f"v_lshrrev_b32 v{t1}, 2, v{r.vCol}")
    A(f"v_lshl_add_u32 v{t1}, v{r.vG}, 2, v{t1}")
    A(f"v_and_b32 v{t2}, 7, v{t1}")
    A(f"v_lshlrev_b32 v{t2}, 5, v{t2}")
    A(f"v_lshlrev_b32 v{t1}, 8, v{t1}")
    A(f"v_and_b32 v{t3}, 3, v{r.vCol}")
    A(f"v_lshl_add_u32 v{t1}, v{t3}, 3, v{t1}")
    for j in range(8):
        A(f"v_xor_b32 v{r.vRd[0][j]}, {j*32}, v{t2}")
        A(f"v_add_u32 v{r.vRd[0][j]}, v{r.vRd[0][j]}, v{t1}")
        A(f"v_add_u32 v{r.vRd[1][j]}, 0x10000, v{r.vRd[0][j]}")
    A(f"s_mul_i32 s{s1}, s{sW}, {2*nK*1024}")
    A(f"v_add_u32 v{r.vFo[0]}, s{s1}, v{r.vL16}")
    A(f"v_add_u32 v{r.vFo[1]}, {nK*1024}, v{r.vFo[0]}")

def gen_fv_core(A, r, srdF, srdT, sOffF, sOffT, stepT, sM0, sCnt, niter, f_is_A, pfx, flF='', flT='', niter_sreg=None, init=None):
    NP = 2*ST
    def fload(q):
        s = q % NP
        return [f"buffer_load_dwordx4 {v(r.vF + (s*2+j)*4, 4)}, v{r.vFo[j]}, {srdF}, s{sOffF} offen{flF}" for j in range(2)] + [f"s_add_u32 s{sOffF}, s{sOffF}, 1024"]
    def tdma(st):
        o = [f"s_add_u32 m0, s{sM0}, {st*16384}"]
        o += [f"buffer_load_dwordx4 v{r.vDma[m]}, {srdT}, s{sOffT} offen offset:{m*1024}{flT} lds" for m in range(4)]
        o.append(f"s_add_u32 s{sOffT}, s{sOffT}, {stepT}")
        return o
    def treads(st, kb, buf):
        out = []
        h = st // 4
        for j in range(8):
            for hh in range(2):
                off = (st % 4)*16384 + (32*kb + 16*hh)*256
                out.append(f"ds_read_b64_tr_b16 {v(r.vT + buf*32 + 4*j + 2*hh, 2)}, v{r.vRd[h][j]} offset:{off}")
        return out
    def mfmas(q, buf):
        out = []
        s = q % NP
        for j in range(8):
            for i in range(2):
                f = v(r.vF + (s*2+i)*4, 4); t = v(r.vT + buf*32 + 4*j, 4)
                if f_is_A:
                    d = a((i*8+j)*4, 4); out.append(f"v_mfma_f32_16x16x32_bf16 {d}, {f}, {t}, {d}")
                else:
                    d = a((j*2+i)*4, 4); out.append(f"v_mfma_f32_16x16x32_bf16 {d}, {t}, {f}, {d}")
        return out
    isv = lambda x: x.startswith('buffer_load')
    ops = []
    pro = []
    for st in range(ST):
        pro.append(('T', st))
        pro.append(('F', 2*st))
        if 2*st+1 < NP-1: pro.append(('F', 2*st+1))
    for k, x in pro:
        ops += [(k, x)] * (4 if k == 'T' else 2)
    waits = {}
    def need(tags):
        idx = max(i for i, o in enumerate(ops) if o in tags)
        return len(ops) - 1 - idx
    first_wait = need({('T', 0)})
    seqw = []
    for q in range(3*NP):
        st, kb = q // 2, q % 2
        tags = {('F', q)}
        if kb == 1: tags.add(('T', st+1))
        seqw.append(need(tags))
        ops += [('F', q + NP - 1)] * 2
        if kb == 1: ops += [('T', st + ST)] * 4
    W = [min(seqw[q], seqw[q+NP], seqw[q+2*NP]) for q in range(NP)]
    assert max(W) <= 63 and first_wait <= 63, (W, first_wait)
    if init is not None:
        for ins in init: A(ins)
    for k, x in pro:
        for ins in (tdma(x) if k == 'T' else fload(x)): A(ins)
    if init is None:
        for q in range(64): A(f"v_accvgpr_write_b32 a{q}, 0")
    if niter_sreg is None: A(f"s_mov_b32 s{sCnt}, {niter}")
    else: A(f"s_mov_b32 s{sCnt}, s{niter_sreg}")
    A(f"s_waitcnt vmcnt({first_wait})")
    A("s_barrier")
    for x in treads(0, 0, 0): A(x)
    A.label(f"{pfx}_loop")
    for q in range(NP):
        st, kb = q // 2, q % 2
        buf = q & 1
        A(f"s_waitcnt vmcnt({W[q]}) lgkmcnt(0)")
        if kb == 1:
            A("s_barrier")
            fill = treads((st+1) % ST, 0, buf ^ 1) + fload(q + NP - 1) + tdma(st)
        else:
            fill = treads(st, 1, buf ^ 1) + fload(q + NP - 1)
        main = mfmas(q, buf)
        out = []; fi = 0
        for x in main:
            out.append(x)
            for _ in range(2):
                if fi < len(fill): out.append(fill[fi]); fi += 1
        out += fill[fi:]
        for x in out: A(x)
    A(f"s_sub_u32 s{sCnt}, s{sCnt}, 1")
    A(f"s_cmp_lg_u32 s{sCnt}, 0")
    A(f"s_cbranch_scc1 {pfx}_loop")
    return W
```

```python
from asmlib import *
from gemmfv import *
from kern_misc import srd, f2u
import math

def lanes(A, r, sW):
    A(f"""
    v_and_b32 v{r.vLane}, 63, v0
    v_lshrrev_b32 v{r.t[0]}, 6, v0
    s_nop 0
    v_readfirstlane_b32 s{sW}, v{r.t[0]}
    v_and_b32 v{r.vCol}, 15, v{r.vLane}
    v_lshrrev_b32 v{r.vG}, 4, v{r.vLane}
    v_lshlrev_b32 v{r.vL16}, 4, v{r.vLane}
    """)

def g5_epilogue(A, r, ws, b1srd, sW, sFt, sDt, S, sK, fl=''):
    s1, s2, s3 = S
    t1 = r.t[0]; vB = r.vF; e0 = r.vT
    A.nop(8)
    A(f"""
    v_lshlrev_b32 v{t1}, 3, v{r.vG}
    s_lshl_b32 s{s1}, s{sFt}, 8
    """)
    for p in range(4):
        for hh in range(2):
            A(f"buffer_load_dwordx2 {v(vB+64+4*p+2*hh,2)}, v{t1}, {b1srd}, s{s1} offen offset:{(32*p+16*hh)*2}")
    A(f"""
    s_lshl_b32 s{s2}, s{sDt}, 3
    s_lshl_b32 s{s3}, s{sW}, 1
    s_add_u32 s{s2}, s{s2}, s{s3}
    s_mul_i32 s{s2}, s{s2}, {112*1024}
    s_lshl_b32 s{s3}, s{sFt}, 12
    s_add_u32 s{s2}, s{s2}, s{s3}
    s_add_u32 s{s2}, s{s2}, {WS['U']}
    s_mov_b32 s{sK}, {hex(f2u(0.044715))}
    s_mov_b32 s{sK+1}, {hex(f2u(-2.0*math.sqrt(2.0/math.pi)*math.log2(math.e)))}
    s_waitcnt vmcnt(0)
    """)
    for p in range(4):
        for hh in range(2):
            for q in range(2):
                A(f"v_lshlrev_b32 v{vB+8*p+4*hh+2*q}, 16, v{vB+64+4*p+2*hh+q}")
                A(f"v_and_b32 v{vB+8*p+4*hh+2*q+1}, 0xffff0000, v{vB+64+4*p+2*hh+q}")
    k = 0
    for j in range(2):
        A(f"s_add_u32 s{s3}, s{s2}, {j*112*1024}")
        for p in range(4):
            e = e0 + (k % 2)*16; k += 1
            w = e + 8
            for hh in range(2):
                for q in range(4):
                    A(f"v_accvgpr_read_b32 v{e+4*hh+q}, a{((2*p+hh)*2+j)*4+q}")
            for q in range(8): A(f"v_add_f32 v{e+q}, v{e+q}, v{vB+8*p+q}")
            for q in range(8): A(f"v_mul_f32 v{w+q}, v{e+q}, v{e+q}")
            for q in range(8): A(f"v_fma_f32 v{w+q}, v{w+q}, s{sK}, 1.0")
            for q in range(8): A(f"v_mul_f32 v{w+q}, v{w+q}, v{e+q}")
            for q in range(8): A(f"v_mul_f32 v{w+q}, s{sK+1}, v{w+q}")
            for q in range(8): A(f"v_exp_f32 v{w+q}, v{w+q}")
            A("s_nop 0")
            for q in range(8): A(f"v_add_f32 v{w+q}, 1.0, v{w+q}")
            for q in range(8): A(f"v_rcp_f32 v{w+q}, v{w+q}")
            A("s_nop 0")
            for q in range(8): A(f"v_mul_f32 v{e+q}, v{e+q}, v{w+q}")
            for q in range(4): A(f"v_cvt_pk_bf16_f32 v{e+q}, v{e+2*q}, v{e+2*q+1}")
            A(f"buffer_store_dwordx4 {v(e,4)}, v{r.vL16}, {ws}, s{s3} offen offset:{p*1024}{fl}")

def gen_g5(name='g5_kernel', tail=False):
    A = Asm(); A.raw(kernel_header(name))
    r = FVRegs()
    sW=20; sFt=21; sDt=22; sOffF=25; sOffT=26; sCnt=27; sM0=28; s1=30; s2=31; s3=32
    A(f"""
    s_cmp_ge_u32 s2, 224
    s_cbranch_scc1 {name}_exit
    s_load_dwordx2 s[4:5], s[0:1], {KA['w1']}
    s_load_dwordx2 s[6:7], s[0:1], {KA['ws']}
    s_load_dwordx2 s[34:35], s[0:1], {KA['b1']}
    """)
    lanes(A, r, sW)
    A(f"""
    s_and_b32 s{s1}, s2, 7
    s_lshr_b32 s{s2}, s2, 3
    s_and_b32 s{sDt}, s{s1}, 1
    s_lshl_b32 s{sDt}, s{sDt}, 2
    s_and_b32 s{s3}, s{s2}, 3
    s_add_u32 s{sDt}, s{sDt}, s{s3}
    s_lshr_b32 s{sFt}, s{s1}, 1
    s_mul_i32 s{sFt}, s{sFt}, 7
    s_lshr_b32 s{s3}, s{s2}, 2
    s_add_u32 s{sFt}, s{sFt}, s{s3}
    s_waitcnt lgkmcnt(0)
    """)
    srd(A, 8, 6, 7, WS_SIZE); srd(A, 12, 4, 5, 2048*3584*2); srd(A, 16, 34, 35, 3584*2)
    fv_setup(A, r, sW, sM0, s1, s2, 7168, 64)
    A(f"""
    s_lshl_b32 s{sOffT}, s{sFt}, 8
    s_lshl_b32 s{sOffF}, s{sDt}, 19
    s_add_u32 s{sOffF}, s{sOffF}, {WS['H2']}
    """)
    if not tail:
        gen_fv_core(A, r, 's[8:11]', 's[12:15]', sOffF, sOffT, 64*7168, sM0, sCnt, 4, False, name)
    else:
        A(f"""
        s_add_u32 s{sOffF}, s{sOffF}, {32*1024}
        s_add_u32 s{sOffT}, s{sOffT}, {1024*7168}
        s_lshl_b32 s{s1}, s{sFt}, 3
        s_add_u32 s{s1}, s{s1}, s{sDt}
        s_lshl_b32 s{s1}, s{s1}, 2
        s_add_u32 s{s1}, s{s1}, s{sW}
        s_lshl_b32 s{s1}, s{s1}, 14
        s_add_u32 s{s1}, s{s1}, {WS['U1']}
        """)
        init = []
        for b in range(16):
            if b and b % 4 == 0: init.append(f"s_add_u32 s{s1}, s{s1}, 4096")
            init.append(f"buffer_load_dwordx4 {a(4*b,4)}, v{r.vL16}, s[8:11], s{s1} offen offset:{(b%4)*1024}")
        gen_fv_core(A, r, 's[8:11]', 's[12:15]', sOffF, sOffT, 64*7168, sM0, sCnt, 2, False, name, init=init)
    g5_epilogue(A, r, 's[8:11]', 's[16:19]', sW, sFt, sDt, (s1, s2, s3), 40)
    A.label(f"{name}_exit")
    A("s_endpgm")
    return A.text(), kernel_desc(name, 256+64, 64, 256)

def gen_g6(name='g6_kernel'):
    A = Asm(); A.raw(kernel_header(name))
    r = FVRegs()
    sW=20; sDt=21; sSt=22; sKh=23; sOffF=25; sOffT=26; sCnt=27; sM0=28; sN=29; s1=30; s2=31; s3=32; s4=33; sO=44
    A(f"""
    s_cmp_ge_u32 s2, 256
    s_cbranch_scc1 {name}_exit
    s_load_dwordx2 s[4:5], s[0:1], {KA['w2']}
    s_load_dwordx2 s[6:7], s[0:1], {KA['ws']}
    s_load_dwordx2 s[34:35], s[0:1], {KA['b2']}
    s_load_dwordx2 s[36:37], s[0:1], {KA['out']}
    """)
    lanes(A, r, sW)
    A(f"""
    s_and_b32 s{s1}, s2, 7
    s_lshr_b32 s{s2}, s2, 3
    s_and_b32 s{sKh}, s{s2}, 1
    s_lshr_b32 s{s2}, s{s2}, 1
    s_and_b32 s{sDt}, s{s1}, 1
    s_lshl_b32 s{sDt}, s{sDt}, 2
    s_and_b32 s{s3}, s{s2}, 3
    s_add_u32 s{sDt}, s{sDt}, s{s3}
    s_lshr_b32 s{sSt}, s{s1}, 1
    s_lshl_b32 s{sSt}, s{sSt}, 2
    s_lshr_b32 s{s3}, s{s2}, 2
    s_add_u32 s{sSt}, s{sSt}, s{s3}
    s_waitcnt lgkmcnt(0)
    """)
    srd(A, 8, 6, 7, WS_SIZE); srd(A, 12, 4, 5, 3584*2048*2); srd(A, 16, 34, 35, 2048*2); srd(A, sO, 36, 37, 2048*1024*2)
    ws = 's[8:11]'
    fv_setup(A, r, sW, sM0, s1, s2, 4096, 112)
    A(f"""
    s_lshl_b32 s{sOffT}, s{sSt}, 8
    s_mul_i32 s{s1}, s{sKh}, {2048*4096}
    s_add_u32 s{sOffT}, s{sOffT}, s{s1}
    s_mul_i32 s{sOffF}, s{sDt}, {8*112*1024}
    s_lshl_b32 s{s1}, s{sKh}, 16
    s_add_u32 s{sOffF}, s{sOffF}, s{s1}
    s_add_u32 s{sOffF}, s{sOffF}, {WS['U']}
    s_sub_u32 s{sN}, 4, s{sKh}
    """)
    gen_fv_core(A, r, ws, 's[12:15]', sOffF, sOffT, 64*4096, sM0, sCnt, None, True, name, niter_sreg=sN)
    acc = lambda i, j: (i*8+j)*4
    t1, t2, t3 = r.t
    vX = r.vF
    vGb = r.vF + 32
    vB2 = r.vF + 40
    vP = r.vF + 64
    ep = r.vT
    sE1, sE2, sE3 = 49, 50, 51
    A.nop(8)
    A(f"""
    s_lshl_b32 s{sE1}, s{sDt}, 4
    s_add_u32 s{sE1}, s{sE1}, s{sSt}
    s_lshl_b32 s{sE1}, s{sE1}, 1
    s_add_u32 s{sE2}, s{sE1}, s{sKh}
    s_xor_b32 s{sE3}, s{sE2}, 1
    s_lshl_b32 s{sE2}, s{sE2}, 2
    s_add_u32 s{sE2}, s{sE2}, s{sW}
    s_lshl_b32 s{sE3}, s{sE3}, 2
    s_add_u32 s{sE3}, s{sE3}, s{sW}
    s_lshl_b32 s{sE1}, s{sE2}, 13
    s_add_u32 s{sE1}, s{sE1}, {WS['PX']}
    s_add_u32 s52, s{sE1}, 4096
    s_cmp_eq_u32 s{sKh}, 0
    s_cbranch_scc0 {name}_k1s
    """)
    def send(js):
        for jj, j in enumerate(js):
            for i in range(2):
                b = jj*2 + i
                A(f"buffer_store_dwordx4 {a(acc(i,j),4)}, v{r.vL16}, {ws}, s{sE1 if b < 4 else 52} offen offset:{(b%4)*1024} sc1")
    send([4,5,6,7]); A(f"s_branch {name}_sent"); A.label(f"{name}_k1s"); send([0,1,2,3]); A.label(f"{name}_sent")
    A(f"""
    v_lshlrev_b32 v{t2}, 4, v{r.vG}
    s_lshl_b32 s{s1}, s{sDt}, 2
    s_add_u32 s{s1}, s{s1}, s{sW}                      ; dblk
    s_lshl_b32 s{s3}, s{s1}, 7
    s_add_u32 s{s3}, s{s3}, {WS['MOD'] + 5*4096}
    buffer_load_dwordx4 {v(vGb,4)}, v{t2}, {ws}, s{s3} offen
    buffer_load_dwordx4 {v(vGb+4,4)}, v{t2}, {ws}, s{s3} offen offset:64
    s_lshl_b32 s{s2}, s{sSt}, 3
    s_lshl_b32 s{s4}, s{sKh}, 2
    s_add_u32 s{s2}, s{s2}, s{s4}
    v_lshlrev_b32 v{t1}, 1, v{r.vCol}
    s_lshl_b32 s{s3}, s{s2}, 5
    """)
    for jj in range(4):
        A(f"buffer_load_ushort v{vB2+jj}, v{t1}, s[16:19], s{s3} offen offset:{jj*32}")
    A(f"""
    s_lshl_b32 s{s4}, s{s2}, 15
    s_lshl_b32 s{s3}, s{s1}, 10
    s_add_u32 s{s4}, s{s4}, s{s3}
    s_add_u32 s{s4}, s{s4}, {WS['X1']}
    """)
    for jj in range(4):
        A(f"s_add_u32 s{s3}, s{s4}, {jj*32768}")
        A(f"buffer_load_dwordx4 {v(vX+4*jj,4)}, v{r.vL16}, {ws}, s{s3} offen")
    A(f"""
    v_lshlrev_b32 v{t1}, 11, v{r.vCol}
    v_and_b32 v{t3}, 1, v{r.vG}
    v_lshl_add_u32 v{t1}, v{t3}, 5, v{t1}
    v_lshrrev_b32 v{t3}, 1, v{r.vG}
    v_lshl_add_u32 v{t1}, v{t3}, 4, v{t1}
    s_lshl_b32 s{s2}, s{s2}, 15
    s_lshl_b32 s{s3}, s{s1}, 6
    s_add_u32 s{s2}, s{s2}, s{s3}
    s_waitcnt vmcnt(0)
    s_lshl_b32 s{sE2}, s{sE2}, 4
    s_add_u32 s{sE2}, s{sE2}, {FL_G6}
    v_mov_b32 v{vP}, 1
    v_mov_b32 v{vP+1}, 0
    s_mov_b64 s[54:55], exec
    s_mov_b64 exec, 1
    buffer_store_dword v{vP}, v{vP+1}, {ws}, s{sE2} offen sc1
    s_mov_b64 exec, s[54:55]
    s_lshl_b32 s{sE1}, s{sE3}, 13
    s_add_u32 s{sE1}, s{sE1}, {WS['PX']}
    s_add_u32 s52, s{sE1}, 4096
    s_lshl_b32 s{sE3}, s{sE3}, 4
    s_add_u32 s{sE3}, s{sE3}, {FL_G6}
    s_mov_b32 s53, 4000000
    {name}_wp:
    buffer_load_dword v{vP}, v{vP+1}, {ws}, s{sE3} offen sc1
    s_waitcnt vmcnt(0)
    v_readfirstlane_b32 s{sE2}, v{vP}
    s_cmp_eq_u32 s{sE2}, 1
    s_cbranch_scc1 {name}_wpok
    s_sub_u32 s53, s53, 1
    s_cbranch_scc1 {name}_exit
    s_sleep 1
    s_branch {name}_wp
    {name}_wpok:
    """)
    for b in range(8):
        A(f"buffer_load_dwordx4 {v(vP+4*b,4)}, v{r.vL16}, {ws}, s{sE1 if b < 4 else 52} offen offset:{(b%4)*1024} sc1")
    for jj in range(4): A(f"v_lshlrev_b32 v{vB2+jj}, 16, v{vB2+jj}")
    A("s_waitcnt vmcnt(0)")
    A(f"s_cmp_eq_u32 s{sKh}, 0")
    A(f"s_cbranch_scc0 {name}_k1f")
    def fin(js):
        for jj, j in enumerate(js):
            A(f"s_add_u32 s{s3}, s{s2}, {jj*16*2048}")
            e = ep + (jj % 4)*8
            for i in range(2):
                for q in range(4): A(f"v_accvgpr_read_b32 v{e+4*i+q}, a{acc(i,j)+q}")
            for i in range(2):
                for q in range(4): A(f"v_add_f32 v{e+4*i+q}, v{e+4*i+q}, v{vP+(jj*2+i)*4+q}")
            for q in range(8): A(f"v_add_f32 v{e+q}, v{e+q}, v{vB2+jj}")
            xr = vX + 4*jj
            for q in range(4):
                A(f"v_lshlrev_b32 v{t3}, 16, v{xr+q}")
                A(f"v_fma_f32 v{e+2*q}, v{e+2*q}, v{vGb+2*q}, v{t3}")
                A(f"v_and_b32 v{t3}, 0xffff0000, v{xr+q}")
                A(f"v_fma_f32 v{e+2*q+1}, v{e+2*q+1}, v{vGb+2*q+1}, v{t3}")
            for q in range(4): A(f"v_cvt_pk_bf16_f32 v{e+q}, v{e+2*q}, v{e+2*q+1}")
            A(f"""
            s_nop 1
            v_permlane16_swap_b32 v{e}, v{e+2}
            v_permlane16_swap_b32 v{e+1}, v{e+3}
            s_nop 1
            buffer_store_dwordx4 {v(e,4)}, v{t1}, s[{sO}:{sO+3}], s{s3} offen
            """)
    fin([0,1,2,3]); A(f"s_branch {name}_exit"); A.label(f"{name}_k1f"); fin([4,5,6,7])
    A.label(f"{name}_exit")
    A("s_endpgm")
    return A.text(), kernel_desc(name, 256+64, 64, 256)

def gen_ln2t(name='ln2_kernel', seg0=0, nseg=64):
    A = Asm(); A.raw(kernel_header(name))
    vX = 32; vL = 96; vM = 128
    PITCH = 2048 + 32
    A(f"""
    s_cmp_ge_u32 s2, {nseg}
    s_cbranch_scc1 {name}_exit
    s_add_u32 s2, s2, {seg0}
    s_load_dwordx2 s[20:21], s[0:1], {KA['ws']}
    v_and_b32 v1, 63, v0
    v_lshrrev_b32 v2, 6, v0
    s_nop 0
    v_readfirstlane_b32 s30, v2             ; wave 0..7
    v_and_b32 v3, 15, v1
    v_lshrrev_b32 v4, 4, v1
    v_lshlrev_b32 v5, 4, v1
    s_and_b32 s22, s30, 3                   ; d quarter
    s_lshr_b32 s31, s30, 2
    s_waitcnt lgkmcnt(0)
    """)
    srd(A, 16, 20, 21, WS_SIZE)
    A(f"""
    s_lshl_b32 s23, s2, 1
    s_add_u32 s23, s23, s31
    s_lshl_b32 s23, s23, 15
    s_lshl_b32 s24, s22, 13
    s_add_u32 s23, s23, s24
    s_add_u32 s23, s23, {WS['X1']}
    s_add_u32 s25, s23, 4096
    """)
    for kb in range(8):
        A(f"buffer_load_dwordx4 v[{vL+4*kb}:{vL+4*kb+3}], v5, s[16:19], s{23 if kb < 4 else 25} offen offset:{(kb%4)*1024}")
    A(f"""
    v_lshlrev_b32 v7, 4, v4
    s_lshl_b32 s24, s22, 10
    s_add_u32 s26, s24, {WS['MOD'] + 3*4096}
    s_add_u32 s27, s24, {WS['MOD'] + 4*4096}
    """)
    for kb in range(8):
        m = vM + kb*16
        A(f"buffer_load_dwordx4 v[{m}:{m+3}], v7, s[16:19], s27 offen offset:{kb*128}")
        A(f"buffer_load_dwordx4 v[{m+4}:{m+7}], v7, s[16:19], s27 offen offset:{kb*128+64}")
        A(f"buffer_load_dwordx4 v[{m+8}:{m+11}], v7, s[16:19], s26 offen offset:{kb*128}")
        A(f"buffer_load_dwordx4 v[{m+12}:{m+15}], v7, s[16:19], s26 offen offset:{kb*128+64}")
    A("s_waitcnt vmcnt(32)")
    for q in range(32):
        A(f"v_lshlrev_b32 v{vX+2*q}, 16, v{vL+q}")
        A(f"v_and_b32 v{vX+2*q+1}, 0xffff0000, v{vL+q}")
    RED = 70000 // 256 * 256 + 256
    RED = 66816
    def reduce_all(reg, ldsoff):
        A(f"""
        v_mov_b32 v9, v{reg}
        s_nop 1
        v_permlane16_swap_b32 v{reg}, v9
        s_nop 1
        v_add_f32 v{reg}, v{reg}, v9
        v_mov_b32 v9, v{reg}
        s_nop 1
        v_permlane32_swap_b32 v{reg}, v9
        s_nop 1
        v_add_f32 v{reg}, v{reg}, v9
        v_lshlrev_b32 v10, 2, v3
        s_lshl_b32 s24, s30, 6
        v_add_u32 v10, {RED}, v10
        v_add_u32 v11, s24, v10
        ds_write_b32 v11, v{reg} offset:{ldsoff}
        s_lshl_b32 s24, s31, 8
        v_add_u32 v10, s24, v10
        s_waitcnt lgkmcnt(0)
        s_barrier
        ds_read_b32 v12, v10 offset:{ldsoff}
        ds_read_b32 v13, v10 offset:{ldsoff+64}
        ds_read_b32 v14, v10 offset:{ldsoff+128}
        ds_read_b32 v15, v10 offset:{ldsoff+192}
        s_waitcnt lgkmcnt(0)
        v_add_f32 v12, v12, v13
        v_add_f32 v14, v14, v15
        v_add_f32 v{reg}, v12, v14
        """)
    A(f"v_add_f32 v8, v{vX}, v{vX+1}"); A(f"v_add_f32 v16, v{vX+2}, v{vX+3}"); A(f"v_add_f32 v17, v{vX+4}, v{vX+5}"); A(f"v_add_f32 v18, v{vX+6}, v{vX+7}")
    for q in range(8, 64, 4):
        A(f"v_add_f32 v8, v8, v{vX+q}"); A(f"v_add_f32 v16, v16, v{vX+q+1}"); A(f"v_add_f32 v17, v17, v{vX+q+2}"); A(f"v_add_f32 v18, v18, v{vX+q+3}")
    A("v_add_f32 v8, v8, v16"); A("v_add_f32 v17, v17, v18"); A("v_add_f32 v8, v8, v17")
    reduce_all(8, 0)
    A(f"v_mul_f32 v16, {hex(f2u(1/1024))}, v8")
    for q in range(64): A(f"v_sub_f32 v{vX+q}, v{vX+q}, v16")
    A(f"v_mul_f32 v8, v{vX}, v{vX}"); A(f"v_mul_f32 v17, v{vX+1}, v{vX+1}")
    for q in range(2, 64, 2):
        A(f"v_fmac_f32 v8, v{vX+q}, v{vX+q}"); A(f"v_fmac_f32 v17, v{vX+q+1}, v{vX+q+1}")
    A("v_add_f32 v8, v8, v17")
    reduce_all(8, 512)
    A(f"""
    v_mov_b32 v17, {hex(f2u(1e-5))}
    v_fmac_f32 v17, {hex(f2u(1/1024))}, v8
    v_rsq_f32 v17, v17
    s_lshl_b32 s24, s31, 4
    v_add_u32 v18, s24, v3
    v_mul_u32_u24 v18, {PITCH}, v18
    v_lshl_add_u32 v18, v4, 3, v18
    s_lshl_b32 s24, s22, 9
    v_add_u32 v18, s24, v18
    s_waitcnt vmcnt(0)
    """)
    for kb in range(8):
        m = vM + kb*16; x0 = vX + 8*kb
        for e in range(8): A(f"v_mul_f32 v{x0+e}, v{x0+e}, v17")
        for e in range(8): A(f"v_fma_f32 v{x0+e}, v{x0+e}, v{m+e}, v{m+8+e}")
        o = 20 + (kb % 2)*4
        for q in range(4): A(f"v_cvt_pk_bf16_f32 v{o+q}, v{x0+2*q}, v{x0+2*q+1}")
        A(f"ds_write_b64 v18, v[{o}:{o+1}] offset:{kb*64}")
        A(f"ds_write_b64 v18, v[{o+2}:{o+3}] offset:{kb*64+32}")
    A(f"""
    s_waitcnt lgkmcnt(0)
    s_barrier
    v_lshrrev_b32 v19, 2, v3
    v_lshl_add_u32 v19, v4, 2, v19
    v_mul_u32_u24 v19, {PITCH}, v19
    v_and_b32 v20, 3, v3
    v_lshl_add_u32 v19, v20, 3, v19
    s_lshl_b32 s24, s30, 8                  ; 8 tiles * 32 B
    v_add_u32 v19, s24, v19
    s_lshl_b32 s28, s30, 19
    s_lshl_b32 s24, s2, 10
    s_add_u32 s28, s28, s24
    s_add_u32 s28, s28, {WS['H2']}
    """)
    for j in range(8):
        A(f"ds_read_b64_tr_b16 v[{32+4*j}:{33+4*j}], v19 offset:{j*32}")
        A(f"ds_read_b64_tr_b16 v[{34+4*j}:{35+4*j}], v19 offset:{j*32 + 16*PITCH}")
    A("s_waitcnt lgkmcnt(0)")
    for j in range(8):
        A(f"buffer_store_dwordx4 v[{32+4*j}:{35+4*j}], v5, s[16:19], s28 offen")
        A(f"s_add_u32 s28, s28, 65536")
    A.label(f"{name}_exit")
    A("s_endpgm")
    return A.text(), kernel_desc(name, 256, 40, 256)
```

```python
from asmlib import *
from kern_misc import srd, f2u
import math

def gen_pre2(name='pre_kernel', lim=256):
    A = Asm(); A.raw(kernel_header(name))
    A(f"""
    s_cmp_ge_u32 s2, {lim}
    s_cbranch_scc1 {name}_exit
    s_cmp_ge_u32 s2, 256
    s_cbranch_scc1 {name}_pf
    s_load_dwordx2 s[4:5], s[0:1], {KA['c']}
    s_load_dwordx2 s[6:7], s[0:1], {KA['wmod']}
    s_load_dwordx2 s[20:21], s[0:1], {KA['ws']}
    s_load_dwordx2 s[30:31], s[0:1], {KA['x']}
    s_load_dwordx2 s[32:33], s[0:1], {KA['dbg']}
    s_waitcnt lgkmcnt(0)
    """)
    srd(A, 16, 20, 21, WS_SIZE); srd(A, 36, 32, 33, 256)
    A(f"""
    s_cmp_ge_u32 s2, 224
    s_cbranch_scc1 {name}_fill
    s_cmp_ge_u32 s2, 96
    s_cbranch_scc1 {name}_ln
    """)
    srd(A, 8, 4, 5, 2048); srd(A, 12, 6, 7, 1024*6144*2)
    A(f"""
    v_and_b32 v2, 7, v0
    v_lshrrev_b32 v3, 3, v0
    v_mul_u32_u24 v4, 12288, v3
    v_lshl_add_u32 v4, v2, 4, v4
    s_lshl_b32 s22, s2, 7
    v_add_u32 v4, s22, v4
    v_lshlrev_b32 v1, 3, v0
    buffer_load_dwordx2 v[10:11], v1, s[8:11], 0 offen
    """)
    for row in range(32):
        A(f"s_mov_b32 s23, {row*32*12288}")
        A(f"buffer_load_dwordx4 v[{64+4*row}:{67+4*row}], v4, s[12:15], s23 offen")
    A(f"""
    s_waitcnt vmcnt(32)
    v_lshlrev_b32 v12, 16, v10
    v_and_b32 v13, 0xffff0000, v10
    v_lshlrev_b32 v14, 16, v11
    v_and_b32 v15, 0xffff0000, v11
    s_mov_b32 s22, {hex(f2u(-math.log2(math.e)))}
    """)
    for r in range(4): A(f"v_mul_f32 v{16+r}, s22, v{12+r}")
    for r in range(4): A(f"v_exp_f32 v{16+r}, v{16+r}")
    A("s_nop 0")
    for r in range(4): A(f"v_add_f32 v{16+r}, 1.0, v{16+r}")
    for r in range(4): A(f"v_rcp_f32 v{16+r}, v{16+r}")
    A("s_nop 0")
    for r in range(4): A(f"v_mul_f32 v{16+r}, v{16+r}, v{12+r}")
    A(f"""
    v_cvt_pk_bf16_f32 v20, v16, v17
    v_cvt_pk_bf16_f32 v21, v18, v19
    v_lshlrev_b32 v16, 16, v20
    v_and_b32 v17, 0xffff0000, v20
    v_lshlrev_b32 v18, 16, v21
    v_and_b32 v19, 0xffff0000, v21
    v_lshlrev_b32 v1, 4, v0
    ds_write_b128 v1, v[16:19]
    s_waitcnt lgkmcnt(0)
    s_barrier
    v_lshlrev_b32 v5, 2, v3
    """)
    for i in range(32):
        A(f"ds_read_b32 v{24+i}, v5 offset:{i*128}")
        if i % 8 == 7: A("s_waitcnt lgkmcnt(0)")
    for r in range(8): A(f"v_mov_b32 v{56+r}, 0")
    for i in range(32):
        if i % 8 == 0: A(f"s_waitcnt vmcnt({24 - i})")
        for q in range(4):
            A(f"v_lshlrev_b32 v22, 16, v{64+4*i+q}")
            A(f"v_and_b32 v23, 0xffff0000, v{64+4*i+q}")
            A(f"v_fmac_f32 v{56+2*q}, v22, v{24+i}")
            A(f"v_fmac_f32 v{57+2*q}, v23, v{24+i}")
    A(f"""
    v_lshlrev_b32 v5, 8, v3
    v_lshl_add_u32 v5, v2, 5, v5
    ds_write_b128 v5, v[56:59] offset:4096
    ds_write_b128 v5, v[60:63] offset:4112
    s_waitcnt lgkmcnt(0)
    s_barrier
    v_cmp_gt_u32 vcc, 64, v0
    s_and_saveexec_b64 s[24:25], vcc
    s_cbranch_execz {name}_exit
    v_lshlrev_b32 v5, 2, v0
    """)
    for i in range(32):
        A(f"ds_read_b32 v{64+i}, v5 offset:{4096+i*256}")
        if i % 8 == 7: A("s_waitcnt lgkmcnt(0)")
    for st in (16, 8, 4, 2, 1):
        for i in range(st): A(f"v_add_f32 v{64+i}, v{64+i}, v{64+i+st}")
    A(f"""
    v_cvt_pk_bf16_f32 v33, v64, v64
    v_lshlrev_b32 v33, 16, v33
    v_add_f32 v34, 1.0, v33
    v_cvt_pk_bf16_f32 v34, v34, v34
    v_lshlrev_b32 v34, 16, v34
    s_lshr_b32 s22, s2, 4
    s_cmp_eq_u32 s22, 1
    s_cselect_b32 s23, 1, 0
    s_cmp_eq_u32 s22, 4
    s_cselect_b32 s23, 1, s23
    s_cmp_eq_u32 s23, 1
    s_cbranch_scc0 {name}_nop1
    v_mov_b32 v33, v34
    {name}_nop1:
    s_lshl_b32 s22, s2, 8
    s_add_u32 s22, s22, {WS['MOD']}
    buffer_store_dword v33, v5, s[16:19], s22 offen sc1
    s_cmp_ge_u32 s2, 32
    s_cbranch_scc1 {name}_exit
    s_waitcnt vmcnt(0)
    s_mov_b64 exec, 1
    v_mov_b32 v6, 0
    v_mov_b32 v7, 1
    buffer_atomic_add v7, v6, s[36:39], 0 offen
    s_endpgm
    """)
    A.label(f"{name}_fill")
    A(f"""
    s_sub_u32 s22, s2, 224
    s_lshl_b32 s23, s22, 12
    s_add_u32 s23, s23, {WS['FLAGS']}
    v_lshlrev_b32 v1, 4, v0
    v_mov_b32 v4, 0
    v_mov_b32 v5, 0
    v_mov_b32 v6, 0
    v_mov_b32 v7, 0
    buffer_store_dwordx4 v[4:7], v1, s[16:19], s23 offen
    v_mov_b32 v8, -1
    v_mov_b32 v9, -1
    v_mov_b32 v10, -1
    v_mov_b32 v11, -1
    s_lshl_b32 s22, s22, 12
    s_add_u32 s22, s22, {WS['RA']}
    {name}_floop:
    buffer_store_dwordx4 v[8:11], v1, s[16:19], s22 offen
    s_add_u32 s22, s22, {32*4096}
    s_cmp_lt_u32 s22, {WS['RING_END']}
    s_cbranch_scc1 {name}_floop
    s_endpgm
    """)
    A.label(f"{name}_ln")
    vX = 32; vL = 96; vM = 128
    srd(A, 8, 30, 31, 2048*1024*2)
    A(f"""
    s_sub_u32 s2, s2, 96
    v_and_b32 v1, 63, v0
    v_lshrrev_b32 v2, 6, v0
    s_nop 0
    v_readfirstlane_b32 s22, v2
    v_and_b32 v3, 15, v1
    v_lshrrev_b32 v4, 4, v1
    v_lshlrev_b32 v5, 4, v1
    v_lshlrev_b32 v6, 11, v3
    v_lshl_add_u32 v6, v4, 3, v6
    s_lshl_b32 s23, s2, 15
    s_lshl_b32 s24, s22, 9
    s_add_u32 s23, s23, s24
    """)
    for kb in range(8):
        A(f"buffer_load_dwordx2 v[{vL+4*kb}:{vL+4*kb+1}], v6, s[8:11], s23 offen offset:{kb*64}")
        A(f"buffer_load_dwordx2 v[{vL+4*kb+2}:{vL+4*kb+3}], v6, s[8:11], s23 offen offset:{kb*64+32}")
    A(f"""
    v_lshlrev_b32 v7, 4, v4
    s_lshl_b32 s24, s22, 10
    s_add_u32 s26, s24, {WS['MOD']}
    s_add_u32 s27, s24, {WS['MOD'] + 4096}
    s_waitcnt vmcnt(0)
    """)
    for q in range(32):
        A(f"v_lshlrev_b32 v{vX+2*q}, 16, v{vL+q}")
        A(f"v_and_b32 v{vX+2*q+1}, 0xffff0000, v{vL+q}")
    def reduce_all(reg, ldsoff):
        A(f"""
        v_mov_b32 v9, v{reg}
        s_nop 1
        v_permlane16_swap_b32 v{reg}, v9
        s_nop 1
        v_add_f32 v{reg}, v{reg}, v9
        v_mov_b32 v9, v{reg}
        s_nop 1
        v_permlane32_swap_b32 v{reg}, v9
        s_nop 1
        v_add_f32 v{reg}, v{reg}, v9
        v_lshlrev_b32 v10, 2, v3
        s_lshl_b32 s24, s22, 6
        v_add_u32 v11, s24, v10
        ds_write_b32 v11, v{reg} offset:{ldsoff}
        s_waitcnt lgkmcnt(0)
        s_barrier
        ds_read_b32 v12, v10 offset:{ldsoff}
        ds_read_b32 v13, v10 offset:{ldsoff+64}
        ds_read_b32 v14, v10 offset:{ldsoff+128}
        ds_read_b32 v15, v10 offset:{ldsoff+192}
        s_waitcnt lgkmcnt(0)
        v_add_f32 v12, v12, v13
        v_add_f32 v14, v14, v15
        v_add_f32 v{reg}, v12, v14
        """)
    A(f"v_add_f32 v8, v{vX}, v{vX+1}"); A(f"v_add_f32 v16, v{vX+2}, v{vX+3}"); A(f"v_add_f32 v17, v{vX+4}, v{vX+5}"); A(f"v_add_f32 v18, v{vX+6}, v{vX+7}")
    for q in range(8, 64, 4):
        A(f"v_add_f32 v8, v8, v{vX+q}"); A(f"v_add_f32 v16, v16, v{vX+q+1}"); A(f"v_add_f32 v17, v17, v{vX+q+2}"); A(f"v_add_f32 v18, v18, v{vX+q+3}")
    A("v_add_f32 v8, v8, v16"); A("v_add_f32 v17, v17, v18"); A("v_add_f32 v8, v8, v17")
    reduce_all(8, 0)
    A(f"v_mul_f32 v16, {hex(f2u(1/1024))}, v8")
    for q in range(64): A(f"v_sub_f32 v{vX+q}, v{vX+q}, v16")
    A(f"v_mul_f32 v8, v{vX}, v{vX}"); A(f"v_mul_f32 v17, v{vX+1}, v{vX+1}")
    for q in range(2, 64, 2):
        A(f"v_fmac_f32 v8, v{vX+q}, v{vX+q}"); A(f"v_fmac_f32 v17, v{vX+q+1}, v{vX+q+1}")
    A("v_add_f32 v8, v8, v17")
    reduce_all(8, 256)
    A(f"""
    v_mov_b32 v17, {hex(f2u(1e-5))}
    v_fmac_f32 v17, {hex(f2u(1/1024))}, v8
    v_rsq_f32 v17, v17
    s_nop 0
    """)
    for q in range(64): A(f"v_mul_f32 v{vX+q}, v{vX+q}, v17")
    A(f"""
    v_mov_b32 v18, 0
    s_mov_b32 s34, 4000000
    {name}_wm:
    buffer_load_dword v19, v18, s[36:39], 0 offen sc1
    s_waitcnt vmcnt(0)
    v_readfirstlane_b32 s35, v19
    s_cmp_ge_u32 s35, 32
    s_cbranch_scc1 {name}_wmok
    s_sub_u32 s34, s34, 1
    s_cbranch_scc1 {name}_exit
    s_sleep 2
    s_branch {name}_wm
    {name}_wmok:
    """)
    for kb in range(8):
        m = vM + kb*16
        A(f"buffer_load_dwordx4 v[{m}:{m+3}], v7, s[16:19], s27 offen offset:{kb*128} sc1")
        A(f"buffer_load_dwordx4 v[{m+4}:{m+7}], v7, s[16:19], s27 offen offset:{kb*128+64} sc1")
        A(f"buffer_load_dwordx4 v[{m+8}:{m+11}], v7, s[16:19], s26 offen offset:{kb*128} sc1")
        A(f"buffer_load_dwordx4 v[{m+12}:{m+15}], v7, s[16:19], s26 offen offset:{kb*128+64} sc1")
    A(f"""
    s_lshl_b32 s28, s2, 15
    s_lshl_b32 s24, s22, 13
    s_add_u32 s28, s28, s24
    s_add_u32 s28, s28, {WS['H']}
    s_add_u32 s29, s28, 4096
    """)
    for kb in range(8):
        m = vM + kb*16
        A(f"s_waitcnt vmcnt({4*(7-kb) + kb})") if False else None
        if kb == 0: A("s_waitcnt vmcnt(0)")
        x0 = vX + 8*kb
        for e in range(8):
            A(f"v_fma_f32 v{x0+e}, v{x0+e}, v{m+e}, v{m+8+e}")
        o = 20 + (kb % 2)*4
        for q in range(4):
            A(f"v_cvt_pk_bf16_f32 v{o+q}, v{x0+2*q}, v{x0+2*q+1}")
        A(f"buffer_store_dwordx4 v[{o}:{o+3}], v5, s[16:19], s{28 if kb < 4 else 29} offen offset:{(kb%4)*1024}")
    A.label(f"{name}_exit")
    A("s_endpgm")
    A.label(f"{name}_pf")
    A(f"""
    s_load_dwordx2 s[4:5], s[0:1], {KA['Wk']}
    s_load_dwordx2 s[6:7], s[0:1], {KA['Wv']}
    s_load_dwordx2 s[8:9], s[0:1], {KA['Wq']}
    s_load_dwordx2 s[10:11], s[0:1], {KA['Wo']}
    s_sub_u32 s2, s2, 256
    s_lshr_b32 s3, s2, 6
    s_and_b32 s2, s2, 63
    s_waitcnt lgkmcnt(0)
    s_cmp_eq_u32 s3, 1
    s_cselect_b32 s12, s6, s4
    s_cselect_b32 s13, s7, s5
    s_cmp_eq_u32 s3, 2
    s_cselect_b32 s12, s8, s12
    s_cselect_b32 s13, s9, s13
    s_cmp_eq_u32 s3, 3
    s_cselect_b32 s12, s10, s12
    s_cselect_b32 s13, s11, s13
    s_mov_b32 s14, {8<<20}
    s_mov_b32 s15, 0x20000
    s_lshl_b32 s2, s2, 17
    v_lshlrev_b32 v1, 4, v0
    """)
    for i in range(32):
        A(f"buffer_load_dwordx4 v[{4+4*i}:{7+4*i}], v1, s[12:15], s2 offen")
        A(f"s_add_u32 s2, s2, 4096")
    A("s_waitcnt vmcnt(0)")
    A("s_endpgm")
    return A.text(), kernel_desc(name, 256, 48, 256)
```

```python
from asmlib import *
from gemm import *
from kern_g1 import common_regs
from gemmfv import *
from mega_ext import ln_task, g5a_task, FL_H2CNT, FL_X1G
from kern_attn import attn_body
import chain as chainmod
import struct, math
def f2u(x): return struct.unpack('<I', struct.pack('<f', x))[0]

sWS=8; sWt=12; sAux=16; sW=20; sWr=21; sWc=22; sTn=23; sTm=24; sOffR=25; sOffC=26; sCnt=27; sM0R=28; sM0C=29
s1=30; s2=31; sMat=32; sHead=33; sSeg=34; sBase=35; s3=36; s4=37; sX=38; sTask=39; sBud=40; sSig=41; sEx=42
sPq=44; sPk=46; sPv=48; sPo=50; sPx=52; sCexp=54; sTg=55; sA1=56; sA2=57; sA3=58; sA4=59; sI=60
LDS_TASK = 131072
ws = f"s[{sWS}:{sWS+3}]"; wt = f"s[{sWt}:{sWt+3}]"; aux = f"s[{sAux}:{sAux+3}]"
vLane, vCol, vG, vL16 = 1, 2, 3, 4
WBUD = 2000000
USE_FV = True
G5A = False
FORCE_FB = 32
NWORK = 16

def wait_counter(A, name, soff_expr_lines, target, lbl, sleep=12):
    A(soff_expr_lines)
    A(f"""
    s_cmp_lg_u32 s{sW}, 0
    s_cbranch_scc1 {lbl}_ok
    v_mov_b32 v5, 0
    {lbl}:
    buffer_load_dword v6, v5, {ws}, s{s1} offen sc1
    s_waitcnt vmcnt(0)
    v_readfirstlane_b32 s{s2}, v6
    s_cmp_ge_u32 s{s2}, {target}
    s_cbranch_scc1 {lbl}_ok
    s_sub_u32 s{sBud}, s{sBud}, 1
    s_cbranch_scc1 {name}_exit
    s_sleep {sleep}
    s_branch {lbl}
    {lbl}_ok:
    s_barrier
    """)

def set_wt(A, p, size):
    A(f"s_mov_b32 s{sWt}, s{p}"); A(f"s_mov_b32 s{sWt+1}, s{p+1}"); A(f"s_mov_b32 s{sWt+2}, {size}"); A(f"s_mov_b32 s{sWt+3}, 0x20000")

def store_pack(A, e, srcs, addr_v, soff, off, fl):
    for hh in range(2):
        for r in range(4): A(f"v_accvgpr_read_b32 v{e+4*hh+r}, a{srcs[hh]+r}")
    A(f"v_cvt_pk_bf16_f32 v{e}, v{e}, v{e+1}")
    A(f"v_cvt_pk_bf16_f32 v{e+1}, v{e+2}, v{e+3}")
    A(f"v_cvt_pk_bf16_f32 v{e+2}, v{e+4}, v{e+5}")
    A(f"v_cvt_pk_bf16_f32 v{e+3}, v{e+6}, v{e+7}")
    A(f"buffer_store_dwordx4 {v(e,4)}, v{addr_v}, {ws}, s{soff} offen offset:{off}{fl}")

def g1_tile(A, name, n, ksps, S, isv, fl):
    sF = Side('F', n, ksps); sT = Side('T', n, ksps)
    sR, sC = (sF, sT) if isv else (sT, sF)
    d = common_regs(n, n, sR, sC)
    regs = dict(d); regs.update(sM0R=sM0R, sM0C=sM0C, sCnt=sCnt, ldsR=0, ldsC=65536, acc=lambda i,j: (i*n+j)*4)
    tmp = {'v': d['t'], 's': (s1, s2)}
    setup_side(A, sR, regs, 'R', sW, sWr, vLane, vCol, vG, tmp, 8192, 32, 0)
    setup_side(A, sC, regs, 'C', sW, sWc, vLane, vCol, vG, tmp, 8192, 32, 65536)
    sH, sWo = (sOffR, sOffC) if isv else (sOffC, sOffR)
    A(f"""
    s_lshl_b32 s{sH}, s{sTm}, 15
    s_add_u32 s{sH}, s{sH}, {WS['H']}
    s_lshl_b32 s{sWo}, s{sHead}, 8
    """)
    stepH, stepW = ksps*1024, 32*ksps*8192
    if isv: gen_gemm_core(A, sR, sC, 32//ksps, S, ws, wt, sOffR, sOffC, stepH, stepW, regs, pfx=name)
    else:   gen_gemm_core(A, sR, sC, 32//ksps, S, wt, ws, sOffR, sOffC, stepW, stepH, regs, pfx=name)
    ep = d['vEp']; acc = regs['acc']
    A.nop(8)
    tokhalf, feathalf = (sWr, sWc) if isv else (sWc, sWr)
    A(f"""
    s_lshr_b32 s{sSeg}, s{sTm}, 1
    s_mul_i32 s{s1}, s{tokhalf}, {n//2}
    s_add_u32 s{sSeg}, s{sSeg}, s{s1}
    s_lshl_b32 s{sBase}, s{sSeg}, 5
    s_add_u32 s{sBase}, s{sBase}, s{sHead}
    """)
    if n == 8: A(f"s_add_u32 s{sBase}, s{sBase}, s{feathalf}")
    A(f"s_lshl_b32 s{sBase}, s{sBase}, 13")
    if n == 4:
        A(f"s_lshl_b32 s{s1}, s{feathalf}, {12 if isv else 11}")
        A(f"s_add_u32 s{sBase}, s{sBase}, s{s1}")
    if not isv:
        A(f"s_lshl_b32 s{s1}, s{sMat}, 24")
        A(f"s_add_u32 s{sBase}, s{sBase}, s{s1}")
        A(f"s_add_u32 s{sBase}, s{sBase}, {WS['Q']}")
        k = 0
        for j in range(n):
            A(f"s_add_u32 s{s1}, s{sBase}, {(j>>1)*(1<<18) + (j&1)*4096}")
            for p in range(n//2):
                e = ep + (k % 4)*8; k += 1
                store_pack(A, e, (acc(2*p, j), acc(2*p+1, j)), vL16, s1, p*1024, fl)
    else:
        A(f"s_add_u32 s{sBase}, s{sBase}, {WS['VT']}")
        k = 0
        for pp in range(n//2):
            for j in range(n):
                if j % 4 == 0:
                    A(f"s_add_u32 s{s1}, s{sBase}, {pp*(1<<18) + (j//4)*4096}")
                e = ep + (k % 4)*8; k += 1
                store_pack(A, e, (acc(2*pp, j), acc(2*pp+1, j)), vL16, s1, (j%4)*1024, fl)

def g4_tile(A, name, ksps, S, fl, ldfl, split=False, wname=None):
    sR = Side('T', 4, ksps); sC = Side('F', 4, ksps)
    d = common_regs(4, 4, sR, sC)
    regs = dict(d); regs.update(sM0R=sM0R, sM0C=sM0C, sCnt=sCnt, ldsR=0, ldsC=65536, acc=lambda i,j: (i*4+j)*4)
    tmp = {'v': d['t'], 's': (s1, s2)}
    set_wt(A, sPo, 4096*1024*2)
    A(f"s_mov_b32 s{sAux}, s{sPx}"); A(f"s_mov_b32 s{sAux+1}, s{sPx+1}"); A(f"s_mov_b32 s{sAux+2}, {2048*1024*2}"); A(f"s_mov_b32 s{sAux+3}, 0x20000")
    setup_side(A, sR, regs, 'R', sW, sWr, vLane, vCol, vG, tmp, 2048, None, 0)
    setup_side(A, sC, regs, 'C', sW, sWc, vLane, vCol, vG, tmp, None, 128, 65536)
    A(f"s_lshl_b32 s{sOffR}, s{sX}, 8")
    A(f"s_lshl_b32 s{sOffC}, s{sTg}, 20")
    A(f"s_add_u32 s{sOffC}, s{sOffC}, {WS['O']}")
    bk = 32*ksps
    if split:
        A(f"s_lshl_b32 s{s1}, s{sI}, 20")
        A(f"s_add_u32 s{sOffR}, s{sOffR}, s{s1}")
        A(f"s_lshl_b32 s{s1}, s{sI}, 14")
        A(f"s_add_u32 s{sOffC}, s{sOffC}, s{s1}")
    gen_gemm_core(A, sR, sC, (512 if split else 4096)//bk, S, wt, ws, sOffR, sOffC, bk*2048, ksps*1024, regs, pfx=name, ldflagC=ldfl)
    if split:
        acc = regs['acc']
        A.nop(8)
        A(f"""
        s_sub_u32 s{s1}, s{sTg}, 13
        s_lshl_b32 s{s1}, s{s1}, 3
        s_add_u32 s{s1}, s{s1}, s{sI}
        s_lshl_b32 s{s1}, s{s1}, 19
        s_lshl_b32 s{s2}, s{sWc}, 18
        s_add_u32 s{s1}, s{s1}, s{s2}
        s_lshl_b32 s{s2}, s{sX}, 13
        s_add_u32 s{s1}, s{s1}, s{s2}
        s_lshl_b32 s{s2}, s{sWr}, 12
        s_add_u32 s{s1}, s{s1}, s{s2}
        s_add_u32 s{s1}, s{s1}, {WS['P4']}
        v_lshlrev_b32 v5, 5, v{vLane}
        """)
        for j in range(4):
            A(f"s_add_u32 s{s2}, s{s1}, {j*65536}")
            for p in range(2):
                for hh in range(2):
                    A(f"buffer_store_dwordx4 {a(acc(2*p+hh, j),4)}, v5, {ws}, s{s2} offen offset:{p*2048 + hh*16} sc1")
        g4_split_reduce(A, name, wname)
        return
    acc = regs['acc']; ep = d['vEp']; t1, t2, t3 = d['t']
    vF = d['vFR']; vF2 = d['vFC']
    A.nop(8)
    A(f"""
    v_lshlrev_b32 v{t1}, 11, v{vCol}
    v_lshl_add_u32 v{t1}, v{vG}, 3, v{t1}
    v_lshlrev_b32 v{t2}, 4, v{vG}
    s_lshl_b32 s{s1}, s{sX}, 7
    s_lshl_b32 s{s2}, s{sWr}, 6
    s_add_u32 s{s1}, s{s1}, s{s2}
    s_lshl_b32 s{s3}, s{s1}, 2
    s_add_u32 s{s3}, s{s3}, {WS['MOD'] + 2*4096}
    """)
    for p in range(2):
        for hh in range(2):
            A(f"buffer_load_dwordx4 {v(vF2+8*p+4*hh,4)}, v{t2}, {ws}, s{s3} offen offset:{(32*p+16*hh)*4}")
    A(f"""
    s_lshl_b32 s{s2}, s{sTg}, 3
    s_lshl_b32 s{s4}, s{sWc}, 2
    s_add_u32 s{s2}, s{s2}, s{s4}
    s_lshl_b32 s{s4}, s{s2}, 15
    s_lshl_b32 s{s3}, s{s1}, 1
    s_add_u32 s{s4}, s{s4}, s{s3}
    s_lshl_b32 s{s2}, s{s2}, 15
    s_lshl_b32 s{s3}, s{s1}, 5
    s_add_u32 s{s2}, s{s2}, s{s3}
    s_add_u32 s{s2}, s{s2}, {WS['X1']}
    """)
    for j in range(4):
        A(f"s_add_u32 s{s3}, s{s4}, {j*16*2048}")
        for p in range(2):
            for hh in range(2):
                A(f"buffer_load_dwordx2 {v(vF+(j*2+p)*4+2*hh,2)}, v{t1}, {aux}, s{s3} offen offset:{(32*p+16*hh)*2}")
    A("s_waitcnt vmcnt(0)")
    k = 0
    for j in range(4):
        A(f"s_add_u32 s{s3}, s{s2}, {j*32768}")
        for p in range(2):
            e = ep + (k % 4)*8; k += 1
            xr = vF + (j*2+p)*4
            for hh in range(2):
                for r in range(4):
                    A(f"v_accvgpr_read_b32 v{e+4*hh+r}, a{acc(2*p+hh, j)+r}")
            for hh in range(2):
                for q in range(2):
                    A(f"v_lshlrev_b32 v{t3}, 16, v{xr+2*hh+q}")
                    A(f"v_fma_f32 v{e+4*hh+2*q}, v{e+4*hh+2*q}, v{vF2+8*p+4*hh+2*q}, v{t3}")
                    A(f"v_and_b32 v{t3}, 0xffff0000, v{xr+2*hh+q}")
                    A(f"v_fma_f32 v{e+4*hh+2*q+1}, v{e+4*hh+2*q+1}, v{vF2+8*p+4*hh+2*q+1}, v{t3}")
            for q in range(4):
                A(f"v_cvt_pk_bf16_f32 v{e+q}, v{e+2*q}, v{e+2*q+1}")
            A(f"buffer_store_dwordx4 {v(e,4)}, v{vL16}, {ws}, s{s3} offen offset:{p*1024}{fl}")

def g4_split_reduce(A, name, wname):
    A(f"""
    s_sub_u32 s{s3}, s{sTg}, 13
    s_lshl_b32 s{s3}, s{s3}, 3
    s_add_u32 s{s3}, s{s3}, s{sX}
    s_lshl_b32 s{s3}, s{s3}, 7
    s_add_u32 s{s3}, s{s3}, {FL_X1RDY}
    s_waitcnt vmcnt(0)
    s_barrier
    s_cmp_lg_u32 s{sW}, 0
    s_cbranch_scc1 {name}_ns
    s_mov_b64 s[{sEx}:{sEx+1}], exec
    s_mov_b64 exec, 1
    v_mov_b32 v6, 0
    v_mov_b32 v7, 1
    buffer_atomic_add v7, v6, {ws}, s{s3} offen
    s_mov_b64 exec, s[{sEx}:{sEx+1}]
    {name}_ns:
    """)
    wait_counter(A, wname, f"s_mov_b32 s{s1}, s{s3}", 8, f"{name}_wp")
    vP = 16
    A(f"""
    s_sub_u32 s{s1}, s{sTg}, 13
    s_lshl_b32 s{s1}, s{s1}, 22
    s_lshl_b32 s{s2}, s{sI}, 16
    s_add_u32 s{s1}, s{s1}, s{s2}
    s_lshl_b32 s{s2}, s{sX}, 2
    s_add_u32 s{s2}, s{s2}, s{sW}               ; dblk
    s_lshl_b32 s{s3}, s{s2}, 11
    s_add_u32 s{s1}, s{s1}, s{s3}
    s_add_u32 s{s1}, s{s1}, {WS['P4']}
    v_lshlrev_b32 v5, 5, v{vLane}
    """)
    for kq in range(8):
        if kq: A(f"s_add_u32 s{s1}, s{s1}, {1<<19}")
        A(f"buffer_load_dwordx4 {v(vP+8*kq,4)}, v5, {ws}, s{s1} offen sc1")
        A(f"buffer_load_dwordx4 {v(vP+8*kq+4,4)}, v5, {ws}, s{s1} offen offset:16 sc1")
    A(f"""
    v_lshlrev_b32 v6, 11, v{vCol}
    v_lshl_add_u32 v6, v{vG}, 3, v6
    s_lshl_b32 s{s3}, s{sTg}, 3
    s_add_u32 s{s3}, s{s3}, s{sI}
    s_lshl_b32 s{s4}, s{s3}, 15
    s_lshl_b32 s{s1}, s{s2}, 6
    s_add_u32 s{s4}, s{s4}, s{s1}
    buffer_load_dwordx2 v[88:89], v6, {aux}, s{s4} offen
    buffer_load_dwordx2 v[90:91], v6, {aux}, s{s4} offen offset:32
    v_lshlrev_b32 v7, 4, v{vG}
    s_lshl_b32 s{s1}, s{s2}, 7
    s_add_u32 s{s1}, s{s1}, {WS['MOD'] + 2*4096}
    buffer_load_dwordx4 v[92:95], v7, {ws}, s{s1} offen
    buffer_load_dwordx4 v[96:99], v7, {ws}, s{s1} offen offset:64
    s_lshl_b32 s{s3}, s{s3}, 15
    s_lshl_b32 s{s1}, s{s2}, 10
    s_add_u32 s{s3}, s{s3}, s{s1}
    s_add_u32 s{s3}, s{s3}, {WS['X1']}
    s_waitcnt vmcnt(0)
    """)
    for kq in range(1, 8):
        for q in range(8): A(f"v_add_f32 v{vP+q}, v{vP+q}, v{vP+8*kq+q}")
    for q in range(4):
        A(f"v_lshlrev_b32 v100, 16, v{88+q}")
        A(f"v_fma_f32 v{vP+2*q}, v{vP+2*q}, v{92+2*q}, v100")
        A(f"v_and_b32 v100, 0xffff0000, v{88+q}")
        A(f"v_fma_f32 v{vP+2*q+1}, v{vP+2*q+1}, v{92+2*q+1}, v100")
    for q in range(4):
        A(f"v_cvt_pk_bf16_f32 v{vP+q}, v{vP+2*q}, v{vP+2*q+1}")
    A(f"buffer_store_dwordx4 {v(vP,4)}, v{vL16}, {ws}, s{s3} offen")


def fv_kv_tile(A, name, isv, fl):
    r = FVRegs()
    fv_setup(A, r, sW, sM0R, s1, s2, 8192, 32)
    A(f"""
    s_lshl_b32 s{sOffR}, s{sTm}, 15
    s_add_u32 s{sOffR}, s{sOffR}, {WS['H']}
    s_lshl_b32 s{sOffC}, s{sHead}, 8
    """)
    gen_fv_core(A, r, ws, wt, sOffR, sOffC, 64*8192, sM0R, sCnt, 2, isv, name)
    A.nop(8)
    A(f"""
    s_lshr_b32 s{sSeg}, s{sTm}, 1
    s_add_u32 s{sSeg}, s{sSeg}, s{sW}
    s_lshl_b32 s{sBase}, s{sSeg}, 5
    s_add_u32 s{sBase}, s{sBase}, s{sHead}
    s_lshl_b32 s{sBase}, s{sBase}, 13
    """)
    ep = r.vEp
    if not isv:
        A(f"s_lshl_b32 s{s1}, s{sMat}, 24")
        A(f"s_add_u32 s{sBase}, s{sBase}, s{s1}")
        A(f"s_add_u32 s{sBase}, s{sBase}, {WS['Q']}")
        k = 0
        for j in range(2):
            A(f"s_add_u32 s{s1}, s{sBase}, {j*4096}")
            for p in range(4):
                e = ep + (k % 4)*8; k += 1
                store_pack(A, e, (((2*p)*2+j)*4, ((2*p+1)*2+j)*4), r.vL16, s1, p*1024, fl)
    else:
        A(f"s_add_u32 s{sBase}, s{sBase}, {WS['VT']}")
        for j in range(8):
            if j % 4 == 0: A(f"s_add_u32 s{s1}, s{sBase}, {(j//4)*4096}")
            e = ep + (j % 4)*8
            store_pack(A, e, (j*4, (8+j)*4), r.vL16, s1, (j%4)*1024, fl)

def fv_g4_tile(A, name, split=False, wname=None):
    r = FVRegs()
    set_wt(A, sPo, 4096*1024*2)
    A(f"s_mov_b32 s{sAux}, s{sPx}"); A(f"s_mov_b32 s{sAux+1}, s{sPx+1}"); A(f"s_mov_b32 s{sAux+2}, {2048*1024*2}"); A(f"s_mov_b32 s{sAux+3}, 0x20000")
    fv_setup(A, r, sW, sM0R, s1, s2, 2048, 128)
    A(f"s_lshl_b32 s{sOffC}, s{sX}, 8")
    A(f"s_lshl_b32 s{sOffR}, s{sTg}, 20")
    A(f"s_add_u32 s{sOffR}, s{sOffR}, {WS['O']}")
    if split:
        A(f"s_lshl_b32 s{s1}, s{sI}, 20")
        A(f"s_add_u32 s{sOffC}, s{sOffC}, s{s1}")
        A(f"s_lshl_b32 s{s1}, s{sI}, 14")
        A(f"s_add_u32 s{sOffR}, s{sOffR}, s{s1}")
    gen_fv_core(A, r, ws, wt, sOffR, sOffC, 64*2048, sM0R, sCnt, 1 if split else 8, False, name, flF=' sc1')
    acc = lambda i, j: (i*2+j)*4
    A.nop(8)
    t1, t2, t3 = r.t
    if split:
        A(f"""
        s_sub_u32 s{s1}, s{sTg}, 13
        s_lshl_b32 s{s1}, s{s1}, 3
        s_add_u32 s{s1}, s{s1}, s{sI}
        s_lshl_b32 s{s1}, s{s1}, 19
        s_lshl_b32 s{s2}, s{sW}, 17
        s_add_u32 s{s1}, s{s1}, s{s2}
        s_lshl_b32 s{s2}, s{sX}, 13
        s_add_u32 s{s1}, s{s1}, s{s2}
        s_add_u32 s{s1}, s{s1}, {WS['P4']}
        v_lshlrev_b32 v5, 5, v{vLane}
        """)
        for j in range(2):
            for p in range(4):
                if p % 2 == 0: A(f"s_add_u32 s{s2}, s{s1}, {j*65536 + p*2048}")
                for hh in range(2):
                    A(f"buffer_store_dwordx4 {a(acc(2*p+hh, j),4)}, v5, {ws}, s{s2} offen offset:{(p%2)*2048 + hh*16} sc1")
        g4_split_reduce(A, name, wname)
        return
    vX = r.vF; vGa = r.vF + 64; ep = r.vT
    A(f"""
    v_lshlrev_b32 v{t1}, 11, v{vCol}
    v_lshl_add_u32 v{t1}, v{vG}, 3, v{t1}
    v_lshlrev_b32 v{t2}, 4, v{vG}
    s_lshl_b32 s{s3}, s{sX}, 9
    s_add_u32 s{s3}, s{s3}, {WS['MOD'] + 2*4096}
    """)
    for p in range(4):
        for hh in range(2):
            A(f"buffer_load_dwordx4 {v(vGa+8*p+4*hh,4)}, v{t2}, {ws}, s{s3} offen offset:{(32*p+16*hh)*4}")
    A(f"""
    s_lshl_b32 s{s2}, s{sTg}, 3
    s_lshl_b32 s{s4}, s{sW}, 1
    s_add_u32 s{s2}, s{s2}, s{s4}
    s_lshl_b32 s{s4}, s{s2}, 15
    s_lshl_b32 s{s3}, s{sX}, 8
    s_add_u32 s{s4}, s{s4}, s{s3}
    s_lshl_b32 s{s2}, s{s2}, 15
    s_lshl_b32 s{s3}, s{sX}, 12
    s_add_u32 s{s2}, s{s2}, s{s3}
    s_add_u32 s{s2}, s{s2}, {WS['X1']}
    """)
    for j in range(2):
        A(f"s_add_u32 s{s3}, s{s4}, {j*16*2048}")
        for p in range(4):
            for hh in range(2):
                A(f"buffer_load_dwordx2 {v(vX+(j*4+p)*4+2*hh,2)}, v{t1}, {aux}, s{s3} offen offset:{(32*p+16*hh)*2}")
    A("s_waitcnt vmcnt(0)")
    k = 0
    for j in range(2):
        A(f"s_add_u32 s{s3}, s{s2}, {j*32768}")
        for p in range(4):
            e = ep + (k % 4)*8; k += 1
            xr = vX + (j*4+p)*4
            for hh in range(2):
                for q in range(4):
                    A(f"v_accvgpr_read_b32 v{e+4*hh+q}, a{acc(2*p+hh, j)+q}")
            for hh in range(2):
                for q in range(2):
                    A(f"v_lshlrev_b32 v{t3}, 16, v{xr+2*hh+q}")
                    A(f"v_fma_f32 v{e+4*hh+2*q}, v{e+4*hh+2*q}, v{vGa+8*p+4*hh+2*q}, v{t3}")
                    A(f"v_and_b32 v{t3}, 0xffff0000, v{xr+2*hh+q}")
                    A(f"v_fma_f32 v{e+4*hh+2*q+1}, v{e+4*hh+2*q+1}, v{vGa+8*p+4*hh+2*q+1}, v{t3}")
            for q in range(4):
                A(f"v_cvt_pk_bf16_f32 v{e+q}, v{e+2*q}, v{e+2*q+1}")
            A(f"buffer_store_dwordx4 {v(e,4)}, v{vL16}, {ws}, s{s3} offen offset:{p*1024} sc1")

NT_KVS, NT_KVB, NT_QB = 16, 28, 16
def gen_extra(A, name, M):
    A.label(f"{name}_ln")
    A(f"""
    s_lshl_b32 s{sTg}, s{sTg}, 3
    s_add_u32 s{sTg}, s{sTg}, s{sX}
    """)
    wait_counter(A, name, f"""
    s_lshr_b32 s{s1}, s{sTg}, 2
    s_lshl_b32 s{s1}, s{s1}, 7
    s_add_u32 s{s1}, s{s1}, {FL_X1G}
    """, 8, f"{name}_wx")
    ln_task(A, name+'_ln', M)
    A(f"""
    s_cmp_lt_u32 s{sTg}, 32
    s_cselect_b32 s{sSig}, 0, 64
    s_add_u32 s{sSig}, s{sSig}, {FL_H2CNT}
    s_branch {name}_next
    """)
    A.label(f"{name}_g5a")
    wait_counter(A, name, f"s_mov_b32 s{s1}, {FL_H2CNT}", 32, f"{name}_wh")
    g5a_task(A, name+'_g5a', M, set_wt)
    A(f"s_branch {name}_next")

def gen_worker(A, name, timing=False):
    fl = ' sc1'
    A(f"s_mov_b32 s{sTask}, 0")
    A.label(f"{name}_init")
    A(f"""
    s_load_dwordx2 s[{sPq}:{sPq+1}], s[0:1], {KA['Wq']}
    s_load_dwordx2 s[{sPk}:{sPk+1}], s[0:1], {KA['Wk']}
    s_load_dwordx2 s[{sPv}:{sPv+1}], s[0:1], {KA['Wv']}
    s_load_dwordx2 s[{sPo}:{sPo+1}], s[0:1], {KA['Wo']}
    s_load_dwordx2 s[{sPx}:{sPx+1}], s[0:1], {KA['x']}
    s_lshr_b32 s{sWr}, s{sW}, 1
    s_and_b32 s{sWc}, s{sW}, 1
    s_mov_b32 s{sBud}, {WBUD}
    s_mov_b32 s{sCexp}, {hex(f2u((128 ** -0.5) * math.log2(math.e)))}
    s_mov_b32 s{sSig}, 0
    s_waitcnt lgkmcnt(0)
    s_mov_b32 s62, -1
    s_cmp_eq_u32 s{sTask}, -2
    s_cbranch_scc1 {name}_g4s
    {name}_next:
    s_waitcnt vmcnt(0) lgkmcnt(0)
    s_barrier
    s_cmp_lg_u32 s{sW}, 0
    s_cbranch_scc1 {name}_nf
    s_mov_b64 s[{sEx}:{sEx+1}], exec
    s_mov_b64 exec, 1
    TRACE_END
    v_mov_b32 v5, 0
    v_mov_b32 v6, 1
    s_cmp_eq_u32 s{sSig}, 0
    s_cbranch_scc1 {name}_nosig
    s_and_b32 s{s1}, s{sSig}, 0xfffffffe
    s_bitcmp1_b32 s{sSig}, 0
    s_cbranch_scc0 {name}_sig1
    v_mov_b32 v6, 2
    buffer_atomic_add v6, v5, {ws}, s{s1} offen offset:128
    {name}_sig1:
    buffer_atomic_add v6, v5, {ws}, s{s1} offen
    {name}_nosig:
    v_mov_b32 v7, 1
    s_lshl_b32 s{s1}, s{sX}, 7
    s_add_u32 s{s1}, s{s1}, {FL_QHEAD}
    buffer_atomic_add v7, v5, {ws}, s{s1} offen sc0
    s_waitcnt vmcnt(0)
    v_mov_b32 v5, {LDS_TASK}
    ds_write_b32 v5, v7
    s_waitcnt lgkmcnt(0)
    s_mov_b64 exec, s[{sEx}:{sEx+1}]
    {name}_nf:
    s_barrier
    v_mov_b32 v5, {LDS_TASK}
    ds_read_b32 v6, v5
    s_waitcnt lgkmcnt(0)
    s_nop 0
    v_readfirstlane_b32 s{sTask}, v6
    s_mov_b32 s{sSig}, 0
    s_nop 2
    TRACE_START
    s_cmp_lt_u32 s{sTask}, {NT_KVS}
    s_cbranch_scc1 {name}_kvs
    s_cmp_lt_u32 s{sTask}, {NT_KVS+NT_KVB}
    s_cbranch_scc1 {name}_kvb
    s_cmp_lt_u32 s{sTask}, {NT_KVS+NT_KVB+NT_QB}
    s_cbranch_scc1 {name}_qb
    s_sub_u32 s{sTask}, s{sTask}, {NT_KVS+NT_KVB+NT_QB}
    """)
    seq = []
    g5 = list(range(28))
    for tg in range(14):
        seq.append(('att', tg))
        if tg >= 1: seq.append(('g4', tg-1))
        if G5A and tg >= 2 and tg % 2 == 0: seq.append(('ln', (tg-2)//2))
        if tg == 9:
            for k in range(4): seq.append(('pf', k))
        if G5A and tg >= 10:
            for i in g5[(tg-10)*7:(tg-9)*7]: seq.append(('g5a', i))
    seq += [('att', 14), ('att', 15), ('g4', 13)]
    for kq in range(8): seq.append(('g4s', 8 + kq))
    print('worker tail sequence length', len(seq))
    tcode = {'att': 0, 'g4': 1, 'g4s': 2, 'pf': 3, 'ln': 4, 'g5a': 5}
    codes = [tcode[t]*32 + a for t, a in seq]
    while len(codes) % 4: codes.append(0xff)
    A(f"s_cmp_ge_u32 s{sTask}, {len(seq)}")
    A(f"s_cbranch_scc1 {name}_exit")
    A(f"s_lshr_b32 s{s1}, s{sTask}, 2")
    A(f"s_mov_b32 s{s2}, 0")
    for w in range(len(codes)//4):
        val = codes[4*w] | codes[4*w+1] << 8 | codes[4*w+2] << 16 | codes[4*w+3] << 24
        A(f"s_cmp_eq_u32 s{s1}, {w}")
        A(f"s_cselect_b32 s{s2}, {hex(val)}, s{s2}")
    A(f"""
    s_and_b32 s{s1}, s{sTask}, 3
    s_lshl_b32 s{s1}, s{s1}, 3
    s_lshr_b32 s{s2}, s{s2}, s{s1}
    s_and_b32 s{sTg}, s{s2}, 31
    s_bfe_u32 s{s2}, s{s2}, 0x30005
    s_cmp_eq_u32 s{s2}, 0
    s_cbranch_scc1 {name}_att
    s_cmp_eq_u32 s{s2}, 1
    s_cbranch_scc1 {name}_g4
    s_cmp_eq_u32 s{s2}, 2
    s_cbranch_scc1 {name}_g4s
    s_cmp_eq_u32 s{s2}, 4
    s_cbranch_scc1 {name}_ln
    s_cmp_eq_u32 s{s2}, 5
    s_cbranch_scc1 {name}_g5a
    s_branch {name}_pf
    """)
    TR = WS['END'] + 131072
    if timing:
        te = f"""s_cmp_eq_u32 s62, -1
    s_cbranch_scc1 {name}_tr0
    s_memrealtime s[64:65]
    s_waitcnt lgkmcnt(0)
    v_mov_b32 v5, s63
    v_mov_b32 v6, s64
    s_lshl_b32 s66, s{sX}, 8
    s_add_u32 s66, s66, s62
    s_lshl_b32 s66, s66, 3
    s_add_u32 s66, s66, {TR}
    v_mov_b32 v7, 0
    buffer_store_dword v5, v7, {ws}, s66 offen
    buffer_store_dword v6, v7, {ws}, s66 offen offset:4
    s_nop 1
    {name}_tr0:"""
        ts = f"""s_mov_b32 s62, s{sTask}
    s_memrealtime s[64:65]
    s_waitcnt lgkmcnt(0)
    s_mov_b32 s63, s64"""
    else:
        te = ts = ''
    for i, ln in enumerate(A.lines):
        if ln.strip() == 'TRACE_END': A.lines[i] = '\n'.join('    ' + x.strip() if not x.strip().endswith(':') else x.strip() for x in te.split('\n')) if te else ''
        if ln.strip() == 'TRACE_START': A.lines[i] = '\n'.join('    ' + x.strip() for x in ts.split('\n')) if ts else ''
    A.label(f"{name}_kvs")
    A(f"""
    s_lshr_b32 s{sMat}, s{sTask}, 2
    s_and_b32 s{sMat}, s{sMat}, 1
    s_add_u32 s{sMat}, s{sMat}, 1
    s_and_b32 s{sHead}, s{sTask}, 3
    s_lshl_b32 s{s1}, s{sX}, 2
    s_add_u32 s{sHead}, s{sHead}, s{s1}
    s_lshr_b32 s{s2}, s{sTask}, 3
    s_lshl_b32 s{sTm}, s{s2}, 3
    s_lshl_b32 s{sSig}, s{sX}, 4
    s_add_u32 s{sSig}, s{sSig}, s{s2}
    s_lshl_b32 s{sSig}, s{sSig}, 7
    s_add_u32 s{sSig}, s{sSig}, {FL_KVRDY}
    s_cmp_eq_u32 s{sMat}, 2
    s_cbranch_scc1 {name}_kvs_v
    """)
    set_wt(A, sPk, 1024*4096*2)
    fv_kv_tile(A, name+'_sk', False, fl) if USE_FV else g1_tile(A, name+'_sk', 4, 2, 4, False, fl)
    A(f"s_branch {name}_next")
    A.label(f"{name}_kvs_v")
    set_wt(A, sPv, 1024*4096*2)
    fv_kv_tile(A, name+'_sv', True, fl) if USE_FV else g1_tile(A, name+'_sv', 4, 2, 4, True, fl)
    A(f"s_branch {name}_next")
    A.label(f"{name}_kvb")
    A(f"""
    s_sub_u32 s{s2}, s{sTask}, {NT_KVS}
    s_lshr_b32 s{s3}, s{s2}, 2
    s_add_u32 s{s3}, s{s3}, 1                    ; tm
    s_lshl_b32 s{sTm}, s{s3}, 4
    s_lshr_b32 s{sMat}, s{s2}, 1
    s_and_b32 s{sMat}, s{sMat}, 1
    s_add_u32 s{sMat}, s{sMat}, 1
    s_and_b32 s{sHead}, s{s2}, 1
    s_lshl_b32 s{sHead}, s{sHead}, 1
    s_lshl_b32 s{s1}, s{sX}, 2
    s_add_u32 s{sHead}, s{sHead}, s{s1}
    s_lshl_b32 s{sSig}, s{sX}, 4
    s_lshl_b32 s{s3}, s{s3}, 1
    s_add_u32 s{sSig}, s{sSig}, s{s3}
    s_lshl_b32 s{sSig}, s{sSig}, 7
    s_add_u32 s{sSig}, s{sSig}, {FL_KVRDY + 1}
    s_cmp_eq_u32 s{sMat}, 2
    s_cbranch_scc1 {name}_kvb_v
    """)
    set_wt(A, sPk, 1024*4096*2)
    A.label(f"{name}_bqk")
    g1_tile(A, name+'_bk', 8, 1, 4, False, fl)
    A(f"s_branch {name}_next")
    A.label(f"{name}_kvb_v")
    set_wt(A, sPv, 1024*4096*2)
    g1_tile(A, name+'_bv', 8, 1, 4, True, fl)
    A(f"s_branch {name}_next")
    A.label(f"{name}_qb")
    A(f"""
    s_sub_u32 s{s2}, s{sTask}, {NT_KVS+NT_KVB}
    s_lshr_b32 s{s3}, s{s2}, 1
    s_lshl_b32 s{sTm}, s{s3}, 4
    s_mov_b32 s{sMat}, 0
    s_and_b32 s{sHead}, s{s2}, 1
    s_lshl_b32 s{sHead}, s{sHead}, 1
    s_lshl_b32 s{s1}, s{sX}, 2
    s_add_u32 s{sHead}, s{sHead}, s{s1}
    s_lshl_b32 s{sSig}, s{sX}, 3
    s_add_u32 s{sSig}, s{sSig}, s{s3}
    s_lshl_b32 s{sSig}, s{sSig}, 7
    s_add_u32 s{sSig}, s{sSig}, {FL_QRDY}
    """)
    set_wt(A, sPq, 1024*4096*2)
    A(f"s_branch {name}_bqk")
    A.label(f"{name}_att")
    wait_counter(A, name, f"""
    s_lshl_b32 s{s1}, s{sX}, 3
    s_lshr_b32 s{s2}, s{sTg}, 1
    s_add_u32 s{s1}, s{s1}, s{s2}
    s_lshl_b32 s{s1}, s{s1}, 7
    s_add_u32 s{s1}, s{s1}, {FL_QRDY}
    """, 2, f"{name}_wq")
    wait_counter(A, name, f"""
    s_lshl_b32 s{s1}, s{sX}, 4
    s_add_u32 s{s1}, s{s1}, s{sTg}
    s_lshl_b32 s{s1}, s{s1}, 7
    s_add_u32 s{s1}, s{s1}, {FL_KVRDY}
    """, 8, f"{name}_wkv")
    A(f"""
    s_lshl_b32 s{sSeg}, s{sTg}, 2
    s_lshl_b32 s{sHead}, s{sX}, 2
    s_add_u32 s{sHead}, s{sHead}, s{sW}
    s_mov_b32 s{sI}, 4
    {name}_attl:
    """)
    wait_counter(A, name, f"""
    s_lshl_b32 s{s1}, s{sX}, 6
    s_add_u32 s{s1}, s{s1}, s{sSeg}
    s_lshl_b32 s{s1}, s{s1}, 6
    s_add_u32 s{s1}, s{s1}, {FL_KVM}
    """, 4, f"{name}_wm")
    attn_body(A, name, sWS, sSeg, sHead, dict(vLane=vLane, vCol=vCol, vG=vG, vL16=vL16, s=(sA1,sA2,sA3,sA4,sCexp), sexec=sEx, kvmflag=' sc1', stflag=' sc1', ldflag=' sc1'))
    A(f"""
    s_add_u32 s{sSeg}, s{sSeg}, 1
    s_sub_u32 s{sI}, s{sI}, 1
    s_cmp_lg_u32 s{sI}, 0
    s_cbranch_scc1 {name}_attl
    s_lshl_b32 s{sSig}, s{sTg}, 7
    s_add_u32 s{sSig}, s{sSig}, {FL_ORDY}
    s_branch {name}_next
    """)
    A.label(f"{name}_g4")
    wait_counter(A, name, f"""
    s_lshl_b32 s{s1}, s{sTg}, 7
    s_add_u32 s{s1}, s{s1}, {FL_ORDY}
    """, 8, f"{name}_wo")
    fv_g4_tile(A, name+'_g4')
    A(f"""
    s_lshl_b32 s{sSig}, s{sTg}, 7
    s_add_u32 s{sSig}, s{sSig}, {FL_X1G}
    s_branch {name}_next
    """)
    M = dict(globals())
    if not G5A:
        A.label(f"{name}_ln"); A.label(f"{name}_g5a"); A(f"s_branch {name}_next")
    if G5A: gen_extra(A, name, M)
    A.label(f"{name}_g4s")
    A(f"""
    s_and_b32 s{sI}, s{sTg}, 7
    s_lshr_b32 s{sTg}, s{sTg}, 3
    s_add_u32 s{sTg}, s{sTg}, 13
    """)
    wait_counter(A, name, f"""
    s_lshl_b32 s{s1}, s{sTg}, 7
    s_add_u32 s{s1}, s{s1}, {FL_ORDY}
    """, 8, f"{name}_wos")
    fv_g4_tile(A, name+'_g4s', split=True, wname=name) if USE_FV else g4_tile(A, name+'_g4s', 2, 4, '', ' sc1', split=True, wname=name)
    A(f"s_branch {name}_next")
    A.label(f"{name}_pf")
    A(f"""
    s_load_dwordx2 s[{sPq}:{sPq+1}], s[0:1], {KA['w1']}
    s_load_dwordx2 s[{sPk}:{sPk+1}], s[0:1], {KA['w2']}
    s_lshl_b32 s{s1}, s{sX}, 2
    s_add_u32 s{s1}, s{s1}, s{sTg}                 ; chunk 0..31
    s_waitcnt lgkmcnt(0)
    s_cmp_lt_u32 s{s1}, 16
    s_cselect_b32 s{sWt}, s{sPq}, s{sPk}
    s_cselect_b32 s{sWt+1}, s{sPq+1}, s{sPk+1}
    s_mov_b32 s{sWt+2}, {2048*3584*2}
    s_mov_b32 s{sWt+3}, 0x20000
    s_and_b32 s{s1}, s{s1}, 15
    s_mul_i32 s{s1}, s{s1}, {2048*3584*2//16}
    v_lshlrev_b32 v5, 4, v0
    s_mov_b32 s{sI}, {2048*3584*2//16//4096//8}
    {name}_pfl:
    """)
    for q in range(8):
        A(f"buffer_load_dwordx4 {v(16+4*q,4)}, v5, {wt}, s{s1} offen")
        A(f"s_add_u32 s{s1}, s{s1}, 4096")
    A(f"""
    s_waitcnt vmcnt(0)
    s_sub_u32 s{sI}, s{sI}, 1
    s_cmp_lg_u32 s{sI}, 0
    s_cbranch_scc1 {name}_pfl
    s_branch {name}_next
    """)

def gen_mega(name='mega_kernel', cdelay=14, timing=False, stamp_step=21, ddelay=0):
    A = Asm()
    A.raw(kernel_header(name))
    A(f"""
    s_cmp_ge_u32 s2, 256
    s_cbranch_scc1 {name}_exit
    s_load_dwordx2 s[4:5], s[0:1], {KA['dbg']}
    s_load_dwordx2 s[6:7], s[0:1], {KA['ws']}
    s_getreg_b32 s{sX}, hwreg(HW_REG_XCC_ID)
    s_and_b32 s{sX}, s{sX}, 7
    v_and_b32 v1, 63, v0
    v_lshrrev_b32 v5, 6, v0
    s_nop 0
    v_readfirstlane_b32 s{sW}, v5
    v_and_b32 v2, 15, v1
    v_lshrrev_b32 v3, 4, v1
    v_lshlrev_b32 v4, 4, v1
    s_waitcnt lgkmcnt(0)
    s_mov_b32 s{sWS}, s6
    s_mov_b32 s{sWS+1}, s7
    s_mov_b32 s{sWS+2}, {WS_SIZE}
    s_mov_b32 s{sWS+3}, 0x20000
    s_mov_b32 s16, s4
    s_mov_b32 s17, s5
    s_mov_b32 s18, 256
    s_mov_b32 s19, 0x20000
    s_cmp_lg_u32 s{sW}, 0
    s_cbranch_scc1 {name}_tk
    s_mov_b64 s[{sEx}:{sEx+1}], exec
    s_mov_b64 exec, 1
    v_mov_b32 v5, 1
    s_lshl_b32 s{s1}, s{sX}, 2
    v_mov_b32 v6, s{s1}
    v_mov_b32 v7, 1
    v_mov_b32 v8, 32
    buffer_atomic_add v5, v6, s[16:19], 0 offen sc0
    s_waitcnt vmcnt(0)
    buffer_atomic_add v7, v8, s[16:19], 0 offen sc0
    s_mov_b32 s{s2}, 4000000
    {name}_cen:
    buffer_load_dword v9, v8, s[16:19], 0 offen sc1
    s_waitcnt vmcnt(0)
    v_readfirstlane_b32 s{s3}, v9
    s_cmp_ge_u32 s{s3}, 256
    s_cbranch_scc1 {name}_cenok
    s_sub_u32 s{s2}, s{s2}, 1
    s_cbranch_scc1 {name}_exit
    s_branch {name}_cen
    {name}_cenok:
    v_mov_b32 v8, 0
    buffer_load_dwordx4 v[12:15], v8, s[16:19], 0 offen sc1
    buffer_load_dwordx4 v[16:19], v8, s[16:19], 0 offen offset:16 sc1
    s_waitcnt vmcnt(0)
    v_min_u32 v12, v12, v13
    v_min_u32 v14, v14, v15
    v_min_u32 v16, v16, v17
    v_min_u32 v18, v18, v19
    v_min_u32 v12, v12, v14
    v_min_u32 v16, v16, v18
    v_min_u32 v12, v12, v16
    v_cmp_gt_u32 vcc, {FORCE_FB}, v12
    s_nop 1
    v_lshrrev_b32 v9, 5, v7
    v_lshlrev_b32 v9, 16, v9
    v_and_b32 v10, 31, v7
    v_or_b32 v9, v9, v10
    v_or_b32 v9, 0x100, v9
    v_mov_b32 v10, s{sX}
    v_lshlrev_b32 v10, 16, v10
    v_or_b32 v10, v10, v5
    v_cndmask_b32 v5, v10, v9, vcc
    v_mov_b32 v6, {LDS_TASK}
    ds_write_b32 v6, v5
    s_waitcnt lgkmcnt(0)
    s_mov_b64 exec, s[{sEx}:{sEx+1}]
    {name}_tk:
    s_barrier
    v_mov_b32 v6, {LDS_TASK}
    ds_read_b32 v5, v6
    s_waitcnt lgkmcnt(0)
    s_nop 0
    v_readfirstlane_b32 s{s2}, v5
    s_nop 3
    s_barrier
    s_lshr_b32 s{sX}, s{s2}, 16
    s_and_b32 s3, s{s2}, 0x100
    s_and_b32 s{s1}, s{s2}, 0xff
    s_cmp_lt_u32 s{s1}, 16
    s_cbranch_scc1 {name}_chain
    s_cmp_ge_u32 s{s1}, {16 + NWORK}
    s_cbranch_scc1 {name}_exit
    """)
    gen_worker(A, name+'_w', timing)
    A.label(f"{name}_w_exit")
    A("s_endpgm")
    A.label(f"{name}_chain")
    A(f"""
    s_mov_b32 s21, s{s1}
    s_mov_b32 s22, s{sW}
    s_mov_b32 s20, s{sX}
    """)
    fast = chainmod.gen_chain(name=name+'_c', cdelay=cdelay, timing=timing, embedded=True, stamp_step=stamp_step, done_label=name+'_post', ddelay=ddelay)
    slow = chainmod.gen_chain(name=name+'_f', cdelay=cdelay, timing=False, embedded=True, done_label=name+'_post', ddelay=ddelay, fallback=True)
    br = f"    s_branch {name}_c_p1\n"
    assert fast.count(br) == 1
    fast = fast.replace(br, f"    s_cmp_lg_u32 s3, 0\n    s_cbranch_scc1 {name}_f_p1\n" + br)
    sb = f"    s_branch {name}_f_p1\n"
    slow = slow[slow.index(sb) + len(sb):]
    A.raw(fast)
    A.raw(slow)
    A.label(f"{name}_post")
    A(f"""
    s_cmp_ge_u32 s21, 8
    s_cbranch_scc1 {name}_exit
    s_waitcnt vmcnt(0) lgkmcnt(0)
    s_mov_b64 exec, -1
    s_mov_b32 s{sX}, s20
    s_add_u32 s{sTg}, s21, 16
    s_mov_b32 s{sW}, s22
    v_and_b32 v1, 63, v0
    v_and_b32 v2, 15, v1
    v_lshrrev_b32 v3, 4, v1
    v_lshlrev_b32 v4, 4, v1
    s_mov_b32 s{sTask}, -2
    s_branch {name}_w_init
    """)
    A.label(f"{name}_exit")
    A("s_endpgm")
    return A.text()

def mega_desc(name='mega_kernel'):
    return kernel_desc(name, 512, 100, 256)
```

```python
from asmlib import *
from gemmfv import *
import struct, math
def f2u(x): return struct.unpack('<I', struct.pack('<f', x))[0]
FL_H2CNT = FL_H2RDY
FL_X1G = FL_H2RDY + 128

def ln_task(A, name, M):
    s1, s2, s3, s4, sW, sI, sTg, ws, vG, vCol, vL16 = M['s1'], M['s2'], M['s3'], M['s4'], M['sW'], M['sI'], M['sTg'], M['ws'], M['vG'], M['vCol'], M['vL16']
    vX = 32; vL = 96; vM = 128; PITCH = 2048 + 32; RED = 66816
    A(f"""
    v_lshlrev_b32 v7, 4, v{vG}
    s_lshl_b32 s{s1}, s{sW}, 10
    s_add_u32 s{s3}, s{s1}, {WS['MOD'] + 3*4096}
    s_add_u32 s{s4}, s{s1}, {WS['MOD'] + 4*4096}
    """)
    for kb in range(8):
        m = vM + kb*16
        A(f"buffer_load_dwordx4 v[{m}:{m+3}], v7, {ws}, s{s4} offen offset:{kb*128}")
        A(f"buffer_load_dwordx4 v[{m+4}:{m+7}], v7, {ws}, s{s4} offen offset:{kb*128+64}")
        A(f"buffer_load_dwordx4 v[{m+8}:{m+11}], v7, {ws}, s{s3} offen offset:{kb*128}")
        A(f"buffer_load_dwordx4 v[{m+12}:{m+15}], v7, {ws}, s{s3} offen offset:{kb*128+64}")
    A(f"s_mov_b32 s{sI}, 0")
    A.label(f"{name}_tl")
    A(f"""
    s_lshl_b32 s{s1}, s{sTg}, 1
    s_add_u32 s{s1}, s{s1}, s{sI}
    s_lshl_b32 s{s1}, s{s1}, 15
    s_lshl_b32 s{s2}, s{sW}, 13
    s_add_u32 s{s1}, s{s1}, s{s2}
    s_add_u32 s{s1}, s{s1}, {WS['X1']}
    s_add_u32 s{s2}, s{s1}, 4096
    """)
    for kb in range(8):
        A(f"buffer_load_dwordx4 v[{vL+4*kb}:{vL+4*kb+3}], v{vL16}, {ws}, s{s1 if kb < 4 else s2} offen offset:{(kb%4)*1024} sc1")
    A("s_waitcnt vmcnt(0)")
    for q in range(32):
        A(f"v_lshlrev_b32 v{vX+2*q}, 16, v{vL+q}")
        A(f"v_and_b32 v{vX+2*q+1}, 0xffff0000, v{vL+q}")
    def reduce_all(reg, ldsoff):
        A(f"""
        v_mov_b32 v9, v{reg}
        s_nop 1
        v_permlane16_swap_b32 v{reg}, v9
        s_nop 1
        v_add_f32 v{reg}, v{reg}, v9
        v_mov_b32 v9, v{reg}
        s_nop 1
        v_permlane32_swap_b32 v{reg}, v9
        s_nop 1
        v_add_f32 v{reg}, v{reg}, v9
        v_lshlrev_b32 v10, 2, v{vCol}
        v_add_u32 v10, {RED}, v10
        s_lshl_b32 s{s1}, s{sW}, 6
        v_add_u32 v11, s{s1}, v10
        ds_write_b32 v11, v{reg} offset:{ldsoff}
        s_waitcnt lgkmcnt(0)
        s_barrier
        ds_read_b32 v12, v10 offset:{ldsoff}
        ds_read_b32 v13, v10 offset:{ldsoff+64}
        ds_read_b32 v14, v10 offset:{ldsoff+128}
        ds_read_b32 v15, v10 offset:{ldsoff+192}
        s_waitcnt lgkmcnt(0)
        v_add_f32 v12, v12, v13
        v_add_f32 v14, v14, v15
        v_add_f32 v{reg}, v12, v14
        """)
    A(f"v_add_f32 v8, v{vX}, v{vX+1}"); A(f"v_add_f32 v16, v{vX+2}, v{vX+3}"); A(f"v_add_f32 v17, v{vX+4}, v{vX+5}"); A(f"v_add_f32 v18, v{vX+6}, v{vX+7}")
    for q in range(8, 64, 4):
        A(f"v_add_f32 v8, v8, v{vX+q}"); A(f"v_add_f32 v16, v16, v{vX+q+1}"); A(f"v_add_f32 v17, v17, v{vX+q+2}"); A(f"v_add_f32 v18, v18, v{vX+q+3}")
    A("v_add_f32 v8, v8, v16"); A("v_add_f32 v17, v17, v18"); A("v_add_f32 v8, v8, v17")
    reduce_all(8, 0)
    A(f"v_mul_f32 v16, {hex(f2u(1/1024))}, v8")
    for q in range(64): A(f"v_sub_f32 v{vX+q}, v{vX+q}, v16")
    A(f"v_mul_f32 v8, v{vX}, v{vX}"); A(f"v_mul_f32 v17, v{vX+1}, v{vX+1}")
    for q in range(2, 64, 2):
        A(f"v_fmac_f32 v8, v{vX+q}, v{vX+q}"); A(f"v_fmac_f32 v17, v{vX+q+1}, v{vX+q+1}")
    A("v_add_f32 v8, v8, v17")
    reduce_all(8, 512)
    A(f"""
    v_mov_b32 v17, {hex(f2u(1e-5))}
    v_fmac_f32 v17, {hex(f2u(1/1024))}, v8
    v_rsq_f32 v17, v17
    s_lshl_b32 s{s1}, s{sI}, 4
    v_add_u32 v18, s{s1}, v{vCol}
    v_mul_u32_u24 v18, {PITCH}, v18
    v_lshl_add_u32 v18, v{vG}, 3, v18
    s_lshl_b32 s{s1}, s{sW}, 9
    v_add_u32 v18, s{s1}, v18
    """)
    for kb in range(8):
        m = vM + kb*16; x0 = vX + 8*kb
        for e in range(8): A(f"v_mul_f32 v{x0+e}, v{x0+e}, v17")
        for e in range(8): A(f"v_fma_f32 v{x0+e}, v{x0+e}, v{m+e}, v{m+8+e}")
        o = 20 + (kb % 2)*4
        for q in range(4): A(f"v_cvt_pk_bf16_f32 v{o+q}, v{x0+2*q}, v{x0+2*q+1}")
        A(f"ds_write_b64 v18, v[{o}:{o+1}] offset:{kb*64}")
        A(f"ds_write_b64 v18, v[{o+2}:{o+3}] offset:{kb*64+32}")
    A(f"""
    s_waitcnt lgkmcnt(0)
    s_barrier
    s_add_u32 s{sI}, s{sI}, 1
    s_cmp_lt_u32 s{sI}, 2
    s_cbranch_scc1 {name}_tl
    v_lshrrev_b32 v19, 2, v{vCol}
    v_lshl_add_u32 v19, v{vG}, 2, v19
    v_mul_u32_u24 v19, {PITCH}, v19
    v_and_b32 v20, 3, v{vCol}
    v_lshl_add_u32 v19, v20, 3, v19
    s_lshl_b32 s{s1}, s{sW}, 9
    v_add_u32 v19, s{s1}, v19
    s_lshl_b32 s{s3}, s{sW}, 20
    s_lshl_b32 s{s1}, s{sTg}, 10
    s_add_u32 s{s3}, s{s3}, s{s1}
    s_add_u32 s{s3}, s{s3}, {WS['H2']}
    """)
    for j in range(16):
        A(f"ds_read_b64_tr_b16 v[{32+4*j}:{33+4*j}], v19 offset:{j*32}")
        A(f"ds_read_b64_tr_b16 v[{34+4*j}:{35+4*j}], v19 offset:{j*32 + 16*PITCH}")
        if j % 4 == 3: A("s_waitcnt lgkmcnt(0)")
    for j in range(16):
        A(f"buffer_store_dwordx4 v[{32+4*j}:{35+4*j}], v{vL16}, {ws}, s{s3} offen sc1")
        A(f"s_add_u32 s{s3}, s{s3}, 65536")

def g5a_task(A, name, M, set_wt):
    s1, s2, sW, sTg, ws, wt, vL16 = M['s1'], M['s2'], M['sW'], M['sTg'], M['ws'], M['wt'], M['vL16']
    sX, sHead, sSeg, sPq, sM0R, sOffR, sOffC, sCnt = M['sX'], M['sHead'], M['sSeg'], M['sPq'], M['sM0R'], M['sOffR'], M['sOffC'], M['sCnt']
    r = FVRegs()
    A(f"""
    s_load_dwordx2 s[{sPq}:{sPq+1}], s[0:1], {KA['w1']}
    s_and_b32 s{sHead}, s{sX}, 1
    s_lshl_b32 s{sHead}, s{sHead}, 2
    s_and_b32 s{s1}, s{sTg}, 3
    s_add_u32 s{sHead}, s{sHead}, s{s1}
    s_lshr_b32 s{sSeg}, s{sX}, 1
    s_mul_i32 s{sSeg}, s{sSeg}, 7
    s_lshr_b32 s{s1}, s{sTg}, 2
    s_add_u32 s{sSeg}, s{sSeg}, s{s1}
    s_waitcnt lgkmcnt(0)
    """)
    set_wt(A, sPq, 2048*3584*2)
    fv_setup(A, r, sW, sM0R, s1, s2, 7168, 64)
    A(f"""
    s_lshl_b32 s{sOffC}, s{sSeg}, 8
    s_lshl_b32 s{sOffR}, s{sHead}, 19
    s_add_u32 s{sOffR}, s{sOffR}, {WS['H2']}
    """)
    gen_fv_core(A, r, ws, wt, sOffR, sOffC, 64*7168, sM0R, sCnt, 2, False, name, flF=' sc1')
    A.nop(8)
    A(f"""
    s_lshl_b32 s{s1}, s{sSeg}, 3
    s_add_u32 s{s1}, s{s1}, s{sHead}
    s_lshl_b32 s{s1}, s{s1}, 2
    s_add_u32 s{s1}, s{s1}, s{sW}
    s_lshl_b32 s{s1}, s{s1}, 14
    s_add_u32 s{s1}, s{s1}, {WS['U1']}
    """)
    for b in range(16):
        if b and b % 4 == 0: A(f"s_add_u32 s{s1}, s{s1}, 4096")
        A(f"buffer_store_dwordx4 {a(4*b,4)}, v{vL16}, {ws}, s{s1} offen offset:{(b%4)*1024}")
```

```python
import sys; sys.path.insert(0,'gen')
from asmlib import *
from build import *
import mega
from mega import gen_mega, mega_desc
from kern_pre2 import gen_pre2
from kern_fv import gen_g5, gen_g6, gen_ln2t

def build_full(path, cdelay=14, timing=False, stamp_step=21, ddelay=0, pregrid=256, nwork=12, g5a=False, force_fb=False):
    mega.NWORK = nwork; mega.G5A = g5a; mega.FORCE_FB = 33 if force_fb else 32
    ks = []
    t,d = gen_pre2(lim=pregrid); ks.append(('pre_kernel', t, d))
    ks.append(('mega_kernel', gen_mega(cdelay=cdelay, timing=timing, stamp_step=stamp_step, ddelay=ddelay), mega_desc()))
    t,d = (gen_ln2t(seg0=48, nseg=16) if g5a else gen_ln2t()); ks.append(('ln2_kernel', t, d))
    t,d = gen_g5(tail=g5a); ks.append(('g5_kernel', t, d))
    t,d = gen_g6(); ks.append(('g6_kernel', t, d))
    out = HEADER
    L = [('pre_kernel',pregrid,256,16384), ('mega_kernel',256,256,131072+256),
         ('ln2_kernel',16 if g5a else 64,512,68096), ('g5_kernel',224,256,131072), ('g6_kernel',256,256,131072)]
    out = assemble_file(L, ks, path)
    print('size', len(out))
if __name__ == '__main__':
    build_full(sys.argv[1] if len(sys.argv) > 1 else 'full3.s')
```

```python
from asmlib import *
import struct, math
import mega_pre

SENT_BUDGET = 2000000

def interleave(A, main, fill, start=0, every=1):
    fill = list(fill)
    for idx, m in enumerate(main):
        A(m)
        if idx >= start and (idx - start) % every == 0 and fill:
            A(fill.pop(0))
    for f in fill:
        A(f)

def gen_chain(name='chain_kernel', nsteps=64, timing=False, stamp_step=11, full='', cdelay=8, ldf='sc1', ddelay=0, adelay=0, embedded=False, fallback=False, kvpos='early', done_label=None, kxp1=False, l2pf=True, cbf=True, merged=False):
    A = Asm()
    if not embedded: A.raw(kernel_header(name))
    kvf = ' sc1' if embedded else ''
    intra = ' sc1' if fallback else ''
    sWS = 8; sT = 12; sDBG = 16
    sX, sC, sW, sStep, sBud = 20, 21, 22, 23, 24
    sOffD, sOffA, sOffC, sOffKx, sOffVx, sTmp, sTmp2 = 25, 26, 27, 28, 30, 32, 33
    sOffVx1 = 31
    sOffKx1 = 29
    sOffAr, sOffDr, sOffCr, sOffKVM = 34, 35, 36, 37
    sCexp = 38; sH = 39
    sPq, sPk, sPv, sPo, sPm = 40, 42, 44, 46, 48
    sExecSave = 50
    sHL, sJ = 52, 53
    sT0 = 54
    sMask = 58
    sC1, sC2, sC3, sCst, sOffDn = 59, 60, 61, 62, 63
    sBaseA, sBaseD, sBaseC, sBaseCo = 88, 89, 90, 91
    sSt = 64
    sFlg, sKvmF = 95, 96
    R = RegAlloc(0, 256)
    R.alloc('tid')
    vLane = R.alloc('lane'); vCol = R.alloc('col'); vG = R.alloc('g')
    vT1 = R.alloc('t1'); vT2 = R.alloc('t2'); vT3 = R.alloc('t3')
    vOffD = R.alloc('offD'); vOffAq = R.alloc('offAq'); vOffAv = R.alloc('offAv'); vOffAst = R.alloc('offAst')
    vOffC = R.alloc('offC'); vOffDst = R.alloc('offDst'); vL16 = R.alloc('l16')
    vLds1w = R.alloc('lds1w'); vLds1r = R.alloc('lds1r'); vLds3w = R.alloc('lds3w'); vLds3r = R.alloc('lds3r')
    vSent = R.alloc('sent', 4, 4)
    vM = R.alloc('M', 16, 4); vRM = R.alloc('RM', 16, 4)
    vAcc = R.alloc('acc', 48, 4)
    vRd = R.alloc('rd', 32, 4)
    vQ = R.alloc('q', 8, 4); vK = R.alloc('k', 8, 4); vVm = R.alloc('vm', 8, 4)
    vRQ = vRM
    vOB = vM
    vKx = R.alloc('Kx', 32, 4); vVx = R.alloc('Vx', 32, 4)
    vSm = R.alloc('Smm', 4, 4); vS1 = vRd; vS2 = vRd + 4
    vSM = R.alloc('SM', 4, 4); vTT = R.alloc('TT', 4, 4)
    vBX = R.alloc('BX', 4, 4); vPM = R.alloc('PM', 2, 2); vPMh = R.alloc('PMh', 2, 2); vPMc = R.alloc('PMc', 2, 2)
    vPfo = R.alloc('pfo'); vFlag = R.alloc('flag'); vZero = R.alloc('zero'); vMax = R.alloc('max'); vMx2 = R.alloc('mx2'); vSum = R.alloc('sum'); vSu2 = R.alloc('su2')
    vO = vAcc; vE = vAcc + 32
    print('chain vgprs used', R.next)
    aW1 = 0; aWo = 192
    def W1(t, ks): return a(aW1 + (t * 8 + ks) * 4, 4)
    def Wo(tn, u): return a(aWo + (tn * 4 + u) * 4, 4)
    def acc(t): return vAcc + t * 4
    LDS_P1 = 0; LDS_P3 = 12288
    ws = f"s[{sWS}:{sWS+3}]"

    if embedded:
        A(f"""
        s_load_dwordx2 s[{sPm}:{sPm+1}], s[0:1], {KA['mem0']}
        s_load_dwordx2 s[{sPq}:{sPq+1}], s[0:1], {KA['Wq']}
        s_load_dwordx2 s[{sPk}:{sPk+1}], s[0:1], {KA['Wk']}
        s_load_dwordx2 s[{sPv}:{sPv+1}], s[0:1], {KA['Wv']}
        s_load_dwordx2 s[{sPo}:{sPo+1}], s[0:1], {KA['Wo']}
        v_and_b32 v{vLane}, 63, v0
        v_and_b32 v{vCol}, 15, v{vLane}
        v_lshrrev_b32 v{vG}, 4, v{vLane}
        v_lshlrev_b32 v{vL16}, 4, v{vLane}
        s_lshr_b32 s{sHL}, s{sC}, 2
        s_and_b32 s{sJ}, s{sC}, 3
        s_waitcnt lgkmcnt(0)
        """)
        if merged:
            A(f"s_lshl_b32 s{sTmp}, s{sX}, 4"); A(f"s_add_u32 s{sTmp}, s{sTmp}, s{sC}")
            B = Asm(); mega_pre.init_stores(B, f"s[{sWS}:{sWS+3}]", sTmp, sTmp2, sExecSave)
            A.raw(B.text().replace('SFX', name))
    else:
        A(f"""
        s_cmp_ge_u32 s2, 256
        s_cbranch_scc1 {name}_exit
        s_load_dwordx2 s[{sPm}:{sPm+1}], s[0:1], {KA['mem0']}
        s_load_dwordx2 s[{sPq}:{sPq+1}], s[0:1], {KA['Wq']}
        s_load_dwordx2 s[{sPk}:{sPk+1}], s[0:1], {KA['Wk']}
        s_load_dwordx2 s[{sPv}:{sPv+1}], s[0:1], {KA['Wv']}
        s_load_dwordx2 s[{sPo}:{sPo+1}], s[0:1], {KA['Wo']}
        s_load_dwordx2 s[4:5], s[0:1], {KA['dbg']}
        s_load_dwordx2 s[6:7], s[0:1], {KA['ws']}
        s_getreg_b32 s{sX}, hwreg(HW_REG_XCC_ID)
        s_and_b32 s{sX}, s{sX}, 7
        v_and_b32 v{vLane}, 63, v0
        v_lshrrev_b32 v{vT1}, 6, v0
        s_nop 0
        v_readfirstlane_b32 s{sW}, v{vT1}
        v_and_b32 v{vCol}, 15, v{vLane}
        v_lshrrev_b32 v{vG}, 4, v{vLane}
        v_lshlrev_b32 v{vL16}, 4, v{vLane}
        s_waitcnt lgkmcnt(0)
        s_mov_b32 s{sWS}, s6
        s_mov_b32 s{sWS+1}, s7
        s_mov_b32 s{sWS+2}, {WS_SIZE}
        s_mov_b32 s{sWS+3}, 0x20000
        s_mov_b32 s{sDBG}, s4
        s_mov_b32 s{sDBG+1}, s5
        s_mov_b32 s{sDBG+2}, 256
        s_mov_b32 s{sDBG+3}, 0x20000
        s_cmp_lg_u32 s{sW}, 0
        s_cbranch_scc1 {name}_tk
        v_mov_b32 v{vT1}, 1
        s_lshl_b32 s{sTmp}, s{sX}, 2
        v_mov_b32 v{vT2}, s{sTmp}
        s_mov_b64 s[{sExecSave}:{sExecSave+1}], exec
        s_mov_b64 exec, 1
        buffer_atomic_add v{vT1}, v{vT2}, s[{sDBG}:{sDBG+3}], 0 offen sc0
        s_waitcnt vmcnt(0)
        v_mov_b32 v{vT2}, 0
        ds_write_b32 v{vT2}, v{vT1}
        s_waitcnt lgkmcnt(0)
        s_mov_b64 exec, s[{sExecSave}:{sExecSave+1}]
        {name}_tk:
        s_barrier
        v_mov_b32 v{vT2}, 0
        ds_read_b32 v{vT1}, v{vT2}
        s_waitcnt lgkmcnt(0)
        s_nop 0
        v_readfirstlane_b32 s{sC}, v{vT1}
        s_nop 3
        s_barrier
        s_cmp_ge_u32 s{sC}, 16
        s_cbranch_scc1 {name}_exit
        s_lshr_b32 s{sHL}, s{sC}, 2
        s_and_b32 s{sJ}, s{sC}, 3
        """)

    if timing:
        A(f"s_memrealtime s[{sT0}:{sT0+1}]")
    A(f"""
    s_lshl_b32 s{sH}, s{sX}, 2
    s_add_u32 s{sH}, s{sH}, s{sHL}
    s_lshl_b32 s{sTmp}, s{sH}, 8
    s_lshl_b32 s{sTmp2}, s{sJ}, 6
    s_add_u32 s{sTmp}, s{sTmp}, s{sTmp2}
    s_lshl_b32 s{sTmp2}, s{sW}, 21
    s_add_u32 s{sTmp}, s{sTmp}, s{sTmp2}
    v_lshrrev_b32 v{vT1}, 2, v{vLane}
    v_lshlrev_b32 v{vT1}, 13, v{vT1}
    v_and_b32 v{vT2}, 3, v{vLane}
    v_lshlrev_b32 v{vT2}, 4, v{vT2}
    v_add3_u32 v{vT1}, v{vT1}, v{vT2}, s{sTmp}
    s_mov_b32 s{sT+2}, {1024*4096*2}
    s_mov_b32 s{sT+3}, 0x20000
    v_lshrrev_b32 v{vT2}, 2, v{vCol}
    v_lshl_add_u32 v{vT2}, v{vG}, 3, v{vT2}
    v_lshlrev_b32 v{vT2}, 6, v{vT2}
    v_and_b32 v{vT3}, 3, v{vCol}
    v_lshl_add_u32 v{vT2}, v{vT3}, 3, v{vT2}
    s_lshl_b32 s{sTmp2}, s{sW}, 15
    v_add_u32 v{vT2}, s{sTmp2}, v{vT2}
    """)
    def dma_w1(ptr, ldsoff):
        A(f"s_mov_b32 s{sT}, s{ptr}")
        A(f"s_mov_b32 s{sT+1}, s{ptr+1}")
        for n in range(16):
            A(f"""
            s_lshl_b32 s{sTmp2}, s{sW}, 15
            s_add_u32 m0, s{sTmp2}, {ldsoff + n*1024}
            s_mov_b32 s{sTmp}, {n*16*8192}
            buffer_load_dwordx4 v{vT1}, s[{sT}:{sT+3}], s{sTmp} offen lds
            """)
    def tr_w1(tile0, ldsoff):
        for tt in range(2):
            for ks in range(8):
                for hh in range(2):
                    off = ldsoff + (32*ks + 4*hh)*64 + tt*32
                    reg = aW1 + ((tile0+tt)*8 + ks)*4 + 2*hh
                    A(f"ds_read_b64_tr_b16 a[{reg}:{reg+1}], v{vT2} offset:{off}")
            A("s_waitcnt lgkmcnt(0)")
    dma_w1(sPq, 0)
    dma_w1(sPk, 16384)
    A("s_waitcnt vmcnt(0)")
    if merged:
        A(f"v_mov_b32 v{vM}, v{vT1}"); A(f"v_mov_b32 v{vM+1}, v{vT2}")
        mega_pre.signal_dbg(A, name, mega_pre.DBG_INIT, sW, sExecSave, f"{name}_sig")
        A(f"v_mov_b32 v{vT1}, v{vM}"); A(f"v_mov_b32 v{vT2}, v{vM+1}")
    tr_w1(0, 0)
    tr_w1(2, 16384)
    dma_w1(sPv, 0)
    A(f"""
    s_lshl_b32 s{sTmp}, s{sX}, 2
    s_add_u32 s{sTmp}, s{sTmp}, s{sW}
    s_lshl_b32 s{sTmp}, s{sTmp}, 18
    s_lshl_b32 s{sTmp2}, s{sC}, 7
    s_add_u32 s{sTmp}, s{sTmp}, s{sTmp2}
    v_lshrrev_b32 v{vT3}, 3, v{vLane}
    v_lshlrev_b32 v{vT3}, 11, v{vT3}
    v_and_b32 v{vOffD}, 7, v{vLane}
    v_lshlrev_b32 v{vOffD}, 4, v{vOffD}
    v_add3_u32 v{vT3}, v{vT3}, v{vOffD}, s{sTmp}
    s_mov_b32 s{sT}, s{sPo}
    s_mov_b32 s{sT+1}, s{sPo+1}
    s_mov_b32 s{sT+2}, {4096*1024*2}
    """)
    for n in range(16):
        A(f"""
        s_lshl_b32 s{sTmp2}, s{sW}, 15
        s_add_u32 m0, s{sTmp2}, {16384 + n*1024}
        s_mov_b32 s{sTmp}, {n*8*2048}
        buffer_load_dwordx4 v{vT3}, s[{sT}:{sT+3}], s{sTmp} offen lds
        """)
    A("s_waitcnt vmcnt(0)")
    tr_w1(4, 0)
    A(f"""
    v_lshrrev_b32 v{vT2}, 2, v{vCol}
    v_lshl_add_u32 v{vT2}, v{vG}, 2, v{vT2}
    v_lshlrev_b32 v{vT2}, 7, v{vT2}
    v_and_b32 v{vT3}, 3, v{vCol}
    v_lshl_add_u32 v{vT2}, v{vT3}, 4, v{vT2}
    s_lshl_b32 s{sTmp2}, s{sW}, 15
    v_add_u32 v{vT2}, s{sTmp2}, v{vT2}
    """)
    for tn in range(4):
        for u in range(4):
            for hh in range(2):
                off = 16384 + (32*u + 16*hh)*128 + (tn & 1)*64 + (tn >> 1)*8
                reg = aWo + (tn*4+u)*4 + 2*hh
                A(f"ds_read_b64_tr_b16 a[{reg}:{reg+1}], v{vT2} offset:{off}")
        A("s_waitcnt lgkmcnt(0)")
    A(f"""
    v_and_b32 v{vT1}, 7, v{vCol}
    v_lshrrev_b32 v{vT2}, 3, v{vCol}
    v_lshlrev_b32 v{vT3}, 11, v{vT1}
    v_lshl_add_u32 v{vT3}, v{vT2}, 6, v{vT3}
    v_lshl_add_u32 v{vT3}, v{vG}, 4, v{vT3}
    s_lshl_b32 s{sTmp}, s{sW}, 9
    v_add_u32 v{vT3}, s{sTmp}, v{vT3}
    s_mov_b32 s{sT}, s{sPm}
    s_mov_b32 s{sT+1}, s{sPm+1}
    s_mov_b32 s{sT+2}, 16384
    """)
    for i in range(4):
        A(f"buffer_load_dwordx4 {v(vM+4*i,4)}, v{vT3}, s[{sT}:{sT+3}], 0 offen offset:{i*128}")
    A(f"""
    s_lshl_b32 s{sTmp}, s{sW}, 12
    v_add_u32 v{vOffD}, s{sTmp}, v{vL16}                 ; w*4096 + lane*16
    s_mul_i32 s{sTmp}, s{sW}, 6144
    v_add_u32 v{vOffAq}, s{sTmp}, v{vL16}                ; w*6144 + lane*16
    v_lshlrev_b32 v{vOffAv}, 3, v{vLane}
    s_add_u32 s{sTmp}, s{sTmp}, 4096
    v_add_u32 v{vOffAv}, s{sTmp}, v{vOffAv}              ; w*6144 + 4096 + lane*8
    s_mul_i32 s{sTmp}, s{sHL}, 6144
    s_cmp_eq_u32 s{sW}, 2
    s_cbranch_scc1 {name}_astv
    v_lshlrev_b32 v{vOffAst}, 4, v{vT1}
    v_lshl_add_u32 v{vOffAst}, v{vG}, 8, v{vOffAst}
    v_lshl_add_u32 v{vOffAst}, v{vT2}, 3, v{vOffAst}
    s_lshr_b32 s{sTmp2}, s{sJ}, 1
    s_lshl_b32 s{sTmp2}, s{sTmp2}, 10
    s_add_u32 s{sTmp}, s{sTmp}, s{sTmp2}
    s_and_b32 s{sTmp2}, s{sJ}, 1
    s_lshl_b32 s{sTmp2}, s{sTmp2}, 7
    s_add_u32 s{sTmp}, s{sTmp}, s{sTmp2}
    s_and_b32 s{sTmp2}, s{sW}, 1
    s_lshl_b32 s{sTmp2}, s{sTmp2}, 11
    s_add_u32 s{sTmp}, s{sTmp}, s{sTmp2}
    v_add_u32 v{vOffAst}, s{sTmp}, v{vOffAst}
    s_branch {name}_astd
    {name}_astv:
    v_lshlrev_b32 v{vOffAst}, 3, v{vLane}
    s_lshl_b32 s{sTmp2}, s{sJ}, 9
    s_add_u32 s{sTmp}, s{sTmp}, s{sTmp2}
    s_add_u32 s{sTmp}, s{sTmp}, 4096
    v_add_u32 v{vOffAst}, s{sTmp}, v{vOffAst}
    {name}_astd:
    s_and_b32 s{sTmp}, s{sW}, 1
    s_lshl_b32 s{sTmp2}, s{sTmp}, 10
    v_add_u32 v{vOffC}, s{sTmp2}, v{vL16}                ; p*1024 + lane*16
    {'v_lshrrev_b32 v%d, 1, v%d' % (vOffC, vOffC) if cbf else ''}
    s_lshl_b32 s{sTmp2}, s{sTmp}, 3
    s_lshl_b32 s{sTmp}, s{sC}, 10
    s_add_u32 s{sTmp}, s{sTmp}, s{sTmp2}
    v_add_u32 v{vOffDst}, s{sTmp}, v{vL16}               ; c*1024 + lane*16 + 8p
    s_lshl_b32 s{sTmp}, s{sX}, 2
    s_add_u32 s{sTmp}, s{sTmp}, s{sW}
    s_lshl_b32 s{sOffKVM}, s{sTmp}, 12
    s_add_u32 s{sOffKVM}, s{sOffKVM}, {WS['KVM']}
    s_lshl_b32 s{sTmp}, s{sTmp}, 13                      ; head*8192
    s_add_u32 s{sOffKx}, s{sTmp}, {WS['K']}
    s_add_u32 s{sOffKx1}, s{sOffKx}, 4096
    s_add_u32 s{sOffVx}, s{sTmp}, {WS['VT']}
    s_add_u32 s{sOffVx1}, s{sOffVx}, 4096
    s_lshl_b32 s{sTmp}, s{sC}, 2
    s_add_u32 s{sTmp}, s{sTmp}, s{sW}
    s_and_b32 s{sTmp2}, s{sTmp}, 31
    s_lshl_b32 s{sTmp2}, s{sTmp2}, 10
    s_cmp_lt_u32 s{sTmp}, 32
    s_cselect_b32 s{sTmp}, 0, {WS['VT'] - WS['K']}
    s_add_u32 s{sTmp}, s{sTmp}, s{sTmp2}
    s_lshl_b32 s{sTmp2}, s{sX}, 15
    s_add_u32 s{sTmp}, s{sTmp}, s{sTmp2}
    s_add_u32 s{sTmp}, s{sTmp}, {WS['K']}
    v_add_u32 v{vPfo}, s{sTmp}, v{vL16}
    s_mul_i32 s{sBaseA}, s{sX}, 24576
    s_add_u32 s{sBaseA}, s{sBaseA}, {WS['RA']}
    s_lshl_b32 s{sBaseD}, s{sX}, 14
    s_add_u32 s{sBaseD}, s{sBaseD}, {WS['RD']}
    s_lshl_b32 s{sBaseC}, s{sC}, 14
    s_add_u32 s{sBaseC}, s{sBaseC}, {WS['RC']}
    s_lshl_b32 s{sBaseCo}, s{sX}, 11
    s_add_u32 s{sBaseCo}, s{sBaseCo}, s{sBaseC}
    s_mul_i32 s{sTmp}, s{sW}, 3072
    v_add_u32 v{vLds1w}, s{sTmp}, v{vL16}
    s_lshl_b32 s{sTmp}, s{sW}, 10
    v_add_u32 v{vLds1r}, s{sTmp}, v{vL16}
    s_lshl_b32 s{sTmp}, s{sW}, 11
    s_add_u32 s{sTmp}, s{sTmp}, {LDS_P3}
    v_add_u32 v{vLds3w}, s{sTmp}, v{vL16}
    s_and_b32 s{sTmp}, s{sW}, 1
    s_lshl_b32 s{sTmp}, s{sTmp}, 10
    s_add_u32 s{sTmp}, s{sTmp}, {LDS_P3}
    v_add_u32 v{vLds3r}, s{sTmp}, v{vL16}
    v_mov_b32 v{vSent}, -1
    v_mov_b32 v{vSent+1}, -1
    v_mov_b32 v{vSent+2}, -1
    v_mov_b32 v{vSent+3}, -1
    s_mov_b32 s{sBud}, {SENT_BUDGET}
    s_mov_b32 s{sStep}, 0
    """)
    cexp = struct.unpack('<I', struct.pack('<f', (128 ** -0.5) * math.log2(math.e)))[0]
    A(f"s_mov_b32 s{sCexp}, {hex(cexp)}")
    A("s_barrier")
    def kx_loads():
        return [f"buffer_load_dwordx4 {v(vKx + (t*4+ks)*4, 4)}, v{vL16}, {ws}, s{sOffKx if t == 0 else sOffKx1} offen offset:{ks*1024}{kvf}" for t in range(2) for ks in range(4)]
    def vx_loads():
        return [f"buffer_load_dwordx4 {v(vVx + t*4, 4)}, v{vL16}, {ws}, s{sOffVx if t < 4 else sOffVx1} offen offset:{(t%4)*1024}{kvf}" for t in range(8)]
    if merged:
        mega_pre.wait_dbg(A, name, mega_pre.DBG_INIT, 128, f"{name}_wi", sBud, sTmp)
    if embedded:
        A(f"""
        v_mov_b32 v{vZero}, 0
        s_lshl_b32 s{sFlg}, s{sX}, 11
        s_add_u32 s{sFlg}, s{sFlg}, {FL_KVRDY}
        s_lshl_b32 s{sKvmF}, s{sX}, 12
        s_add_u32 s{sKvmF}, s{sKvmF}, {FL_KVM}
        {name}_w0:
        buffer_load_dword v{vFlag}, v{vZero}, {ws}, s{sFlg} offen sc1
        s_waitcnt vmcnt(0)
        v_readfirstlane_b32 s{sTmp}, v{vFlag}
        s_cmp_ge_u32 s{sTmp}, 8
        s_cbranch_scc1 {name}_w0ok
        s_sub_u32 s{sBud}, s{sBud}, 1
        s_cbranch_scc1 {name}_exit
        s_sleep 2
        s_branch {name}_w0
        {name}_w0ok:
        """)
    if not kxp1:
        for l in kx_loads(): A(l)
    if timing:
        for i in range(8): A(f"s_mov_b32 s{80+i}, 0")
        for i in range(92,95): A(f"s_mov_b32 s{i}, 0")
        for i in range(16): A(f"s_mov_b32 s{64+i}, 0")
    A("s_waitcnt vmcnt(0)")
    for i in range(4):
        A(f"v_min_u32 v{vM+4*i}, -2, v{vM+4*i}")
        A(f"v_min_u32 v{vM+4*i+2}, -2, v{vM+4*i+2}")
    A(f"s_mov_b32 s{sOffD}, s{sBaseD}")
    A(f"s_branch {name}_p1")

    spin_blocks = []
    def spin_site(lbl, j, loads_from_j, chk_regs, cnt=None):
        def chk():
            out = []
            if len(chk_regs) == 2:
                out.append(f"v_max_u32 v{vT1}, v{chk_regs[0]}, v{chk_regs[1]}")
                out.append(f"v_cmp_eq_u32 vcc, -1, v{vT1}")
            elif len(chk_regs) == 1:
                out.append(f"v_cmp_eq_u32 vcc, -1, v{chk_regs[0]}")
            else:
                rs = list(chk_regs)
                out.append(f"v_max3_u32 v{vT1}, v{rs[0]}, v{rs[1]}, v{rs[2]}"); i = 3
                while i < len(rs):
                    if i + 1 < len(rs):
                        out.append(f"v_max3_u32 v{vT1}, v{vT1}, v{rs[i]}, v{rs[i+1]}"); i += 2
                    else:
                        out.append(f"v_max_u32 v{vT1}, v{vT1}, v{rs[i]}"); i += 1
                out.append(f"v_cmp_eq_u32 vcc, -1, v{vT1}")
            return out
        for x in chk(): A(x)
        A(f"s_cbranch_vccnz {lbl}_s{j}")
        A.label(f"{lbl}_k{j}")
        blk = [f"{lbl}_s{j}:"]
        blk += list(loads_from_j)
        if timing and cnt is not None: blk.append(f"s_add_u32 s{cnt}, s{cnt}, 1")
        blk.append(f"s_sub_u32 s{sBud}, s{sBud}, 1")
        sid = {'pD': 1, 'pA': 2, 'pV': 3, 'pC': 4}[lbl.split('_')[-1]]
        blk.append(f"s_movk_i32 s{sMask}, {sid*16 + j}")
        blk.append(f"s_cbranch_scc1 {name}_fail")
        blk.append("s_waitcnt vmcnt(0)")
        blk += chk()
        blk.append(f"s_cbranch_vccnz {lbl}_s{j}")
        blk.append(f"s_branch {lbl}_k{j}")
        spin_blocks.append(blk)

    def stamp(i):
        if timing: A(f"s_memrealtime s[{sSt+2*i}:{sSt+2*i+1}]")
    def stamp_acc(n):
        if timing:
            A("s_mov_b32 s97, s98")
            A("s_memtime s[98:99]")
            A("s_waitcnt lgkmcnt(0)")
            lb = A.newlabel('sk')
            A(f"s_cmp_lg_u32 s{sStep}, {stamp_step}")
            A(f"s_cbranch_scc1 {lb}")
            for i in range(n):
                A(f"s_mov_b32 s{80+i}, s{sSt+2*i}")
            A("s_sub_u32 s55, s98, s97")
            A.label(lb)

    kvm_copy = f"""
    s_and_b32 s{sTmp}, s{sStep}, 15
    s_cmp_lg_u32 s{sTmp}, s{sC}
    s_cbranch_scc1 {name}_nokvmXX
    s_lshl_b32 s{sTmp}, s{sStep}, 17
    s_add_u32 s{sTmp}, s{sTmp}, s{sOffKVM}
    s_add_u32 s{sTmp2}, s{sTmp}, 2048
    v_lshlrev_b32 v{vT2}, 3, v{vLane}
    buffer_store_dwordx4 {v(vK,4)}, v{vL16}, {ws}, s{sTmp} offen offset:0{kvf}
    buffer_store_dwordx4 {v(vK+4,4)}, v{vL16}, {ws}, s{sTmp} offen offset:1024{kvf}
    buffer_store_dwordx2 {v(vVm,2)}, v{vT2}, {ws}, s{sTmp2} offen offset:0{kvf}
    buffer_store_dwordx2 {v(vVm+2,2)}, v{vT2}, {ws}, s{sTmp2} offen offset:512{kvf}
    buffer_store_dwordx2 {v(vVm+4,2)}, v{vT2}, {ws}, s{sTmp2} offen offset:1024{kvf}
    buffer_store_dwordx2 {v(vVm+6,2)}, v{vT2}, {ws}, s{sTmp2} offen offset:1536{kvf}
    {name}_nokvmXX:
    """
    def kvchk(tag):
        if not embedded: return
        A(f"""
        {name}_kvchk{tag}:
        v_readfirstlane_b32 s{sTmp}, v{vFlag}
        s_cmp_ge_u32 s{sTmp}, 8
        s_cbranch_scc1 {name}_kvok{tag}
        s_add_u32 s{sTmp}, s{sStep}, 1
        s_lshr_b32 s{sTmp}, s{sTmp}, 2
        s_lshl_b32 s{sTmp}, s{sTmp}, 7
        s_add_u32 s{sTmp}, s{sTmp}, s{sFlg}
        buffer_load_dword v{vFlag}, v{vZero}, {ws}, s{sTmp} offen sc1
        s_sub_u32 s{sBud}, s{sBud}, 1
        s_cbranch_scc1 {name}_exit
        s_waitcnt vmcnt(0)
        s_branch {name}_kvchk{tag}
        {name}_kvok{tag}:
        """)
    def publish(tag):
        if not embedded: return
        A(f"""
        s_sub_u32 s{sTmp}, s{sStep}, 1
        s_and_b32 s{sTmp2}, s{sTmp}, 15
        s_cmp_lg_u32 s{sTmp2}, s{sC}
        s_cbranch_scc1 {name}_nopub{tag}
        s_cmp_eq_u32 s{sStep}, 0
        s_cbranch_scc1 {name}_nopub{tag}
        s_lshl_b32 s{sTmp}, s{sTmp}, 6
        s_add_u32 s{sTmp}, s{sTmp}, s{sKvmF}
        v_mov_b32 v{vT2}, 1
        s_mov_b64 exec, 1
        buffer_atomic_add v{vT2}, v{vZero}, {ws}, s{sTmp} offen
        s_mov_b64 exec, -1
        {name}_nopub{tag}:
        """)
    dl = [f"buffer_load_dwordx4 {v(vM+4*i,4)}, v{vOffD}, {ws}, s{sOffD} offen offset:{i*1024} {ldf}" for i in range(4)]
    def p1m(t, i, rot):
        odd_tile = t & 1
        ks = 2*i + ((0 if not rot else 1) if not odd_tile else (1 if not rot else 0))
        src = v((vRM if rot else vM) + 4*i, 4)
        first = (i == 0 and not rot)
        c = '0' if first else v(acc(t), 4)
        if t < 4: return f"v_mfma_f32_16x16x32_bf16 {v(acc(t),4)}, {W1(t,ks)}, {src}, {c}"
        else:     return f"v_mfma_f32_16x16x32_bf16 {v(acc(t),4)}, {src}, {W1(t,ks)}, {c}"
    sal = f"""
    s_and_b32 s{sTmp}, s{sStep}, 3
    s_mul_i32 s{sTmp}, s{sTmp}, {8*24576}
    s_add_u32 s{sOffA}, s{sTmp}, s{sBaseA}
    s_add_u32 s{sTmp}, s{sStep}, 3
    s_and_b32 s{sTmp}, s{sTmp}, 3
    s_mul_i32 s{sOffAr}, s{sTmp}, {8*24576}
    s_add_u32 s{sOffAr}, s{sOffAr}, s{sBaseA}
    s_lshl_b32 s{sOffDr}, s{sTmp}, 17
    s_add_u32 s{sOffDr}, s{sOffDr}, s{sBaseD}
    s_add_u32 s{sTmp}, s{sStep}, 2
    s_and_b32 s{sTmp}, s{sTmp}, 3
    s_lshl_b32 s{sOffCr}, s{sTmp}, 18
    s_add_u32 s{sOffCr}, s{sOffCr}, s{sBaseCo}
    s_and_b32 s{sTmp}, s{sStep}, 3
    s_lshl_b32 s{sTmp}, s{sTmp}, 18
    s_add_u32 s{sOffC}, s{sTmp}, s{sBaseC}
    s_add_u32 s{sCst}, s{sTmp}, s{sBaseCo}
    s_add_u32 s{sC1}, s{sOffC}, 4096
    s_add_u32 s{sC2}, s{sOffC}, 8192
    s_add_u32 s{sC3}, s{sOffC}, 12288
    s_add_u32 s{sTmp}, s{sStep}, 1
    s_and_b32 s{sTmp}, s{sTmp}, 3
    s_lshl_b32 s{sTmp}, s{sTmp}, 17
    s_add_u32 s{sOffDn}, s{sTmp}, s{sBaseD}
    v_mov_b32 v{vSM}, 0xff800000
    v_mov_b32 v{vSM+1}, 0xff800000
    v_mov_b32 v{vSM+2}, 0xff800000
    v_mov_b32 v{vSM+3}, 0xff800000
    v_mov_b32 v{vPMh}, 0
    v_mov_b32 v{vPMh+1}, 0
    """.strip().split('\n')
    sal = [x.strip() for x in sal]

    A.label(f"{name}_loop")
    stamp_acc(8)
    stamp(0)
    A(f"s_mov_b32 s{sOffD}, s{sOffDn}")
    if ddelay: A(f"s_sleep {ddelay}")
    for l in dl: A(l)
    A.label(f"{name}_p1")
    for x in sal: A(x)
    for i in range(4):
        A(f"s_waitcnt vmcnt({3-i})")
        spin_site(f"{name}_pD", i, dl[i:], [vM+4*i, vM+4*i+2], 92)
        if i == 3: stamp(1)
        rot = [f"v_mov_b32_dpp v{vRM+4*i+j}, v{vM+4*i+j} row_ror:8 row_mask:0xf bank_mask:0xf" for j in range(4)]
        interleave(A, [p1m(t, i, False) for t in range(4)], rot)
        A.nop(2)
        for t in range(4): A(p1m(t, i, True))
    vm_list = [p1m(t, i, r) for i in range(4) for r in (False, True) for t in (4, 5)]
    A(vm_list[0]); A(vm_list[1])
    A.nop(4)
    for pair in range(2):
        for r in range(4):
            A(f"v_mov_b32_dpp v{acc(2*pair)+r}, v{acc(2*pair+1)+r} quad_perm:[0,1,2,3] row_mask:0xf bank_mask:0xc")
    for p in range(2):
        A(f"ds_write_b128 v{vLds1w}, {v(acc(2*p),4)} offset:{LDS_P1 + p*1024}")
    A(vm_list[2]); A(vm_list[3])
    A("s_waitcnt lgkmcnt(0)")
    A("s_barrier")
    A(f"""
    s_cmp_ge_u32 s{sW}, 2
    s_cbranch_scc1 {name}_skipA
    """)
    for w in range(4):
        A(f"ds_read_b128 {v(vRd+4*w,4)}, v{vLds1r} offset:{LDS_P1 + w*3072}")
    A(vm_list[4]); A(vm_list[5]); A(vm_list[6]); A(vm_list[7])
    A("s_waitcnt lgkmcnt(0)")
    for r in range(4):
        A(f"v_add_f32 v{vRd+r}, v{vRd+r}, v{vRd+4+r}")
        A(f"v_add_f32 v{vRd+8+r}, v{vRd+8+r}, v{vRd+12+r}")
    for r in range(4):
        A(f"v_add_f32 v{vRd+r}, v{vRd+r}, v{vRd+8+r}")
    A(f"""
    v_cvt_pk_bf16_f32 v{vRd+4}, v{vRd}, v{vRd+1}
    v_cvt_pk_bf16_f32 v{vRd+5}, v{vRd+2}, v{vRd+3}
    s_nop 0
    v_min_u32 v{vRd+4}, -2, v{vRd+4}
    v_min_u32 v{vRd+5}, -2, v{vRd+5}
    buffer_store_dwordx2 {v(vRd+4,2)}, v{vOffAst}, {ws}, s{sOffA} offen{intra}
    """)
    stamp(2)
    interleave(A, vm_list[8:], (kx_loads() if kxp1 else []) + vx_loads())
    A(f"s_branch {name}_vdone")
    A.label(f"{name}_skipA")
    stamp(2)
    interleave(A, vm_list[4:], (kx_loads() if kxp1 else []) + vx_loads())
    A.label(f"{name}_vdone")
    A.nop(8)
    for r in range(4):
        A(f"v_mov_b32_dpp v{acc(4)+r}, v{acc(5)+r} quad_perm:[0,1,2,3] row_mask:0xc bank_mask:0xf")
    A(f"ds_write_b128 v{vLds1w}, {v(acc(4),4)} offset:{LDS_P1 + 2048}")
    ql = [f"buffer_load_dwordx4 {v(vQ+4*i,4)}, v{vOffAq}, {ws}, s{sOffA} offen offset:{i*1024} {ldf}" for i in range(2)]
    kl = [f"buffer_load_dwordx4 {v(vK+4*i,4)}, v{vOffAq}, {ws}, s{sOffA} offen offset:{2048+i*1024} {ldf}" for i in range(2)]
    vl = [f"buffer_load_dwordx2 {v(vVm+2*i,2)}, v{vOffAv}, {ws}, s{sOffA} offen offset:{i*512} {ldf}" for i in range(4)]
    for l in ql + kl: A(l)
    A("s_waitcnt lgkmcnt(0)")
    A("s_barrier")
    A(f"""
    s_cmp_lg_u32 s{sW}, 2
    s_cbranch_scc1 {name}_skipV
    """)
    for w in range(4):
        A(f"ds_read_b128 {v(vRd+4*w,4)}, v{vLds1r} offset:{LDS_P1 + w*3072}")
    A("s_waitcnt lgkmcnt(0)")
    for r in range(4):
        A(f"v_add_f32 v{vRd+r}, v{vRd+r}, v{vRd+4+r}")
        A(f"v_add_f32 v{vRd+8+r}, v{vRd+8+r}, v{vRd+12+r}")
    for r in range(4):
        A(f"v_add_f32 v{vRd+r}, v{vRd+r}, v{vRd+8+r}")
    A(f"""
    v_cvt_pk_bf16_f32 v{vRd+4}, v{vRd}, v{vRd+1}
    v_cvt_pk_bf16_f32 v{vRd+5}, v{vRd+2}, v{vRd+3}
    s_nop 0
    v_min_u32 v{vRd+4}, -2, v{vRd+4}
    v_min_u32 v{vRd+5}, -2, v{vRd+5}
    buffer_store_dwordx2 {v(vRd+4,2)}, v{vOffAst}, {ws}, s{sOffA} offen{intra}
    s_waitcnt vmcnt(1)
    s_branch {name}_skipV2
    {name}_skipV:
    s_waitcnt vmcnt(0)
    {name}_skipV2:
    """)
    spin_site(f"{name}_pA", 0, ql + kl, [vQ, vQ+2, vQ+4, vQ+6, vK, vK+2, vK+4, vK+6], 93)
    stamp(3)
    kvchk('a')
    for l in vl: A(l)
    if embedded:
        A(f"""
        s_add_u32 s{sTmp}, s{sStep}, 2
        s_lshr_b32 s{sTmp}, s{sTmp}, 2
        s_min_u32 s{sTmp}, s{sTmp}, 15
        s_lshl_b32 s{sTmp}, s{sTmp}, 7
        s_add_u32 s{sTmp}, s{sTmp}, s{sFlg}
        buffer_load_dword v{vFlag}, v{vZero}, {ws}, s{sTmp} offen sc1
        """)
    A(f"""
    s_cmp_eq_u32 s{sStep}, {nsteps-1}
    s_cbranch_scc1 {name}_last
    """)
    pf_code = f"""
    s_add_u32 s{sTmp}, s{sStep}, 2
    s_and_b32 s{sTmp2}, s{sTmp}, 3
    s_cmp_eq_u32 s{sTmp2}, 0
    s_cbranch_scc1 {name}_nopf
    s_cmp_ge_u32 s{sTmp}, 64
    s_cbranch_scc1 {name}_nopf
    s_lshl_b32 s{sTmp}, s{sTmp}, 18
    buffer_load_dword v{vT3}, v{vPfo}, {ws}, s{sTmp} offen{kvf}
    {name}_nopf:
    """
    def sm(kind, i):
        if kind == 'm':
            c = '0' if i == 0 else v(vSm,4)
            return f"v_mfma_f32_16x16x32_bf16 {v(vSm,4)}, {v(vK+4*i,4)}, {v(vQ+4*i,4)}, {c}"
        t, rot = kind
        d = vS1 if t == 0 else vS2
        ks = 2*i + ((1 if rot else 0) if t == 0 else (0 if rot else 1))
        src = v((vRQ if rot else vQ) + 4*i, 4)
        c = '0' if (i == 0 and not rot) else v(d,4)
        return f"v_mfma_f32_16x16x32_bf16 {v(d,4)}, {v(vKx+(t*4+ks)*4,4)}, {src}, {c}"
    mainl = [sm('m',0), sm('m',1), sm((0,False),0), sm((1,False),0), sm((0,False),1), sm((1,False),1)]
    fill = [f"v_mov_b32_dpp v{vRQ+j}, v{vQ+j} row_ror:8 row_mask:0xf bank_mask:0xf" for j in range(8)]
    interleave(A, mainl, fill)
    A.nop(1)
    mainl = [sm((0,True),0), sm((1,True),0), sm((0,True),1), sm((1,True),1)]
    fill = [f"v_permlane32_swap_b32 v{vSm+r}, v{vTT+r}" for r in range(4)]
    interleave(A, mainl, fill)
    A(f"""
    s_add_u32 s{sOffKx}, s{sOffKx}, {1<<18}
    s_add_u32 s{sOffKx1}, s{sOffKx1}, {1<<18}
    s_add_u32 s{sOffVx}, s{sOffVx}, {1<<18}
    s_add_u32 s{sOffVx1}, s{sOffVx1}, {1<<18}
    """)
    for r in range(4):
        A(f"v_add_f32_dpp v{vSM+r}, v{vTT+r}, v{vSm+r} row_ror:8 row_mask:0x3 bank_mask:0x3")
    A(f"""
    v_max3_f32 v{vMax}, v{vSM}, v{vSM+1}, v{vSM+2}
    v_max_f32 v{vMax}, v{vMax}, v{vSM+3}
    s_nop 1
    """)
    for r in range(4):
        A(f"v_mov_b32_dpp v{vS1+r}, v{vS2+r} quad_perm:[0,1,2,3] row_mask:0xf bank_mask:0xc")
    vSX = vS1
    A(f"""
    v_max3_f32 v{vMax}, v{vMax}, v{vSX}, v{vSX+1}
    v_max3_f32 v{vMax}, v{vMax}, v{vSX+2}, v{vSX+3}
    s_nop 1
    v_max_f32_dpp v{vMx2}, v{vMax}, v{vMax} row_ror:8 row_mask:0xf bank_mask:0xf
    v_max_f32_dpp v{vMax}, v{vMax}, v{vMax} row_ror:8 row_mask:0xf bank_mask:0xf
    s_nop 1
    v_permlane16_swap_b32 v{vMax}, v{vMx2}
    s_nop 0
    v_max_f32 v{vSu2}, v{vMax}, v{vMx2}
    v_max_f32 v{vMax}, v{vMax}, v{vMx2}
    s_nop 1
    v_permlane32_swap_b32 v{vMax}, v{vSu2}
    s_nop 0
    v_max_f32 v{vMax}, v{vMax}, v{vSu2}
    v_mul_f32 v{vMax}, s{sCexp}, v{vMax}
    """)
    for r in range(4):
        A(f"v_fma_f32 v{vSX+r}, v{vSX+r}, s{sCexp}, -v{vMax}")
    for r in range(4):
        A(f"v_exp_f32 v{vSX+r}, v{vSX+r}")
    for r in range(4):
        A(f"v_fma_f32 v{vSM+r}, v{vSM+r}, s{sCexp}, -v{vMax}")
    A(f"""
    v_cvt_pk_bf16_f32 v{vBX}, v{vSX}, v{vSX+1}
    v_cvt_pk_bf16_f32 v{vBX+1}, v{vSX+2}, v{vSX+3}
    v_exp_f32 v{vSM}, v{vSM}
    v_exp_f32 v{vSM+1}, v{vSM+1}
    v_mov_b32_dpp v{vBX+2}, v{vBX} row_ror:8 row_mask:0xf bank_mask:0xf
    v_mov_b32_dpp v{vBX+3}, v{vBX+1} row_ror:8 row_mask:0xf bank_mask:0xf
    v_exp_f32 v{vSM+2}, v{vSM+2}
    v_exp_f32 v{vSM+3}, v{vSM+3}
    """)
    stamp(4)
    def pvx(t): return f"v_mfma_f32_16x16x32_bf16 {v(vO+4*t,4)}, {v(vVx+4*t,4)}, {v(vBX,4)}, 0"
    def pvm(t):
        b = vPM if t % 2 == 0 else vPMh
        return f"v_mfma_f32_16x16x16_bf16 {v(vO+4*t,4)}, {v(vVm+2*(t//2),2)}, {v(b,2)}, {v(vO+4*t,4)}"
    A(pvx(0))
    A(f"v_cvt_pk_bf16_f32 v{vPM}, v{vSM}, v{vSM+1}")
    A(f"v_cvt_pk_bf16_f32 v{vPMc}, v{vSM}, v{vSM+1}")
    A(pvx(1))
    A(f"v_cvt_pk_bf16_f32 v{vPM+1}, v{vSM+2}, v{vSM+3}")
    A(f"v_cvt_pk_bf16_f32 v{vPMc+1}, v{vSM+2}, v{vSM+3}")
    A(pvx(2))
    A(f"v_add_f32 v{vSum}, v{vSX}, v{vSX+1}")
    A(f"v_permlane32_swap_b32 v{vPMh}, v{vPMc}")
    A(pvx(3))
    A(f"v_add_f32 v{vSu2}, v{vSX+2}, v{vSX+3}")
    A(f"v_permlane32_swap_b32 v{vPMh+1}, v{vPMc+1}")
    A("s_waitcnt vmcnt(1)" if embedded else "s_waitcnt vmcnt(0)")
    spin_site(f"{name}_pV", 0, vl, [vVm, vVm+2, vVm+4, vVm+6], 93)
    cv = []
    for u in range(4):
        c4 = []
        for hh in range(2):
            t = 2*u + hh
            c4.append(f"v_cvt_pk_bf16_f32 v{vOB+4*u+2*hh}, v{vO+4*t}, v{vO+4*t+1}")
            c4.append(f"v_cvt_pk_bf16_f32 v{vOB+4*u+2*hh+1}, v{vO+4*t+2}, v{vO+4*t+3}")
        cv.append(c4)
    def p3(tn, u): return f"v_mfma_f32_16x16x32_bf16 {v(vE+4*tn,4)}, {Wo(tn,u)}, {v(vOB+4*u,4)}, {'0' if u == 0 else v(vE+4*tn,4)}"
    kxl = kx_loads(); vxl = vx_loads()
    sums = [f"v_add_f32 v{vMx2}, v{vSM}, v{vSM+1}",
            f"v_add_f32 v{vSum}, v{vSum}, v{vSu2}",
            f"v_add_f32 v{vSu2}, v{vSM+2}, v{vSM+3}",
            f"v_add_f32 v{vSum}, v{vSum}, v{vMx2}",
            f"v_add_f32 v{vSum}, v{vSum}, v{vSu2}"]
    seq = [pvm(0), sums[0], pvm(1), sums[1], pvm(2), sums[2], pvm(3), sums[3],
           pvx(4), sums[4], pvx(5), kxl[0], pvm(4),
           f"v_add_f32_dpp v{vMx2}, v{vSum}, v{vSum} row_ror:8 row_mask:0xf bank_mask:0xf",
           pvm(5),
           f"v_add_f32_dpp v{vSum}, v{vSum}, v{vSum} row_ror:8 row_mask:0xf bank_mask:0xf",
           pvx(6), cv[0][0], cv[0][1], pvx(7), cv[0][2], cv[0][3], pvm(6),
           f"v_permlane16_swap_b32 v{vSum}, v{vMx2}", kxl[1], pvm(7), cv[1][0], cv[1][1],
           p3(0,0), cv[1][2], cv[1][3], p3(1,0), f"v_add_f32 v{vSu2}, v{vSum}, v{vMx2}", kxl[2], p3(2,0), f"v_add_f32 v{vSum}, v{vSum}, v{vMx2}", kxl[3], p3(3,0),
           kxl[4],
           p3(0,1), cv[2][0], cv[2][1], p3(1,1), cv[2][2], cv[2][3], p3(2,1), f"v_permlane32_swap_b32 v{vSum}, v{vSu2}", kxl[5], p3(3,1),
           cv[3][0], cv[3][1],
           p3(0,2), cv[3][2], cv[3][3], p3(1,2), f"v_add_f32 v{vSum}, v{vSum}, v{vSu2}", kxl[6], p3(2,2), kxl[7], vxl[0], p3(3,2),
           f"v_rcp_f32 v{vSum}, v{vSum}", vxl[1],
           p3(0,3), vxl[2], vxl[3], p3(1,3), vxl[4], vxl[5], p3(2,3), vxl[6], vxl[7], p3(3,3)]
    seq = [x for x in seq if x not in vxl and not (kxp1 and x in kxl)]
    if kvpos == 'late':
        seq = [x for x in seq if x not in kxl and x not in vxl]
    for x in seq: A(x)
    A(f"""
    s_cmp_eq_u32 s{sW}, 3
    s_cbranch_scc1 {name}_rs3
    buffer_store_dwordx2 {v(vSent,2)}, v{vOffAst}, {ws}, s{sOffAr} offen{intra}
    {name}_rs3:
    """)
    A.nop(4)
    for r in range(4):
        A(f"v_mov_b32_dpp v{vE+r}, v{vE+4+r} row_ror:8 row_mask:0xf bank_mask:0xc")
    A(f"v_pk_mul_f32 {v(vE,2)}, {v(vE,2)}, {v(vSumP,2)}") if False else None
    for r in range(4):
        A(f"v_mul_f32 v{vE+r}, v{vE+r}, v{vSum}")
    for r in range(4):
        A(f"v_mov_b32_dpp v{vE+8+r}, v{vE+12+r} row_ror:8 row_mask:0xf bank_mask:0xc")
    A(f"ds_write_b128 v{vLds3w}, {v(vE,4)} offset:0")
    for r in range(4):
        A(f"v_mul_f32 v{vE+8+r}, v{vE+8+r}, v{vSum}")
    A(f"ds_write_b128 v{vLds3w}, {v(vE+8,4)} offset:1024")
    A("s_waitcnt lgkmcnt(0)")
    A("s_barrier")
    stamp(5); stamp(6); stamp(7)
    A(f"""
    s_cmp_ge_u32 s{sW}, 2
    s_cbranch_scc1 {name}_cpoll
    """)
    for w in range(4):
        A(f"ds_read_b128 {v(vRd+4*w,4)}, v{vLds3r} offset:{w*2048}")
    A("s_waitcnt lgkmcnt(0)")
    for r in range(4):
        A(f"v_add_f32 v{vRd+r}, v{vRd+r}, v{vRd+4+r}")
        A(f"v_add_f32 v{vRd+8+r}, v{vRd+8+r}, v{vRd+12+r}")
    for r in range(4):
        A(f"v_add_f32 v{vRd+r}, v{vRd+r}, v{vRd+8+r}")
    if cbf:
        A(f"v_cvt_pk_bf16_f32 v{vRd+4}, v{vRd}, v{vRd+1}")
        A(f"v_cvt_pk_bf16_f32 v{vRd+5}, v{vRd+2}, v{vRd+3}")
        A("s_nop 0")
        A(f"v_min_u32 v{vRd+4}, -2, v{vRd+4}")
        A(f"v_min_u32 v{vRd+5}, -2, v{vRd+5}")
        A(f"buffer_store_dwordx2 {v(vRd+4,2)}, v{vOffC}, {ws}, s{sCst} offen sc1")
        stamp(6); stamp(7)
        A(f"buffer_store_dwordx2 {v(vSent,2)}, v{vOffC}, {ws}, s{sOffCr} offen sc1")
    else:
        for r in range(4):
            A(f"v_min_u32 v{vRd+r}, -2, v{vRd+r}")
        A(f"buffer_store_dwordx4 {v(vRd,4)}, v{vOffC}, {ws}, s{sCst} offen sc1")
        stamp(6); stamp(7)
        A(f"buffer_store_dwordx4 {v(vSent,4)}, v{vOffC}, {ws}, s{sOffCr} offen sc1")
    if kvpos == 'late':
        kvchk('b')
        for l in kxl + vxl: A(l)
    if l2pf: A(pf_code.replace('_nopf', '_nopf1').replace('s{sStep}, 2', 's{sStep}, 2'))
    publish('1')
    A(kvm_copy.replace('XX', '1'))
    A(f"s_add_u32 s{sStep}, s{sStep}, 1")
    A(f"s_branch {name}_b3")
    A.label(f"{name}_cpoll")
    if kvpos == 'late':
        kvchk('c')
        for l in kxl + vxl: A(l)
    A(f"buffer_store_dwordx2 {v(vSent,2)}, v{vOffDst}, {ws}, s{sOffDr} offen{intra}")
    if l2pf: A(pf_code.replace('_nopf', '_nopf3'))
    publish('3')
    A(kvm_copy.replace('XX', '3'))
    A(f"s_add_u32 s{sStep}, s{sStep}, 1")
    if cdelay: A(f"s_sleep {cdelay}")
    stamp(6)
    cl = []
    if cbf:
        vC = vRd + 16
        for y in range(8):
            so = [sOffC, sC1, sC2, sC3][y//2]
            cl.append(f"buffer_load_dwordx2 {v(vC+2*y,2)}, v{vOffC}, {ws}, s{so} offen offset:{(y%2)*2048} sc1")
        for l in cl: A(l)
        A("s_waitcnt vmcnt(0)")
        spin_site(f"{name}_pC", 0, cl, [vC+2*y for y in range(8)], 94)
        for y in range(8):
            base = vRd + (0 if y == 0 else (4 if y == 1 else (8 if y % 2 == 0 else 12)))
            A(f"v_lshlrev_b32 v{base}, 16, v{vC+2*y}")
            A(f"v_and_b32 v{base+1}, 0xffff0000, v{vC+2*y}")
            A(f"v_lshlrev_b32 v{base+2}, 16, v{vC+2*y+1}")
            A(f"v_and_b32 v{base+3}, 0xffff0000, v{vC+2*y+1}")
            if y >= 2:
                d = vRd + (0 if y % 2 == 0 else 4)
                A(f"v_pk_add_f32 {v(d,2)}, {v(d,2)}, {v(base,2)}")
                A(f"v_pk_add_f32 {v(d+2,2)}, {v(d+2,2)}, {v(base+2,2)}")
        A(f"v_pk_add_f32 {v(vRd,2)}, {v(vRd,2)}, {v(vRd+4,2)}")
        A(f"v_pk_add_f32 {v(vRd+2,2)}, {v(vRd+2,2)}, {v(vRd+6,2)}")
    else:
        for y in range(8):
            so = [sOffC, sC1, sC2, sC3][y//2]
            cl.append(f"buffer_load_dwordx4 {v(vRd+4*y,4)}, v{vOffC}, {ws}, s{so} offen offset:{(y%2)*2048} sc1")
        for l in cl: A(l)
        A("s_waitcnt vmcnt(0)")
        spin_site(f"{name}_pC", 0, cl, [vRd+4*y for y in range(8)], 94)
        for r in range(4):
            A(f"v_add_f32 v{vRd+r}, v{vRd+r}, v{vRd+4+r}")
            A(f"v_add_f32 v{vRd+8+r}, v{vRd+8+r}, v{vRd+12+r}")
            A(f"v_add_f32 v{vRd+16+r}, v{vRd+16+r}, v{vRd+20+r}")
            A(f"v_add_f32 v{vRd+24+r}, v{vRd+24+r}, v{vRd+28+r}")
        for r in range(4):
            A(f"v_add_f32 v{vRd+r}, v{vRd+r}, v{vRd+8+r}")
            A(f"v_add_f32 v{vRd+16+r}, v{vRd+16+r}, v{vRd+24+r}")
        for r in range(4):
            A(f"v_add_f32 v{vRd+r}, v{vRd+r}, v{vRd+16+r}")
    A(f"""
    v_cvt_pk_bf16_f32 v{vRd+4}, v{vRd}, v{vRd+1}
    v_cvt_pk_bf16_f32 v{vRd+5}, v{vRd+2}, v{vRd+3}
    s_nop 0
    v_min_u32 v{vRd+4}, -2, v{vRd+4}
    v_min_u32 v{vRd+5}, -2, v{vRd+5}
    buffer_store_dwordx2 {v(vRd+4,2)}, v{vOffDst}, {ws}, s{sOffDn} offen{intra}
    """)
    stamp(7)
    A(f"""
    {name}_b3:
    s_barrier
    s_branch {name}_loop
    """)
    for blk in spin_blocks:
        for x in blk: A(x)
    A.label(f"{name}_last")
    A.label(f"{name}_lastspin")
    for l in vl: A(l)
    A("s_waitcnt vmcnt(0)")
    A(f"v_max3_u32 v{vT1}, v{vVm}, v{vVm+2}, v{vVm+4}")
    A(f"v_max_u32 v{vT1}, v{vT1}, v{vVm+6}")
    A(f"v_cmp_eq_u32 vcc, -1, v{vT1}")
    A(f"s_cbranch_vccz {name}_lastok")
    A(f"s_sub_u32 s{sBud}, s{sBud}, 1")
    A(f"s_cbranch_scc1 {name}_exit")
    A(f"s_branch {name}_lastspin")
    A.label(f"{name}_lastok")
    publish('L')
    A(kvm_copy.replace('XX', '2'))
    if embedded:
        A(f"""
        s_and_b32 s{sTmp}, s{sStep}, 15
        s_cmp_lg_u32 s{sTmp}, s{sC}
        s_cbranch_scc1 {name}_done
        s_waitcnt vmcnt(0)
        s_lshl_b32 s{sTmp}, s{sStep}, 6
        s_add_u32 s{sTmp}, s{sTmp}, s{sKvmF}
        v_mov_b32 v{vT2}, 1
        s_mov_b64 exec, 1
        buffer_atomic_add v{vT2}, v{vZero}, {ws}, s{sTmp} offen
        s_mov_b64 exec, -1
        """)
    A.label(f"{name}_done")
    if timing:
        A(f"""
        s_memrealtime s[{sT0+2}:{sT0+3}]
        s_waitcnt lgkmcnt(0)
        s_sub_u32 s{sTmp}, s{sT0+2}, s{sT0}
        v_mov_b32 v{vT1}, s{sTmp}
        s_lshl_b32 s{sTmp2}, s{sX}, 2
        s_add_u32 s{sTmp2}, s{sTmp2}, 64
        v_mov_b32 v{vT2}, s{sTmp2}
        buffer_store_dword v{vT1}, v{vT2}, s[{sDBG}:{sDBG+3}], 0 offen
        v_mov_b32 v{vT1}, s{sBud}
        v_add_u32 v{vT2}, 32, v{vT2}
        buffer_store_dword v{vT1}, v{vT2}, s[{sDBG}:{sDBG+3}], 0 offen
        s_lshl_b32 s{sTmp}, s{sX}, 4
        s_add_u32 s{sTmp}, s{sTmp}, s{sC}
        s_lshl_b32 s{sTmp}, s{sTmp}, 2
        s_add_u32 s{sTmp}, s{sTmp}, s{sW}
        s_lshl_b32 s{sTmp}, s{sTmp}, 6
        s_add_u32 s{sTmp}, s{sTmp}, {WS['END']}
        """)
        for i in range(12):
            A(f"v_mov_b32 v{vT1}, s{80+i if i < 8 else (92+i-8 if i < 11 else 55)}")
            A(f"v_mov_b32 v{vT2}, {4*i}")
            A(f"buffer_store_dword v{vT1}, v{vT2}, {ws}, s{sTmp} offen")
    if done_label: A(f"s_branch {done_label}")
    A.label(f"{name}_exit")
    A("s_endpgm")
    A.label(f"{name}_fail")
    A(f"""
    s_lshl_b32 s{sTmp}, s{sX}, 4
    s_add_u32 s{sTmp}, s{sTmp}, s{sC}
    s_lshl_b32 s{sTmp}, s{sTmp}, 2
    s_add_u32 s{sTmp}, s{sTmp}, s{sW}
    s_lshl_b32 s{sTmp}, s{sTmp}, 2
    s_add_u32 s{sTmp}, s{sTmp}, {WS['END'] + 65536}
    s_lshl_b32 s{sTmp2}, s{sStep}, 8
    s_or_b32 s{sTmp2}, s{sTmp2}, s{sMask}
    s_or_b32 s{sTmp2}, s{sTmp2}, 0x10000
    v_mov_b32 v{vT1}, s{sTmp2}
    v_mov_b32 v{vT2}, 0
    buffer_store_dword v{vT1}, v{vT2}, {ws}, s{sTmp} offen
    s_endpgm
    """)
    return A.text()

def chain_desc(name='chain_kernel'):
    return kernel_desc(name, 512, 96, 256)
```

```python
from asmlib import *

ST = 8
class FVRegs:
    def __init__(self):
        R = RegAlloc(0, 256)
        R.alloc('tid')
        self.vLane = R.alloc('lane'); self.vCol = R.alloc('col'); self.vG = R.alloc('g'); self.vL16 = R.alloc('l16')
        self.t = [R.alloc('t1'), R.alloc('t2'), R.alloc('t3')]
        self.vDma = [R.alloc(f'dm{i}') for i in range(4)]
        self.vFo = [R.alloc('fo0'), R.alloc('fo1')]
        self.vRd = [[R.alloc(f'rd{h}_{j}') for j in range(8)] for h in range(2)]
        self.vT = R.alloc('Tfr', 64, 4)
        self.vF = R.alloc('Ffr', 128, 4)
        self.vEp = self.vT
        self.R = R

def fv_setup(A, r, sW, sM0, s1, s2, ldT, nK):
    t1, t2, t3 = r.t
    A(f"s_lshl_b32 s{sM0}, s{sW}, 12")
    A(f"v_lshrrev_b32 v{t1}, 4, v{r.vLane}")
    A(f"s_lshl_b32 s{s1}, s{sW}, 4")
    A(f"v_add_u32 v{t1}, s{s1}, v{t1}")
    A(f"v_and_b32 v{t2}, 15, v{r.vLane}")
    A(f"s_mov_b32 s{s2}, {ldT}")
    for m in range(4):
        d = r.vDma[m]
        A(f"v_add_u32 v{t3}, {m*4}, v{t1}")
        A(f"v_and_b32 v{d}, 7, v{t3}")
        A(f"v_lshlrev_b32 v{d}, 1, v{d}")
        A(f"v_xor_b32 v{d}, v{d}, v{t2}")
        A(f"v_lshlrev_b32 v{d}, 4, v{d}")
        A(f"v_mul_lo_u32 v{t3}, v{t3}, s{s2}")
        A(f"v_add_u32 v{d}, v{d}, v{t3}")
        if m: A(f"v_subrev_u32 v{d}, {m*1024}, v{d}")
    A(f"v_lshrrev_b32 v{t1}, 2, v{r.vCol}")
    A(f"v_lshl_add_u32 v{t1}, v{r.vG}, 2, v{t1}")
    A(f"v_and_b32 v{t2}, 7, v{t1}")
    A(f"v_lshlrev_b32 v{t2}, 5, v{t2}")
    A(f"v_lshlrev_b32 v{t1}, 8, v{t1}")
    A(f"v_and_b32 v{t3}, 3, v{r.vCol}")
    A(f"v_lshl_add_u32 v{t1}, v{t3}, 3, v{t1}")
    for j in range(8):
        A(f"v_xor_b32 v{r.vRd[0][j]}, {j*32}, v{t2}")
        A(f"v_add_u32 v{r.vRd[0][j]}, v{r.vRd[0][j]}, v{t1}")
        A(f"v_add_u32 v{r.vRd[1][j]}, 0x10000, v{r.vRd[0][j]}")
    A(f"s_mul_i32 s{s1}, s{sW}, {2*nK*1024}")
    A(f"v_add_u32 v{r.vFo[0]}, s{s1}, v{r.vL16}")
    A(f"v_add_u32 v{r.vFo[1]}, {nK*1024}, v{r.vFo[0]}")

def gen_fv_core(A, r, srdF, srdT, sOffF, sOffT, stepT, sM0, sCnt, niter, f_is_A, pfx, flF='', flT='', niter_sreg=None, init=None, hook=None):
    NP = 2*ST
    def fload(q):
        s = q % NP
        return [f"buffer_load_dwordx4 {v(r.vF + (s*2+j)*4, 4)}, v{r.vFo[j]}, {srdF}, s{sOffF} offen{flF}" for j in range(2)] + [f"s_add_u32 s{sOffF}, s{sOffF}, 1024"]
    def tdma(st):
        o = [f"s_add_u32 m0, s{sM0}, {st*16384}"]
        o += [f"buffer_load_dwordx4 v{r.vDma[m]}, {srdT}, s{sOffT} offen offset:{m*1024}{flT} lds" for m in range(4)]
        o.append(f"s_add_u32 s{sOffT}, s{sOffT}, {stepT}")
        return o
    def treads(st, kb, buf):
        out = []
        h = st // 4
        for j in range(8):
            for hh in range(2):
                off = (st % 4)*16384 + (32*kb + 16*hh)*256
                out.append(f"ds_read_b64_tr_b16 {v(r.vT + buf*32 + 4*j + 2*hh, 2)}, v{r.vRd[h][j]} offset:{off}")
        return out
    def mfmas(q, buf):
        out = []
        s = q % NP
        for j in range(8):
            for i in range(2):
                f = v(r.vF + (s*2+i)*4, 4); t = v(r.vT + buf*32 + 4*j, 4)
                if f_is_A:
                    d = a((i*8+j)*4, 4); out.append(f"v_mfma_f32_16x16x32_bf16 {d}, {f}, {t}, {d}")
                else:
                    d = a((j*2+i)*4, 4); out.append(f"v_mfma_f32_16x16x32_bf16 {d}, {t}, {f}, {d}")
        return out
    isv = lambda x: x.startswith('buffer_load')
    ops = []
    pro = []
    if hook is None:
        for st in range(ST):
            pro.append(('T', st))
            pro.append(('F', 2*st))
            if 2*st+1 < NP-1: pro.append(('F', 2*st+1))
    else:
        pro = [('T', st) for st in range(ST)] + [('F', q) for q in range(NP-1)]
    for k, x in pro:
        ops += [(k, x)] * (4 if k == 'T' else 2)
    waits = {}
    def need(tags):
        idx = max(i for i, o in enumerate(ops) if o in tags)
        return len(ops) - 1 - idx
    first_wait = need({('T', 0)})
    seqw = []
    for q in range(3*NP):
        st, kb = q // 2, q % 2
        tags = {('F', q)}
        if kb == 1: tags.add(('T', st+1))
        seqw.append(need(tags))
        ops += [('F', q + NP - 1)] * 2
        if kb == 1: ops += [('T', st + ST)] * 4
    W = [min(seqw[q], seqw[q+NP], seqw[q+2*NP]) for q in range(NP)]
    assert max(W) <= 63 and first_wait <= 63, (W, first_wait)
    if init is not None:
        for ins in init: A(ins)
    hooked = False
    for k, x in pro:
        if hook is not None and k == 'F' and not hooked:
            hook(); hooked = True
        for ins in (tdma(x) if k == 'T' else fload(x)): A(ins)
    if init is None:
        for q in range(64): A(f"v_accvgpr_write_b32 a{q}, 0")
    if niter_sreg is None: A(f"s_mov_b32 s{sCnt}, {niter}")
    else: A(f"s_mov_b32 s{sCnt}, s{niter_sreg}")
    A(f"s_waitcnt vmcnt({first_wait})")
    A("s_barrier")
    for x in treads(0, 0, 0): A(x)
    A.label(f"{pfx}_loop")
    for q in range(NP):
        st, kb = q // 2, q % 2
        buf = q & 1
        A(f"s_waitcnt vmcnt({W[q]}) lgkmcnt(0)")
        if kb == 1:
            A("s_barrier")
            fill = treads((st+1) % ST, 0, buf ^ 1) + fload(q + NP - 1) + tdma(st)
        else:
            fill = treads(st, 1, buf ^ 1) + fload(q + NP - 1)
        main = mfmas(q, buf)
        out = []; fi = 0
        for x in main:
            out.append(x)
            for _ in range(2):
                if fi < len(fill): out.append(fill[fi]); fi += 1
        out += fill[fi:]
        for x in out: A(x)
    A(f"s_sub_u32 s{sCnt}, s{sCnt}, 1")
    A(f"s_cmp_lg_u32 s{sCnt}, 0")
    A(f"s_cbranch_scc1 {pfx}_loop")
    return W
```

```python
from asmlib import *
from gemm import *
from kern_g1 import common_regs
from gemmfv import *
from mega_pre import *
from mega_ext import ln_task, g5a_task, FL_H2CNT, FL_X1G, tail_g5g6
from kern_attn import attn_body
import chain as chainmod
import struct, math
def f2u(x): return struct.unpack('<I', struct.pack('<f', x))[0]

sWS=8; sWt=12; sAux=16; sW=20; sWr=21; sWc=22; sTn=23; sTm=24; sOffR=25; sOffC=26; sCnt=27; sM0R=28; sM0C=29
s1=30; s2=31; sMat=32; sHead=33; sSeg=34; sBase=35; s3=36; s4=37; sX=38; sTask=39; sBud=40; sSig=41; sEx=42
sPq=44; sPk=46; sPv=48; sPo=50; sPx=52; sCexp=54; sTg=55; sA1=56; sA2=57; sA3=58; sA4=59; sI=60; sSlot=61
LDS_TASK = 131072
ws = f"s[{sWS}:{sWS+3}]"; wt = f"s[{sWt}:{sWt+3}]"; aux = f"s[{sAux}:{sAux+3}]"
vLane, vCol, vG, vL16 = 1, 2, 3, 4
WBUD = 2000000
USE_FV = True
G5A = False
MERGE_PRE = True
LN_IN = True
FUSE_TAIL = True
FORCE_FB = 32
NWORK = 16

def wait_counter(A, name, soff_expr_lines, target, lbl, sleep=12, vt=(5, 6)):
    A(soff_expr_lines)
    A(f"""
    s_cmp_lg_u32 s{sW}, 0
    s_cbranch_scc1 {lbl}_ok
    v_mov_b32 v{vt[0]}, 0
    {lbl}:
    buffer_load_dword v{vt[1]}, v{vt[0]}, {ws}, s{s1} offen sc1
    s_waitcnt vmcnt(0)
    v_readfirstlane_b32 s{s2}, v{vt[1]}
    s_cmp_ge_u32 s{s2}, {target}
    s_cbranch_scc1 {lbl}_ok
    s_sub_u32 s{sBud}, s{sBud}, 1
    s_cbranch_scc1 {name}_exit
    s_sleep {sleep}
    s_branch {lbl}
    {lbl}_ok:
    s_barrier
    """)

def set_wt(A, p, size):
    A(f"s_mov_b32 s{sWt}, s{p}"); A(f"s_mov_b32 s{sWt+1}, s{p+1}"); A(f"s_mov_b32 s{sWt+2}, {size}"); A(f"s_mov_b32 s{sWt+3}, 0x20000")

def store_pack(A, e, srcs, addr_v, soff, off, fl):
    for hh in range(2):
        for r in range(4): A(f"v_accvgpr_read_b32 v{e+4*hh+r}, a{srcs[hh]+r}")
    A(f"v_cvt_pk_bf16_f32 v{e}, v{e}, v{e+1}")
    A(f"v_cvt_pk_bf16_f32 v{e+1}, v{e+2}, v{e+3}")
    A(f"v_cvt_pk_bf16_f32 v{e+2}, v{e+4}, v{e+5}")
    A(f"v_cvt_pk_bf16_f32 v{e+3}, v{e+6}, v{e+7}")
    A(f"buffer_store_dwordx4 {v(e,4)}, v{addr_v}, {ws}, s{soff} offen offset:{off}{fl}")

def g1_tile(A, name, n, ksps, S, isv, fl):
    sF = Side('F', n, ksps); sT = Side('T', n, ksps)
    sR, sC = (sF, sT) if isv else (sT, sF)
    d = common_regs(n, n, sR, sC)
    regs = dict(d); regs.update(sM0R=sM0R, sM0C=sM0C, sCnt=sCnt, ldsR=0, ldsC=65536, acc=lambda i,j: (i*n+j)*4)
    tmp = {'v': d['t'], 's': (s1, s2)}
    setup_side(A, sR, regs, 'R', sW, sWr, vLane, vCol, vG, tmp, 8192, 32, 0)
    setup_side(A, sC, regs, 'C', sW, sWc, vLane, vCol, vG, tmp, 8192, 32, 65536)
    sH, sWo = (sOffR, sOffC) if isv else (sOffC, sOffR)
    A(f"""
    s_lshl_b32 s{sH}, s{sTm}, 15
    s_add_u32 s{sH}, s{sH}, {WS['H']}
    s_lshl_b32 s{sWo}, s{sHead}, 8
    """)
    stepH, stepW = ksps*1024, 32*ksps*8192
    if isv: gen_gemm_core(A, sR, sC, 32//ksps, S, ws, wt, sOffR, sOffC, stepH, stepW, regs, pfx=name, ldflagR=' sc1')
    else:   gen_gemm_core(A, sR, sC, 32//ksps, S, wt, ws, sOffR, sOffC, stepW, stepH, regs, pfx=name, ldflagC=' sc1')
    ep = d['vEp']; acc = regs['acc']
    A.nop(8)
    tokhalf, feathalf = (sWr, sWc) if isv else (sWc, sWr)
    A(f"""
    s_lshr_b32 s{sSeg}, s{sTm}, 1
    s_mul_i32 s{s1}, s{tokhalf}, {n//2}
    s_add_u32 s{sSeg}, s{sSeg}, s{s1}
    s_lshl_b32 s{sBase}, s{sSeg}, 5
    s_add_u32 s{sBase}, s{sBase}, s{sHead}
    """)
    if n == 8: A(f"s_add_u32 s{sBase}, s{sBase}, s{feathalf}")
    A(f"s_lshl_b32 s{sBase}, s{sBase}, 13")
    if n == 4:
        A(f"s_lshl_b32 s{s1}, s{feathalf}, {12 if isv else 11}")
        A(f"s_add_u32 s{sBase}, s{sBase}, s{s1}")
    if not isv:
        A(f"s_lshl_b32 s{s1}, s{sMat}, 24")
        A(f"s_add_u32 s{sBase}, s{sBase}, s{s1}")
        A(f"s_add_u32 s{sBase}, s{sBase}, {WS['Q']}")
        k = 0
        for j in range(n):
            A(f"s_add_u32 s{s1}, s{sBase}, {(j>>1)*(1<<18) + (j&1)*4096}")
            for p in range(n//2):
                e = ep + (k % 4)*8; k += 1
                store_pack(A, e, (acc(2*p, j), acc(2*p+1, j)), vL16, s1, p*1024, fl)
    else:
        A(f"s_add_u32 s{sBase}, s{sBase}, {WS['VT']}")
        k = 0
        for pp in range(n//2):
            for j in range(n):
                if j % 4 == 0:
                    A(f"s_add_u32 s{s1}, s{sBase}, {pp*(1<<18) + (j//4)*4096}")
                e = ep + (k % 4)*8; k += 1
                store_pack(A, e, (acc(2*pp, j), acc(2*pp+1, j)), vL16, s1, (j%4)*1024, fl)

def g4_tile(A, name, ksps, S, fl, ldfl, split=False, wname=None):
    sR = Side('T', 4, ksps); sC = Side('F', 4, ksps)
    d = common_regs(4, 4, sR, sC)
    regs = dict(d); regs.update(sM0R=sM0R, sM0C=sM0C, sCnt=sCnt, ldsR=0, ldsC=65536, acc=lambda i,j: (i*4+j)*4)
    tmp = {'v': d['t'], 's': (s1, s2)}
    set_wt(A, sPo, 4096*1024*2)
    A(f"s_mov_b32 s{sAux}, s{sPx}"); A(f"s_mov_b32 s{sAux+1}, s{sPx+1}"); A(f"s_mov_b32 s{sAux+2}, {2048*1024*2}"); A(f"s_mov_b32 s{sAux+3}, 0x20000")
    setup_side(A, sR, regs, 'R', sW, sWr, vLane, vCol, vG, tmp, 2048, None, 0)
    setup_side(A, sC, regs, 'C', sW, sWc, vLane, vCol, vG, tmp, None, 128, 65536)
    A(f"s_lshl_b32 s{sOffR}, s{sX}, 8")
    A(f"s_lshl_b32 s{sOffC}, s{sTg}, 20")
    A(f"s_add_u32 s{sOffC}, s{sOffC}, {WS['O']}")
    bk = 32*ksps
    if split:
        A(f"s_lshl_b32 s{s1}, s{sI}, 20")
        A(f"s_add_u32 s{sOffR}, s{sOffR}, s{s1}")
        A(f"s_lshl_b32 s{s1}, s{sI}, 14")
        A(f"s_add_u32 s{sOffC}, s{sOffC}, s{s1}")
    gen_gemm_core(A, sR, sC, (512 if split else 4096)//bk, S, wt, ws, sOffR, sOffC, bk*2048, ksps*1024, regs, pfx=name, ldflagC=ldfl)
    if split:
        acc = regs['acc']
        A.nop(8)
        A(f"""
        s_sub_u32 s{s1}, s{sTg}, 13
        s_lshl_b32 s{s1}, s{s1}, 3
        s_add_u32 s{s1}, s{s1}, s{sI}
        s_lshl_b32 s{s1}, s{s1}, 19
        s_lshl_b32 s{s2}, s{sWc}, 18
        s_add_u32 s{s1}, s{s1}, s{s2}
        s_lshl_b32 s{s2}, s{sX}, 13
        s_add_u32 s{s1}, s{s1}, s{s2}
        s_lshl_b32 s{s2}, s{sWr}, 12
        s_add_u32 s{s1}, s{s1}, s{s2}
        s_add_u32 s{s1}, s{s1}, {WS['P4']}
        v_lshlrev_b32 v5, 5, v{vLane}
        """)
        for j in range(4):
            A(f"s_add_u32 s{s2}, s{s1}, {j*65536}")
            for p in range(2):
                for hh in range(2):
                    A(f"buffer_store_dwordx4 {a(acc(2*p+hh, j),4)}, v5, {ws}, s{s2} offen offset:{p*2048 + hh*16} sc1")
        g4_split_reduce(A, name, wname)
        return
    acc = regs['acc']; ep = d['vEp']; t1, t2, t3 = d['t']
    vF = d['vFR']; vF2 = d['vFC']
    A.nop(8)
    A(f"""
    v_lshlrev_b32 v{t1}, 11, v{vCol}
    v_lshl_add_u32 v{t1}, v{vG}, 3, v{t1}
    v_lshlrev_b32 v{t2}, 4, v{vG}
    s_lshl_b32 s{s1}, s{sX}, 7
    s_lshl_b32 s{s2}, s{sWr}, 6
    s_add_u32 s{s1}, s{s1}, s{s2}
    s_lshl_b32 s{s3}, s{s1}, 2
    s_add_u32 s{s3}, s{s3}, {WS['MOD'] + 2*4096}
    """)
    for p in range(2):
        for hh in range(2):
            A(f"buffer_load_dwordx4 {v(vF2+8*p+4*hh,4)}, v{t2}, {ws}, s{s3} offen offset:{(32*p+16*hh)*4}")
    A(f"""
    s_lshl_b32 s{s2}, s{sTg}, 3
    s_lshl_b32 s{s4}, s{sWc}, 2
    s_add_u32 s{s2}, s{s2}, s{s4}
    s_lshl_b32 s{s4}, s{s2}, 15
    s_lshl_b32 s{s3}, s{s1}, 1
    s_add_u32 s{s4}, s{s4}, s{s3}
    s_lshl_b32 s{s2}, s{s2}, 15
    s_lshl_b32 s{s3}, s{s1}, 5
    s_add_u32 s{s2}, s{s2}, s{s3}
    s_add_u32 s{s2}, s{s2}, {WS['X1']}
    """)
    for j in range(4):
        A(f"s_add_u32 s{s3}, s{s4}, {j*16*2048}")
        for p in range(2):
            for hh in range(2):
                A(f"buffer_load_dwordx2 {v(vF+(j*2+p)*4+2*hh,2)}, v{t1}, {aux}, s{s3} offen offset:{(32*p+16*hh)*2}")
    A("s_waitcnt vmcnt(0)")
    k = 0
    for j in range(4):
        A(f"s_add_u32 s{s3}, s{s2}, {j*32768}")
        for p in range(2):
            e = ep + (k % 4)*8; k += 1
            xr = vF + (j*2+p)*4
            for hh in range(2):
                for r in range(4):
                    A(f"v_accvgpr_read_b32 v{e+4*hh+r}, a{acc(2*p+hh, j)+r}")
            for hh in range(2):
                for q in range(2):
                    A(f"v_lshlrev_b32 v{t3}, 16, v{xr+2*hh+q}")
                    A(f"v_fma_f32 v{e+4*hh+2*q}, v{e+4*hh+2*q}, v{vF2+8*p+4*hh+2*q}, v{t3}")
                    A(f"v_and_b32 v{t3}, 0xffff0000, v{xr+2*hh+q}")
                    A(f"v_fma_f32 v{e+4*hh+2*q+1}, v{e+4*hh+2*q+1}, v{vF2+8*p+4*hh+2*q+1}, v{t3}")
            for q in range(4):
                A(f"v_cvt_pk_bf16_f32 v{e+q}, v{e+2*q}, v{e+2*q+1}")
            A(f"buffer_store_dwordx4 {v(e,4)}, v{vL16}, {ws}, s{s3} offen offset:{p*1024}{fl}")

def g4_split_reduce(A, name, wname):
    A(f"""
    s_sub_u32 s{s3}, s{sTg}, 13
    s_lshl_b32 s{s3}, s{s3}, 3
    s_add_u32 s{s3}, s{s3}, s{sX}
    s_lshl_b32 s{s3}, s{s3}, 7
    s_add_u32 s{s3}, s{s3}, {FL_X1RDY}
    s_waitcnt vmcnt(0)
    s_barrier
    s_cmp_lg_u32 s{sW}, 0
    s_cbranch_scc1 {name}_ns
    s_mov_b64 s[{sEx}:{sEx+1}], exec
    s_mov_b64 exec, 1
    v_mov_b32 v6, 0
    v_mov_b32 v7, 1
    buffer_atomic_add v7, v6, {ws}, s{s3} offen
    s_mov_b64 exec, s[{sEx}:{sEx+1}]
    {name}_ns:
    """)
    ftrace(A, 3)
    wait_counter(A, wname, f"s_mov_b32 s{s1}, s{s3}", 8, f"{name}_wp", sleep=1)
    ftrace(A, 4)
    vP = 16
    A(f"""
    s_sub_u32 s{s1}, s{sTg}, 13
    s_lshl_b32 s{s1}, s{s1}, 22
    s_lshl_b32 s{s2}, s{sI}, 16
    s_add_u32 s{s1}, s{s1}, s{s2}
    s_lshl_b32 s{s2}, s{sX}, 2
    s_add_u32 s{s2}, s{s2}, s{sW}               ; dblk
    s_lshl_b32 s{s3}, s{s2}, 11
    s_add_u32 s{s1}, s{s1}, s{s3}
    s_add_u32 s{s1}, s{s1}, {WS['P4']}
    v_lshlrev_b32 v5, 5, v{vLane}
    """)
    for kq in range(8):
        if kq: A(f"s_add_u32 s{s1}, s{s1}, {1<<19}")
        A(f"buffer_load_dwordx4 {v(vP+8*kq,4)}, v{vL16}, {ws}, s{s1} offen sc1")
        A(f"buffer_load_dwordx4 {v(vP+8*kq+4,4)}, v{vL16}, {ws}, s{s1} offen offset:1024 sc1")
    A(f"""
    v_lshlrev_b32 v6, 11, v{vCol}
    v_lshl_add_u32 v6, v{vG}, 3, v6
    s_lshl_b32 s{s3}, s{sTg}, 3
    s_add_u32 s{s3}, s{s3}, s{sI}
    s_lshl_b32 s{s4}, s{s3}, 15
    s_lshl_b32 s{s1}, s{s2}, 6
    s_add_u32 s{s4}, s{s4}, s{s1}
    buffer_load_dwordx2 v[88:89], v6, {aux}, s{s4} offen
    buffer_load_dwordx2 v[90:91], v6, {aux}, s{s4} offen offset:32
    v_lshlrev_b32 v7, 4, v{vG}
    s_lshl_b32 s{s1}, s{s2}, 7
    s_add_u32 s{s1}, s{s1}, {WS['MOD'] + 2*4096}
    buffer_load_dwordx4 v[92:95], v7, {ws}, s{s1} offen sc1
    buffer_load_dwordx4 v[96:99], v7, {ws}, s{s1} offen offset:64 sc1
    s_lshl_b32 s{s3}, s{s3}, 15
    s_lshl_b32 s{s1}, s{s2}, 10
    s_add_u32 s{s3}, s{s3}, s{s1}
    s_add_u32 s{s3}, s{s3}, {WS['X1']}
    s_waitcnt vmcnt(0)
    """)
    for kq in range(1, 8):
        for q in range(8): A(f"v_add_f32 v{vP+q}, v{vP+q}, v{vP+8*kq+q}")
    for q in range(4):
        A(f"v_lshlrev_b32 v100, 16, v{88+q}")
        A(f"v_fma_f32 v{vP+2*q}, v{vP+2*q}, v{92+2*q}, v100")
        A(f"v_and_b32 v100, 0xffff0000, v{88+q}")
        A(f"v_fma_f32 v{vP+2*q+1}, v{vP+2*q+1}, v{92+2*q+1}, v100")
    for q in range(4):
        A(f"v_cvt_pk_bf16_f32 v{vP+q}, v{vP+2*q}, v{vP+2*q+1}")
    A(f"buffer_store_dwordx4 {v(vP,4)}, v{vL16}, {ws}, s{s3} offen sc1")
    ftrace(A, 5)
    A(f"s_lshl_b32 s{sSig}, s{sTg}, 7")
    A(f"s_add_u32 s{sSig}, s{sSig}, {FL_X1G}")


def fv_kv_tile(A, name, isv, fl):
    r = FVRegs()
    fv_setup(A, r, sW, sM0R, s1, s2, 8192, 32)
    A(f"""
    s_lshl_b32 s{sOffR}, s{sTm}, 15
    s_add_u32 s{sOffR}, s{sOffR}, {WS['H']}
    s_lshl_b32 s{sOffC}, s{sHead}, 8
    """)
    gen_fv_core(A, r, ws, wt, sOffR, sOffC, 64*8192, sM0R, sCnt, 2, isv, name, flF=' sc1')
    A.nop(8)
    A(f"""
    s_lshr_b32 s{sSeg}, s{sTm}, 1
    s_add_u32 s{sSeg}, s{sSeg}, s{sW}
    s_lshl_b32 s{sBase}, s{sSeg}, 5
    s_add_u32 s{sBase}, s{sBase}, s{sHead}
    s_lshl_b32 s{sBase}, s{sBase}, 13
    """)
    ep = r.vEp
    if not isv:
        A(f"s_lshl_b32 s{s1}, s{sMat}, 24")
        A(f"s_add_u32 s{sBase}, s{sBase}, s{s1}")
        A(f"s_add_u32 s{sBase}, s{sBase}, {WS['Q']}")
        k = 0
        for j in range(2):
            A(f"s_add_u32 s{s1}, s{sBase}, {j*4096}")
            for p in range(4):
                e = ep + (k % 4)*8; k += 1
                store_pack(A, e, (((2*p)*2+j)*4, ((2*p+1)*2+j)*4), r.vL16, s1, p*1024, fl)
    else:
        A(f"s_add_u32 s{sBase}, s{sBase}, {WS['VT']}")
        for j in range(8):
            if j % 4 == 0: A(f"s_add_u32 s{s1}, s{sBase}, {(j//4)*4096}")
            e = ep + (j % 4)*8
            store_pack(A, e, (j*4, (8+j)*4), r.vL16, s1, (j%4)*1024, fl)

def fv_g4_tile(A, name, split=False, wname=None, hook=None):
    r = FVRegs()
    set_wt(A, sPo, 4096*1024*2)
    A(f"s_mov_b32 s{sAux}, s{sPx}"); A(f"s_mov_b32 s{sAux+1}, s{sPx+1}"); A(f"s_mov_b32 s{sAux+2}, {2048*1024*2}"); A(f"s_mov_b32 s{sAux+3}, 0x20000")
    fv_setup(A, r, sW, sM0R, s1, s2, 2048, 128)
    A(f"s_lshl_b32 s{sOffC}, s{sX}, 8")
    A(f"s_lshl_b32 s{sOffR}, s{sTg}, 20")
    A(f"s_add_u32 s{sOffR}, s{sOffR}, {WS['O']}")
    if split:
        A(f"s_lshl_b32 s{s1}, s{sI}, 20")
        A(f"s_add_u32 s{sOffC}, s{sOffC}, s{s1}")
        A(f"s_lshl_b32 s{s1}, s{sI}, 14")
        A(f"s_add_u32 s{sOffR}, s{sOffR}, s{s1}")
    gen_fv_core(A, r, ws, wt, sOffR, sOffC, 64*2048, sM0R, sCnt, 1 if split else 8, False, name, flF=' sc1', hook=hook)
    acc = lambda i, j: (i*2+j)*4
    A.nop(8)
    t1, t2, t3 = r.t
    if split: ftrace(A, 2)
    if split:
        A(f"""
        s_sub_u32 s{s1}, s{sTg}, 13
        s_lshl_b32 s{s1}, s{s1}, 3
        s_add_u32 s{s1}, s{s1}, s{sI}
        s_lshl_b32 s{s1}, s{s1}, 19
        s_lshl_b32 s{s2}, s{sW}, 17
        s_add_u32 s{s1}, s{s1}, s{s2}
        s_lshl_b32 s{s2}, s{sX}, 13
        s_add_u32 s{s1}, s{s1}, s{s2}
        s_add_u32 s{s1}, s{s1}, {WS['P4']}
        v_lshlrev_b32 v5, 5, v{vLane}
        """)
        for j in range(2):
            for p in range(4):
                if p % 2 == 0: A(f"s_add_u32 s{s2}, s{s1}, {j*65536 + p*2048}")
                for hh in range(2):
                    A(f"buffer_store_dwordx4 {a(acc(2*p+hh, j),4)}, v{vL16}, {ws}, s{s2} offen offset:{(p%2)*2048 + hh*1024} sc1")
        g4_split_reduce(A, name, wname)
        return
    vX = r.vF; vGa = r.vF + 64; ep = r.vT
    A(f"""
    v_lshlrev_b32 v{t1}, 11, v{vCol}
    v_lshl_add_u32 v{t1}, v{vG}, 3, v{t1}
    v_lshlrev_b32 v{t2}, 4, v{vG}
    s_lshl_b32 s{s3}, s{sX}, 9
    s_add_u32 s{s3}, s{s3}, {WS['MOD'] + 2*4096}
    """)
    for p in range(4):
        for hh in range(2):
            A(f"buffer_load_dwordx4 {v(vGa+8*p+4*hh,4)}, v{t2}, {ws}, s{s3} offen offset:{(32*p+16*hh)*4} sc1")
    A(f"""
    s_lshl_b32 s{s2}, s{sTg}, 3
    s_lshl_b32 s{s4}, s{sW}, 1
    s_add_u32 s{s2}, s{s2}, s{s4}
    s_lshl_b32 s{s4}, s{s2}, 15
    s_lshl_b32 s{s3}, s{sX}, 8
    s_add_u32 s{s4}, s{s4}, s{s3}
    s_lshl_b32 s{s2}, s{s2}, 15
    s_lshl_b32 s{s3}, s{sX}, 12
    s_add_u32 s{s2}, s{s2}, s{s3}
    s_add_u32 s{s2}, s{s2}, {WS['X1']}
    """)
    for j in range(2):
        A(f"s_add_u32 s{s3}, s{s4}, {j*16*2048}")
        for p in range(4):
            for hh in range(2):
                A(f"buffer_load_dwordx2 {v(vX+(j*4+p)*4+2*hh,2)}, v{t1}, {aux}, s{s3} offen offset:{(32*p+16*hh)*2}")
    A("s_waitcnt vmcnt(0)")
    k = 0
    for j in range(2):
        A(f"s_add_u32 s{s3}, s{s2}, {j*32768}")
        for p in range(4):
            e = ep + (k % 4)*8; k += 1
            xr = vX + (j*4+p)*4
            for hh in range(2):
                for q in range(4):
                    A(f"v_accvgpr_read_b32 v{e+4*hh+q}, a{acc(2*p+hh, j)+q}")
            for hh in range(2):
                for q in range(2):
                    A(f"v_lshlrev_b32 v{t3}, 16, v{xr+2*hh+q}")
                    A(f"v_fma_f32 v{e+4*hh+2*q}, v{e+4*hh+2*q}, v{vGa+8*p+4*hh+2*q}, v{t3}")
                    A(f"v_and_b32 v{t3}, 0xffff0000, v{xr+2*hh+q}")
                    A(f"v_fma_f32 v{e+4*hh+2*q+1}, v{e+4*hh+2*q+1}, v{vGa+8*p+4*hh+2*q+1}, v{t3}")
            for q in range(4):
                A(f"v_cvt_pk_bf16_f32 v{e+q}, v{e+2*q}, v{e+2*q+1}")
            A(f"buffer_store_dwordx4 {v(e,4)}, v{vL16}, {ws}, s{s3} offen offset:{p*1024} sc1")

FINE = False
def ftrace(A, idx):
    if not FINE: return
    TRF = WS['END'] + 131072 + 32768
    A(f"""
    s_memrealtime s[64:65]
    s_waitcnt lgkmcnt(0)
    s_lshl_b32 s66, s{sX}, 5
    s_add_u32 s66, s66, s{sTg}
    s_lshl_b32 s66, s66, 5
    s_add_u32 s66, s66, {TRF + idx*4}
    v_mov_b32 v252, s64
    v_mov_b32 v253, 0
    buffer_store_dword v252, v253, {ws}, s66 offen
    """)
NT_KVS, NT_KVB, NT_QB = 16, 28, 16
def gen_extra(A, name, M):
    A.label(f"{name}_ln")
    A(f"""
    s_lshl_b32 s{sTg}, s{sTg}, 3
    s_add_u32 s{sTg}, s{sTg}, s{sX}
    """)
    wait_counter(A, name, f"""
    s_lshr_b32 s{s1}, s{sTg}, 2
    s_lshl_b32 s{s1}, s{s1}, 7
    s_add_u32 s{s1}, s{s1}, {FL_X1G}
    s_cmp_ge_u32 s{sTg}, 56
    s_cselect_b32 s{sSeg}, 64, 8
    """, f"s{sSeg}", f"{name}_wx")
    ln_task(A, name+'_ln', M)
    A(f"""
    s_cmp_lt_u32 s{sTg}, {64 if FUSE_TAIL else 32}
    s_cselect_b32 s{sSig}, 0, 64
    s_add_u32 s{sSig}, s{sSig}, {FL_H2CNT}
    s_branch {name}_next
    """)
    A.label(f"{name}_g5a")
    if G5A:
        wait_counter(A, name, f"s_mov_b32 s{s1}, {FL_H2CNT}", 32, f"{name}_wh")
        g5a_task(A, name+'_g5a', M, set_wt)
    A(f"s_branch {name}_next")

def hwait2(A, name, tag):
    if not MERGE_PRE: return
    A(f"s_lshr_b32 s{s3}, s{sTm}, 3"); A(f"s_lshl_b32 s{s3}, s{s3}, 2"); A(f"s_add_u32 s{s3}, s{s3}, {DBG_HRDY}")
    wait_dbg(A, name, None, 8, f"{name}_wh1{tag}", sBud, s1, sreg_off=s3)
    A(f"s_add_u32 s{s3}, s{s3}, 4")
    wait_dbg(A, name, None, 8, f"{name}_wh2{tag}", sBud, s1, sreg_off=s3)

def gen_worker(A, name, timing=False):
    fl = ' sc1'
    if MERGE_PRE:
        A(f"""
        s_mov_b32 s{sBud}, {WBUD}
        s_sub_u32 s{s1}, s{sSlot}, 16            ; 0..15
        s_cmp_ge_u32 s{s1}, 12
        s_cbranch_scc1 {name}_nomod
        s_mul_i32 s{s2}, s{sX}, 12
        s_add_u32 s{s2}, s{s2}, s{s1}            ; 0..95
        s_lshl_b32 s{s2}, s{s1}, 3
        s_add_u32 s{s2}, s{s2}, s{sX}
        """)
        mod_task(A, name, ws, sW, s2, sEx, sBud)
        A.label(f"{name}_nomod")
        A(f"""
        s_sub_u32 s{s1}, s{sSlot}, 16
        s_cmp_ge_u32 s{s1}, 12
        s_cbranch_scc1 {name}_lnA
        s_lshl_b32 s{s2}, s{s1}, 3
        s_add_u32 s{s2}, s{s2}, s{sX}
        s_add_u32 s{s2}, s{s2}, 32
        s_branch {name}_lnB
        {name}_lnA:
        s_sub_u32 s{s2}, s{s1}, 12
        s_lshl_b32 s{s2}, s{s2}, 3
        s_add_u32 s{s2}, s{s2}, s{sX}
        {name}_lnB:
        """)
        ln1_task(A, name, ws, sW, s2, sEx, sBud)
        A(f"""
        """)
        wait_dbg(A, name, DBG_INIT, 128, f"{name}_wi", sBud, s1)
        A(f"s_cmp_ge_u32 s{sSlot}, {16 + NWORK}")
        A(f"s_cbranch_scc1 {name}_tail0" if FUSE_TAIL else f"s_cbranch_scc1 {name}_exit")
    else:
        A(f"""
        s_cmp_ge_u32 s{sSlot}, {16 + NWORK}
        s_cbranch_scc1 {name}_exit
        """)
    A(f"s_mov_b32 s{sTask}, 0")
    A.label(f"{name}_init")
    A(f"""
    s_load_dwordx2 s[{sPq}:{sPq+1}], s[0:1], {KA['Wq']}
    s_load_dwordx2 s[{sPk}:{sPk+1}], s[0:1], {KA['Wk']}
    s_load_dwordx2 s[{sPv}:{sPv+1}], s[0:1], {KA['Wv']}
    s_load_dwordx2 s[{sPo}:{sPo+1}], s[0:1], {KA['Wo']}
    s_load_dwordx2 s[{sPx}:{sPx+1}], s[0:1], {KA['x']}
    s_lshr_b32 s{sWr}, s{sW}, 1
    s_and_b32 s{sWc}, s{sW}, 1
    s_mov_b32 s{sBud}, {WBUD}
    s_mov_b32 s{sCexp}, {hex(f2u((128 ** -0.5) * math.log2(math.e)))}
    s_mov_b32 s{sSig}, 0
    s_waitcnt lgkmcnt(0)
    s_mov_b32 s62, -1
    TRACE_POST
    s_cmp_eq_u32 s{sTask}, -2
    s_cbranch_scc1 {name}_g4s
    s_cmp_eq_u32 s{sTask}, -3
    s_cbranch_scc0 {name}_next
    s_add_u32 s{sSeg}, s{sTg}, {62 - 24}
    s_mov_b32 s{sTg}, 15
    s_mov_b32 s{sI}, 1
    s_branch {name}_attgo
    {name}_next:
    s_waitcnt vmcnt(0) lgkmcnt(0)
    s_barrier
    s_cmp_lg_u32 s{sW}, 0
    s_cbranch_scc1 {name}_nf
    s_mov_b64 s[{sEx}:{sEx+1}], exec
    s_mov_b64 exec, 1
    TRACE_END
    v_mov_b32 v5, 0
    v_mov_b32 v6, 1
    s_cmp_eq_u32 s{sSig}, 0
    s_cbranch_scc1 {name}_nosig
    s_and_b32 s{s1}, s{sSig}, 0xfffffffe
    s_bitcmp1_b32 s{sSig}, 0
    s_cbranch_scc0 {name}_sig1
    v_mov_b32 v6, 2
    buffer_atomic_add v6, v5, {ws}, s{s1} offen offset:128
    {name}_sig1:
    buffer_atomic_add v6, v5, {ws}, s{s1} offen
    {name}_nosig:
    v_mov_b32 v7, 1
    s_lshl_b32 s{s1}, s{sX}, 7
    s_add_u32 s{s1}, s{s1}, {FL_QHEAD}
    buffer_atomic_add v7, v5, {ws}, s{s1} offen sc0
    s_waitcnt vmcnt(0)
    v_mov_b32 v5, {LDS_TASK}
    ds_write_b32 v5, v7
    s_waitcnt lgkmcnt(0)
    s_mov_b64 exec, s[{sEx}:{sEx+1}]
    {name}_nf:
    s_barrier
    v_mov_b32 v5, {LDS_TASK}
    ds_read_b32 v6, v5
    s_waitcnt lgkmcnt(0)
    s_nop 0
    v_readfirstlane_b32 s{sTask}, v6
    s_mov_b32 s{sSig}, 0
    s_nop 2
    TRACE_START
    s_cmp_lt_u32 s{sTask}, {NT_KVS}
    s_cbranch_scc1 {name}_kvs
    s_cmp_lt_u32 s{sTask}, {NT_KVS+NT_KVB}
    s_cbranch_scc1 {name}_kvb
    s_cmp_lt_u32 s{sTask}, {NT_KVS+NT_KVB+NT_QB}
    s_cbranch_scc1 {name}_qb
    s_sub_u32 s{sTask}, s{sTask}, {NT_KVS+NT_KVB+NT_QB}
    """)
    seq = []
    g5 = list(range(28))
    for tg in range(14):
        seq.append(('att', tg))
        if tg >= 1: seq.append(('g4', tg-1))
        if (G5A or LN_IN) and tg >= 2 and tg % 2 == 0: seq.append(('ln', (tg-2)//2))
        if tg == 9:
            for k in range(4): seq.append(('pf', k))
        if G5A and tg >= 10:
            for i in g5[(tg-10)*7:(tg-9)*7]: seq.append(('g5a', i))
    seq += [('att', 14), ('att', 15), ('g4', 13)]
    for kq in range(8): seq.append(('g4s', 8 + kq))
    if LN_IN: seq += [('ln', 6), ('ln', 7)]
    print('worker tail sequence length', len(seq))
    tcode = {'att': 0, 'g4': 1, 'g4s': 2, 'pf': 3, 'ln': 4, 'g5a': 5}
    codes = [tcode[t]*32 + a for t, a in seq]
    while len(codes) % 4: codes.append(0xff)
    A(f"s_cmp_ge_u32 s{sTask}, {len(seq)}")
    A(f"s_cbranch_scc1 {name}_tail" if FUSE_TAIL else f"s_cbranch_scc1 {name}_exit")
    A(f"s_lshr_b32 s{s1}, s{sTask}, 2")
    A(f"s_mov_b32 s{s2}, 0")
    for w in range(len(codes)//4):
        val = codes[4*w] | codes[4*w+1] << 8 | codes[4*w+2] << 16 | codes[4*w+3] << 24
        A(f"s_cmp_eq_u32 s{s1}, {w}")
        A(f"s_cselect_b32 s{s2}, {hex(val)}, s{s2}")
    A(f"""
    s_and_b32 s{s1}, s{sTask}, 3
    s_lshl_b32 s{s1}, s{s1}, 3
    s_lshr_b32 s{s2}, s{s2}, s{s1}
    s_and_b32 s{sTg}, s{s2}, 31
    s_bfe_u32 s{s2}, s{s2}, 0x30005
    s_cmp_eq_u32 s{s2}, 0
    s_cbranch_scc1 {name}_att
    s_cmp_eq_u32 s{s2}, 1
    s_cbranch_scc1 {name}_g4
    s_cmp_eq_u32 s{s2}, 2
    s_cbranch_scc1 {name}_g4s
    s_cmp_eq_u32 s{s2}, 4
    s_cbranch_scc1 {name}_ln
    s_cmp_eq_u32 s{s2}, 5
    s_cbranch_scc1 {name}_g5a
    s_branch {name}_pf
    """)
    TR = WS['END'] + 131072
    if timing:
        te = f"""s_cmp_eq_u32 s62, -1
    s_cbranch_scc1 {name}_tr0
    s_memrealtime s[64:65]
    s_waitcnt lgkmcnt(0)
    v_mov_b32 v5, s63
    v_mov_b32 v6, s64
    s_lshl_b32 s66, s{sX}, 8
    s_add_u32 s66, s66, s62
    s_lshl_b32 s66, s66, 3
    s_add_u32 s66, s66, {TR}
    v_mov_b32 v7, 0
    buffer_store_dword v5, v7, {ws}, s66 offen
    buffer_store_dword v6, v7, {ws}, s66 offen offset:4
    s_nop 1
    {name}_tr0:"""
        ts = f"""s_mov_b32 s62, s{sTask}
    s_memrealtime s[64:65]
    s_waitcnt lgkmcnt(0)
    s_mov_b32 s63, s64"""
    else:
        te = ts = ''
    for i, ln in enumerate(A.lines):
        if ln.strip() == 'TRACE_END': A.lines[i] = '\n'.join('    ' + x.strip() if not x.strip().endswith(':') else x.strip() for x in te.split('\n')) if te else ''
        if ln.strip() == 'TRACE_POST':
            A.lines[i] = (f"    s_cmp_eq_u32 s{sTask}, -2\n    s_cbranch_scc0 {name}_trp\n    s_add_u32 s62, s{sTg}, 184\n    s_memrealtime s[64:65]\n    s_waitcnt lgkmcnt(0)\n    s_mov_b32 s63, s64\n{name}_trp:" if timing else '')
        if ln.strip() == 'TRACE_START': A.lines[i] = '\n'.join('    ' + x.strip() for x in ts.split('\n')) if ts else ''
    A.label(f"{name}_kvs")
    A(f"""
    s_lshr_b32 s{sMat}, s{sTask}, 2
    s_and_b32 s{sMat}, s{sMat}, 1
    s_add_u32 s{sMat}, s{sMat}, 1
    s_and_b32 s{sHead}, s{sTask}, 3
    s_lshl_b32 s{s1}, s{sX}, 2
    s_add_u32 s{sHead}, s{sHead}, s{s1}
    s_lshr_b32 s{s2}, s{sTask}, 3
    s_lshl_b32 s{sTm}, s{s2}, 3
    s_lshl_b32 s{sSig}, s{sX}, 4
    s_add_u32 s{sSig}, s{sSig}, s{s2}
    s_lshl_b32 s{sSig}, s{sSig}, 7
    s_add_u32 s{sSig}, s{sSig}, {FL_KVRDY}
    """)
    if MERGE_PRE:
        A(f"s_lshr_b32 s{s3}, s{sTm}, 3"); A(f"s_lshl_b32 s{s3}, s{s3}, 2"); A(f"s_add_u32 s{s3}, s{s3}, {DBG_HRDY}")
        wait_dbg(A, name, None, 8, f"{name}_wh0", sBud, s1, sreg_off=s3)
    A(f"""
    s_cmp_eq_u32 s{sMat}, 2
    s_cbranch_scc1 {name}_kvs_v
    """)
    set_wt(A, sPk, 1024*4096*2)
    fv_kv_tile(A, name+'_sk', False, fl) if USE_FV else g1_tile(A, name+'_sk', 4, 2, 4, False, fl)
    A(f"s_branch {name}_next")
    A.label(f"{name}_kvs_v")
    set_wt(A, sPv, 1024*4096*2)
    fv_kv_tile(A, name+'_sv', True, fl) if USE_FV else g1_tile(A, name+'_sv', 4, 2, 4, True, fl)
    A(f"s_branch {name}_next")
    A.label(f"{name}_kvb")
    A(f"""
    s_sub_u32 s{s2}, s{sTask}, {NT_KVS}
    s_lshr_b32 s{s3}, s{s2}, 2
    s_add_u32 s{s3}, s{s3}, 1                    ; tm
    s_lshl_b32 s{sTm}, s{s3}, 4
    s_lshr_b32 s{sMat}, s{s2}, 1
    s_and_b32 s{sMat}, s{sMat}, 1
    s_add_u32 s{sMat}, s{sMat}, 1
    s_and_b32 s{sHead}, s{s2}, 1
    s_lshl_b32 s{sHead}, s{sHead}, 1
    s_lshl_b32 s{s1}, s{sX}, 2
    s_add_u32 s{sHead}, s{sHead}, s{s1}
    s_lshl_b32 s{sSig}, s{sX}, 4
    s_lshl_b32 s{s3}, s{s3}, 1
    s_add_u32 s{sSig}, s{sSig}, s{s3}
    s_lshl_b32 s{sSig}, s{sSig}, 7
    s_add_u32 s{sSig}, s{sSig}, {FL_KVRDY + 1}
    """)
    hwait2(A, name, 'b')
    A(f"""
    s_cmp_eq_u32 s{sMat}, 2
    s_cbranch_scc1 {name}_kvb_v
    """)
    set_wt(A, sPk, 1024*4096*2)
    A.label(f"{name}_bqk")
    g1_tile(A, name+'_bk', 8, 1, 4, False, fl)
    A(f"s_branch {name}_next")
    A.label(f"{name}_kvb_v")
    set_wt(A, sPv, 1024*4096*2)
    g1_tile(A, name+'_bv', 8, 1, 4, True, fl)
    A(f"s_branch {name}_next")
    A.label(f"{name}_qb")
    A(f"""
    s_sub_u32 s{s2}, s{sTask}, {NT_KVS+NT_KVB}
    s_lshr_b32 s{s3}, s{s2}, 1
    s_lshl_b32 s{sTm}, s{s3}, 4
    s_mov_b32 s{sMat}, 0
    s_and_b32 s{sHead}, s{s2}, 1
    s_lshl_b32 s{sHead}, s{sHead}, 1
    s_lshl_b32 s{s1}, s{sX}, 2
    s_add_u32 s{sHead}, s{sHead}, s{s1}
    s_lshl_b32 s{sSig}, s{sX}, 3
    s_add_u32 s{sSig}, s{sSig}, s{s3}
    s_lshl_b32 s{sSig}, s{sSig}, 7
    s_add_u32 s{sSig}, s{sSig}, {FL_QRDY}
    """)
    hwait2(A, name, 'q')
    set_wt(A, sPq, 1024*4096*2)
    A(f"s_branch {name}_bqk")
    A.label(f"{name}_att")
    wait_counter(A, name, f"""
    s_lshl_b32 s{s1}, s{sX}, 3
    s_lshr_b32 s{s2}, s{sTg}, 1
    s_add_u32 s{s1}, s{s1}, s{s2}
    s_lshl_b32 s{s1}, s{s1}, 7
    s_add_u32 s{s1}, s{s1}, {FL_QRDY}
    """, 2, f"{name}_wq")
    wait_counter(A, name, f"""
    s_lshl_b32 s{s1}, s{sX}, 4
    s_add_u32 s{s1}, s{s1}, s{sTg}
    s_lshl_b32 s{s1}, s{s1}, 7
    s_add_u32 s{s1}, s{s1}, {FL_KVRDY}
    """, 8, f"{name}_wkv")
    A(f"""
    s_lshl_b32 s{sSeg}, s{sTg}, 2
    s_cmp_eq_u32 s{sTg}, 15
    s_cselect_b32 s{sI}, 2, 4
    {name}_attgo:
    s_lshl_b32 s{sHead}, s{sX}, 2
    s_add_u32 s{sHead}, s{sHead}, s{sW}
    {name}_attl:
    """)
    wait_counter(A, name, f"""
    s_lshl_b32 s{s1}, s{sX}, 6
    s_add_u32 s{s1}, s{s1}, s{sSeg}
    s_lshl_b32 s{s1}, s{s1}, 6
    s_add_u32 s{s1}, s{s1}, {FL_KVM}
    """, 4, f"{name}_wm")
    attn_body(A, name, sWS, sSeg, sHead, dict(vLane=vLane, vCol=vCol, vG=vG, vL16=vL16, s=(sA1,sA2,sA3,sA4,sCexp), sexec=sEx, kvmflag=' sc1', stflag=' sc1', ldflag=' sc1'))
    A(f"""
    s_add_u32 s{sSeg}, s{sSeg}, 1
    s_sub_u32 s{sI}, s{sI}, 1
    s_cmp_lg_u32 s{sI}, 0
    s_cbranch_scc1 {name}_attl
    s_lshl_b32 s{sSig}, s{sTg}, 7
    s_add_u32 s{sSig}, s{sSig}, {FL_ORDY}
    """)
    ftrace(A, 6)
    A(f"s_branch {name}_next")
    A.label(f"{name}_g4")
    wait_counter(A, name, f"""
    s_lshl_b32 s{s1}, s{sTg}, 7
    s_add_u32 s{s1}, s{s1}, {FL_ORDY}
    """, 8, f"{name}_wo")
    fv_g4_tile(A, name+'_g4')
    A(f"""
    s_lshl_b32 s{sSig}, s{sTg}, 7
    s_add_u32 s{sSig}, s{sSig}, {FL_X1G}
    s_branch {name}_next
    """)
    M = dict(globals())
    if not (G5A or LN_IN):
        A.label(f"{name}_ln"); A.label(f"{name}_g5a"); A(f"s_branch {name}_next")
    else: gen_extra(A, name, M)
    A.label(f"{name}_g4s")
    A(f"""
    s_and_b32 s{sI}, s{sTg}, 7
    s_lshr_b32 s{sTg}, s{sTg}, 3
    s_add_u32 s{sTg}, s{sTg}, 13
    """)
    ftrace(A, 0)
    def hook_g4s():
        wait_counter(A, name, f"""
        s_lshl_b32 s{s1}, s{sTg}, 7
        s_add_u32 s{s1}, s{s1}, {FL_ORDY}
        s_cmp_eq_u32 s{sTg}, 15
        s_cselect_b32 s{sSeg}, 24, 8
        """, f"s{sSeg}", f"{name}_wos", sleep=3, vt=(250, 251))
        ftrace(A, 1)
    fv_g4_tile(A, name+'_g4s', split=True, wname=name, hook=hook_g4s)
    A(f"s_branch {name}_next")
    A.label(f"{name}_pf")
    A(f"""
    s_load_dwordx2 s[{sPq}:{sPq+1}], s[0:1], {KA['w1']}
    s_load_dwordx2 s[{sPk}:{sPk+1}], s[0:1], {KA['w2']}
    s_lshl_b32 s{s1}, s{sX}, 2
    s_add_u32 s{s1}, s{s1}, s{sTg}                 ; chunk 0..31
    s_waitcnt lgkmcnt(0)
    s_cmp_lt_u32 s{s1}, 16
    s_cselect_b32 s{sWt}, s{sPq}, s{sPk}
    s_cselect_b32 s{sWt+1}, s{sPq+1}, s{sPk+1}
    s_mov_b32 s{sWt+2}, {2048*3584*2}
    s_mov_b32 s{sWt+3}, 0x20000
    s_and_b32 s{s1}, s{s1}, 15
    s_mul_i32 s{s1}, s{s1}, {2048*3584*2//16}
    v_lshlrev_b32 v5, 4, v0
    s_mov_b32 s{sI}, {2048*3584*2//16//4096//8}
    {name}_pfl:
    """)
    for q in range(8):
        A(f"buffer_load_dwordx4 {v(16+4*q,4)}, v5, {wt}, s{s1} offen")
        A(f"s_add_u32 s{s1}, s{s1}, 4096")
    A(f"""
    s_waitcnt vmcnt(0)
    s_sub_u32 s{sI}, s{sI}, 1
    s_cmp_lg_u32 s{sI}, 0
    s_cbranch_scc1 {name}_pfl
    s_branch {name}_next
    """)
    if FUSE_TAIL:
        A.label(f"{name}_tail0")
        A(f"""
        s_lshr_b32 s{sWr}, s{sW}, 1
        s_and_b32 s{sWc}, s{sW}, 1
        s_mov_b32 s{sBud}, {WBUD}
        """)
        A.label(f"{name}_tail")
        tail_g5g6(A, name+'_t', dict(globals()), set_wt, wait_counter, name)

def gen_mega(name='mega_kernel', cdelay=14, timing=False, stamp_step=21, ddelay=0):
    A = Asm()
    A.raw(kernel_header(name))
    A(f"""
    s_cmp_ge_u32 s2, 256
    s_cbranch_scc1 {name}_exit
    s_load_dwordx2 s[4:5], s[0:1], {KA['dbg']}
    s_load_dwordx2 s[6:7], s[0:1], {KA['ws']}
    s_getreg_b32 s{sX}, hwreg(HW_REG_XCC_ID)
    s_and_b32 s{sX}, s{sX}, 7
    v_and_b32 v1, 63, v0
    v_lshrrev_b32 v5, 6, v0
    s_nop 0
    v_readfirstlane_b32 s{sW}, v5
    v_and_b32 v2, 15, v1
    v_lshrrev_b32 v3, 4, v1
    v_lshlrev_b32 v4, 4, v1
    s_waitcnt lgkmcnt(0)
    s_mov_b32 s{sWS}, s6
    s_mov_b32 s{sWS+1}, s7
    s_mov_b32 s{sWS+2}, {WS_SIZE}
    s_mov_b32 s{sWS+3}, 0x20000
    s_mov_b32 s16, s4
    s_mov_b32 s17, s5
    s_mov_b32 s18, 256
    s_mov_b32 s19, 0x20000
    s_cmp_lg_u32 s{sW}, 0
    s_cbranch_scc1 {name}_tk
    s_mov_b64 s[{sEx}:{sEx+1}], exec
    s_mov_b64 exec, 1
    v_mov_b32 v5, 1
    s_lshl_b32 s{s1}, s{sX}, 2
    v_mov_b32 v6, s{s1}
    v_mov_b32 v7, 1
    v_mov_b32 v8, 32
    buffer_atomic_add v5, v6, s[16:19], 0 offen sc0
    s_waitcnt vmcnt(0)
    buffer_atomic_add v7, v8, s[16:19], 0 offen sc0
    s_mov_b32 s{s2}, 4000000
    {name}_cen:
    buffer_load_dword v9, v8, s[16:19], 0 offen sc1
    s_waitcnt vmcnt(0)
    v_readfirstlane_b32 s{s3}, v9
    s_cmp_ge_u32 s{s3}, 256
    s_cbranch_scc1 {name}_cenok
    s_sub_u32 s{s2}, s{s2}, 1
    s_cbranch_scc1 {name}_exit
    s_branch {name}_cen
    {name}_cenok:
    v_mov_b32 v8, 0
    buffer_load_dwordx4 v[12:15], v8, s[16:19], 0 offen sc1
    buffer_load_dwordx4 v[16:19], v8, s[16:19], 0 offen offset:16 sc1
    s_waitcnt vmcnt(0)
    v_min_u32 v12, v12, v13
    v_min_u32 v14, v14, v15
    v_min_u32 v16, v16, v17
    v_min_u32 v18, v18, v19
    v_min_u32 v12, v12, v14
    v_min_u32 v16, v16, v18
    v_min_u32 v12, v12, v16
    v_cmp_gt_u32 vcc, {FORCE_FB}, v12
    s_nop 1
    v_lshrrev_b32 v9, 5, v7
    v_lshlrev_b32 v9, 16, v9
    v_and_b32 v10, 31, v7
    v_or_b32 v9, v9, v10
    v_or_b32 v9, 0x100, v9
    v_mov_b32 v10, s{sX}
    v_lshlrev_b32 v10, 16, v10
    v_or_b32 v10, v10, v5
    v_cndmask_b32 v5, v10, v9, vcc
    v_mov_b32 v6, {LDS_TASK}
    ds_write_b32 v6, v5
    s_waitcnt lgkmcnt(0)
    s_mov_b64 exec, s[{sEx}:{sEx+1}]
    {name}_tk:
    s_barrier
    v_mov_b32 v6, {LDS_TASK}
    ds_read_b32 v5, v6
    s_waitcnt lgkmcnt(0)
    s_nop 0
    v_readfirstlane_b32 s{s2}, v5
    s_nop 3
    s_barrier
    s_lshr_b32 s{sX}, s{s2}, 16
    s_and_b32 s3, s{s2}, 0x100
    s_and_b32 s{s1}, s{s2}, 0xff
    s_cmp_lt_u32 s{s1}, 16
    s_cbranch_scc1 {name}_chain
    s_mov_b32 s{sSlot}, s{s1}
    """)
    gen_worker(A, name+'_w', timing)
    A.label(f"{name}_w_exit")
    A("s_endpgm")
    A.label(f"{name}_chain")
    A(f"""
    s_mov_b32 s21, s{s1}
    s_mov_b32 s22, s{sW}
    s_mov_b32 s20, s{sX}
    """)
    fast = chainmod.gen_chain(name=name+'_c', cdelay=cdelay, timing=timing, embedded=True, stamp_step=stamp_step, done_label=name+'_post', ddelay=ddelay, merged=MERGE_PRE)
    slow = chainmod.gen_chain(name=name+'_f', cdelay=cdelay, timing=False, embedded=True, done_label=name+'_post', ddelay=ddelay, fallback=True, merged=MERGE_PRE)
    br = f"    s_branch {name}_c_p1\n"
    assert fast.count(br) == 1
    fast = fast.replace(br, f"    s_cmp_lg_u32 s3, 0\n    s_cbranch_scc1 {name}_f_p1\n" + br)
    sb = f"    s_branch {name}_f_p1\n"
    slow = slow[slow.index(sb) + len(sb):]
    A.raw(fast)
    A.raw(slow)
    A.label(f"{name}_post")
    A(f"""
    s_waitcnt vmcnt(0) lgkmcnt(0)
    s_mov_b64 exec, -1
    s_mov_b32 s{sX}, s20
    s_mov_b32 s{sSlot}, s21
    s_add_u32 s{sTg}, s21, 16
    s_mov_b32 s{sW}, s22
    v_and_b32 v1, 63, v0
    v_and_b32 v2, 15, v1
    v_lshrrev_b32 v3, 4, v1
    v_lshlrev_b32 v4, 4, v1
    s_cmp_ge_u32 s{sSlot}, 10
    s_cbranch_scc1 {name + ('_w_tail0' if FUSE_TAIL else '_exit')}
    s_cmp_ge_u32 s{sSlot}, 8
    s_cselect_b32 s{sTask}, -3, -2
    s_branch {name}_w_init
    """)
    A.label(f"{name}_exit")
    A("s_endpgm")
    return A.text()

def mega_desc(name='mega_kernel'):
    return kernel_desc(name, 512, 100, 256)
```

```python
from asmlib import *
from gemmfv import *
import struct, math
def f2u(x): return struct.unpack('<I', struct.pack('<f', x))[0]
FL_H2CNT = FL_H2RDY
FL_X1G = FL_H2RDY + 128

def ln_task(A, name, M):
    s1, s2, s3, s4, sW, sI, sTg, ws, vG, vCol, vL16 = M['s1'], M['s2'], M['s3'], M['s4'], M['sW'], M['sI'], M['sTg'], M['ws'], M['vG'], M['vCol'], M['vL16']
    vX = 32; vL = 96; vM = 128; PITCH = 2048 + 32; RED = 66816
    A(f"""
    v_lshlrev_b32 v7, 4, v{vG}
    s_lshl_b32 s{s1}, s{sW}, 10
    s_add_u32 s{s3}, s{s1}, {WS['MOD'] + 3*4096}
    s_add_u32 s{s4}, s{s1}, {WS['MOD'] + 4*4096}
    """)
    for kb in range(8):
        m = vM + kb*16
        A(f"buffer_load_dwordx4 v[{m}:{m+3}], v7, {ws}, s{s4} offen offset:{kb*128} sc1")
        A(f"buffer_load_dwordx4 v[{m+4}:{m+7}], v7, {ws}, s{s4} offen offset:{kb*128+64} sc1")
        A(f"buffer_load_dwordx4 v[{m+8}:{m+11}], v7, {ws}, s{s3} offen offset:{kb*128} sc1")
        A(f"buffer_load_dwordx4 v[{m+12}:{m+15}], v7, {ws}, s{s3} offen offset:{kb*128+64} sc1")
    A(f"s_mov_b32 s{sI}, 0")
    A.label(f"{name}_tl")
    A(f"""
    s_lshl_b32 s{s1}, s{sTg}, 1
    s_add_u32 s{s1}, s{s1}, s{sI}
    s_lshl_b32 s{s1}, s{s1}, 15
    s_lshl_b32 s{s2}, s{sW}, 13
    s_add_u32 s{s1}, s{s1}, s{s2}
    s_add_u32 s{s1}, s{s1}, {WS['X1']}
    s_add_u32 s{s2}, s{s1}, 4096
    """)
    for kb in range(8):
        A(f"buffer_load_dwordx4 v[{vL+4*kb}:{vL+4*kb+3}], v{vL16}, {ws}, s{s1 if kb < 4 else s2} offen offset:{(kb%4)*1024} sc1")
    A("s_waitcnt vmcnt(0)")
    for q in range(32):
        A(f"v_lshlrev_b32 v{vX+2*q}, 16, v{vL+q}")
        A(f"v_and_b32 v{vX+2*q+1}, 0xffff0000, v{vL+q}")
    def reduce_all(reg, ldsoff):
        A(f"""
        v_mov_b32 v9, v{reg}
        s_nop 1
        v_permlane16_swap_b32 v{reg}, v9
        s_nop 1
        v_add_f32 v{reg}, v{reg}, v9
        v_mov_b32 v9, v{reg}
        s_nop 1
        v_permlane32_swap_b32 v{reg}, v9
        s_nop 1
        v_add_f32 v{reg}, v{reg}, v9
        v_lshlrev_b32 v10, 2, v{vCol}
        v_add_u32 v10, {RED}, v10
        s_lshl_b32 s{s1}, s{sW}, 6
        v_add_u32 v11, s{s1}, v10
        ds_write_b32 v11, v{reg} offset:{ldsoff}
        s_waitcnt lgkmcnt(0)
        s_barrier
        ds_read_b32 v12, v10 offset:{ldsoff}
        ds_read_b32 v13, v10 offset:{ldsoff+64}
        ds_read_b32 v14, v10 offset:{ldsoff+128}
        ds_read_b32 v15, v10 offset:{ldsoff+192}
        s_waitcnt lgkmcnt(0)
        v_add_f32 v12, v12, v13
        v_add_f32 v14, v14, v15
        v_add_f32 v{reg}, v12, v14
        """)
    A(f"v_add_f32 v8, v{vX}, v{vX+1}"); A(f"v_add_f32 v16, v{vX+2}, v{vX+3}"); A(f"v_add_f32 v17, v{vX+4}, v{vX+5}"); A(f"v_add_f32 v18, v{vX+6}, v{vX+7}")
    for q in range(8, 64, 4):
        A(f"v_add_f32 v8, v8, v{vX+q}"); A(f"v_add_f32 v16, v16, v{vX+q+1}"); A(f"v_add_f32 v17, v17, v{vX+q+2}"); A(f"v_add_f32 v18, v18, v{vX+q+3}")
    A("v_add_f32 v8, v8, v16"); A("v_add_f32 v17, v17, v18"); A("v_add_f32 v8, v8, v17")
    reduce_all(8, 0)
    A(f"v_mul_f32 v16, {hex(f2u(1/1024))}, v8")
    for q in range(64): A(f"v_sub_f32 v{vX+q}, v{vX+q}, v16")
    A(f"v_mul_f32 v8, v{vX}, v{vX}"); A(f"v_mul_f32 v17, v{vX+1}, v{vX+1}")
    for q in range(2, 64, 2):
        A(f"v_fmac_f32 v8, v{vX+q}, v{vX+q}"); A(f"v_fmac_f32 v17, v{vX+q+1}, v{vX+q+1}")
    A("v_add_f32 v8, v8, v17")
    reduce_all(8, 512)
    A(f"""
    v_mov_b32 v17, {hex(f2u(1e-5))}
    v_fmac_f32 v17, {hex(f2u(1/1024))}, v8
    v_rsq_f32 v17, v17
    s_lshl_b32 s{s1}, s{sI}, 4
    v_add_u32 v18, s{s1}, v{vCol}
    v_mul_u32_u24 v18, {PITCH}, v18
    v_lshl_add_u32 v18, v{vG}, 3, v18
    s_lshl_b32 s{s1}, s{sW}, 9
    v_add_u32 v18, s{s1}, v18
    """)
    for kb in range(8):
        m = vM + kb*16; x0 = vX + 8*kb
        for e in range(8): A(f"v_mul_f32 v{x0+e}, v{x0+e}, v17")
        for e in range(8): A(f"v_fma_f32 v{x0+e}, v{x0+e}, v{m+e}, v{m+8+e}")
        o = 20 + (kb % 2)*4
        for q in range(4): A(f"v_cvt_pk_bf16_f32 v{o+q}, v{x0+2*q}, v{x0+2*q+1}")
        A(f"ds_write_b64 v18, v[{o}:{o+1}] offset:{kb*64}")
        A(f"ds_write_b64 v18, v[{o+2}:{o+3}] offset:{kb*64+32}")
    A(f"""
    s_waitcnt lgkmcnt(0)
    s_barrier
    s_add_u32 s{sI}, s{sI}, 1
    s_cmp_lt_u32 s{sI}, 2
    s_cbranch_scc1 {name}_tl
    v_lshrrev_b32 v19, 2, v{vCol}
    v_lshl_add_u32 v19, v{vG}, 2, v19
    v_mul_u32_u24 v19, {PITCH}, v19
    v_and_b32 v20, 3, v{vCol}
    v_lshl_add_u32 v19, v20, 3, v19
    s_lshl_b32 s{s1}, s{sW}, 9
    v_add_u32 v19, s{s1}, v19
    s_lshl_b32 s{s3}, s{sW}, 20
    s_lshl_b32 s{s1}, s{sTg}, 10
    s_add_u32 s{s3}, s{s3}, s{s1}
    s_add_u32 s{s3}, s{s3}, {WS['H2']}
    """)
    for j in range(16):
        A(f"ds_read_b64_tr_b16 v[{32+4*j}:{33+4*j}], v19 offset:{j*32}")
        A(f"ds_read_b64_tr_b16 v[{34+4*j}:{35+4*j}], v19 offset:{j*32 + 16*PITCH}")
        if j % 4 == 3: A("s_waitcnt lgkmcnt(0)")
    for j in range(16):
        A(f"buffer_store_dwordx4 v[{32+4*j}:{35+4*j}], v{vL16}, {ws}, s{s3} offen sc1")
        A(f"s_add_u32 s{s3}, s{s3}, 65536")

def g5a_task(A, name, M, set_wt):
    s1, s2, sW, sTg, ws, wt, vL16 = M['s1'], M['s2'], M['sW'], M['sTg'], M['ws'], M['wt'], M['vL16']
    sX, sHead, sSeg, sPq, sM0R, sOffR, sOffC, sCnt = M['sX'], M['sHead'], M['sSeg'], M['sPq'], M['sM0R'], M['sOffR'], M['sOffC'], M['sCnt']
    r = FVRegs()
    A(f"""
    s_load_dwordx2 s[{sPq}:{sPq+1}], s[0:1], {KA['w1']}
    s_and_b32 s{sHead}, s{sX}, 1
    s_lshl_b32 s{sHead}, s{sHead}, 2
    s_and_b32 s{s1}, s{sTg}, 3
    s_add_u32 s{sHead}, s{sHead}, s{s1}
    s_lshr_b32 s{sSeg}, s{sX}, 1
    s_mul_i32 s{sSeg}, s{sSeg}, 7
    s_lshr_b32 s{s1}, s{sTg}, 2
    s_add_u32 s{sSeg}, s{sSeg}, s{s1}
    s_waitcnt lgkmcnt(0)
    """)
    set_wt(A, sPq, 2048*3584*2)
    fv_setup(A, r, sW, sM0R, s1, s2, 7168, 64)
    A(f"""
    s_lshl_b32 s{sOffC}, s{sSeg}, 8
    s_lshl_b32 s{sOffR}, s{sHead}, 19
    s_add_u32 s{sOffR}, s{sOffR}, {WS['H2']}
    """)
    gen_fv_core(A, r, ws, wt, sOffR, sOffC, 64*7168, sM0R, sCnt, 2, False, name, flF=' sc1')
    A.nop(8)
    A(f"""
    s_lshl_b32 s{s1}, s{sSeg}, 3
    s_add_u32 s{s1}, s{s1}, s{sHead}
    s_lshl_b32 s{s1}, s{s1}, 2
    s_add_u32 s{s1}, s{s1}, s{sW}
    s_lshl_b32 s{s1}, s{s1}, 14
    s_add_u32 s{s1}, s{s1}, {WS['U1']}
    """)
    for b in range(16):
        if b and b % 4 == 0: A(f"s_add_u32 s{s1}, s{s1}, 4096")
        A(f"buffer_store_dwordx4 {a(4*b,4)}, v{vL16}, {ws}, s{s1} offen offset:{(b%4)*1024}")

FL_UCNT = FL_H2RDY + 4096
def tail_g5g6(A, name, M, set_wt, wait_counter, wname):
    from kern_fv import g5_epilogue
    s1, s2, s3, s4, sW, ws, wt, sX, sSlot = M['s1'], M['s2'], M['s3'], M['s4'], M['sW'], M['ws'], M['wt'], M['sX'], M['sSlot']
    sM0R, sOffR, sOffC, sCnt, sAux, sEx, sBud = M['sM0R'], M['sOffR'], M['sOffC'], M['sCnt'], M['sAux'], M['sEx'], M['sBud']
    sFt, sDt, sSt, sKh, sN = M['sHead'], M['sSeg'], M['sTm'], M['sMat'], M['sTn']
    sP = M['sPq']
    aux = M['aux']
    r = FVRegs()
    A(f"""
    s_waitcnt vmcnt(0) lgkmcnt(0)
    s_barrier
    s_cmp_ge_u32 s{sSlot}, 28
    s_cbranch_scc1 {name}_g6
    s_load_dwordx2 s[{sP}:{sP+1}], s[0:1], {KA['w1']}
    s_load_dwordx2 s[{sP+2}:{sP+3}], s[0:1], {KA['b1']}
    s_and_b32 s{sDt}, s{sX}, 1
    s_lshl_b32 s{sDt}, s{sDt}, 2
    s_and_b32 s{s1}, s{sSlot}, 3
    s_add_u32 s{sDt}, s{sDt}, s{s1}
    s_lshr_b32 s{sFt}, s{sX}, 1
    s_mul_i32 s{sFt}, s{sFt}, 7
    s_lshr_b32 s{s1}, s{sSlot}, 2
    s_add_u32 s{sFt}, s{sFt}, s{s1}
    s_waitcnt lgkmcnt(0)
    """)
    set_wt(A, sP, 2048*3584*2)
    A(f"s_mov_b32 s{sAux}, s{sP+2}"); A(f"s_mov_b32 s{sAux+1}, s{sP+3}"); A(f"s_mov_b32 s{sAux+2}, {3584*2}"); A(f"s_mov_b32 s{sAux+3}, 0x20000")
    fv_setup(A, r, sW, sM0R, s1, s2, 7168, 64)
    A(f"""
    s_lshl_b32 s{sOffC}, s{sFt}, 8
    s_lshl_b32 s{sOffR}, s{sDt}, 19
    s_add_u32 s{sOffR}, s{sOffR}, {WS['H2']}
    """)
    def hook5():
        wait_counter(A, wname, f"s_mov_b32 s{s1}, {FL_H2CNT}", 64, f"{name}_w5", sleep=10, vt=(250, 251))
    gen_fv_core(A, r, ws, wt, sOffR, sOffC, 64*7168, sM0R, sCnt, 4, False, name+'_5', flF=' sc1', hook=hook5)
    g5_epilogue(A, r, ws, aux, sW, sFt, sDt, (s1, s2, s3), M['sA1'], fl=' sc1')
    A(f"""
    s_lshl_b32 s{s3}, s{sDt}, 7
    s_add_u32 s{s3}, s{s3}, {FL_UCNT}
    s_waitcnt vmcnt(0)
    s_barrier
    s_cmp_lg_u32 s{sW}, 0
    s_cbranch_scc1 {name}_s5
    s_mov_b64 s[{sEx}:{sEx+1}], exec
    s_mov_b64 exec, 1
    v_mov_b32 v250, 0
    v_mov_b32 v251, 1
    buffer_atomic_add v251, v250, {ws}, s{s3} offen
    s_mov_b64 exec, s[{sEx}:{sEx+1}]
    {name}_s5:
    """)
    A.label(f"{name}_g6")
    sO = M['sPv']
    A(f"""
    s_load_dwordx2 s[{sP}:{sP+1}], s[0:1], {KA['w2']}
    s_load_dwordx2 s[{sP+2}:{sP+3}], s[0:1], {KA['b2']}
    s_load_dwordx2 s[{sO}:{sO+1}], s[0:1], {KA['out']}
    s_and_b32 s{sKh}, s{sSlot}, 1
    s_lshr_b32 s{s2}, s{sSlot}, 1
    s_and_b32 s{sDt}, s{sX}, 1
    s_lshl_b32 s{sDt}, s{sDt}, 2
    s_and_b32 s{s3}, s{s2}, 3
    s_add_u32 s{sDt}, s{sDt}, s{s3}
    s_lshr_b32 s{sSt}, s{sX}, 1
    s_lshl_b32 s{sSt}, s{sSt}, 2
    s_lshr_b32 s{s3}, s{s2}, 2
    s_add_u32 s{sSt}, s{sSt}, s{s3}
    s_waitcnt lgkmcnt(0)
    s_mov_b32 s{sO+2}, {2048*1024*2}
    s_mov_b32 s{sO+3}, 0x20000
    """)
    set_wt(A, sP, 3584*2048*2)
    A(f"s_mov_b32 s{sAux}, s{sP+2}"); A(f"s_mov_b32 s{sAux+1}, s{sP+3}"); A(f"s_mov_b32 s{sAux+2}, {2048*2}"); A(f"s_mov_b32 s{sAux+3}, 0x20000")
    fv_setup(A, r, sW, sM0R, s1, s2, 4096, 112)
    A(f"""
    s_lshl_b32 s{sOffC}, s{sSt}, 8
    s_mul_i32 s{s1}, s{sKh}, {2048*4096}
    s_add_u32 s{sOffC}, s{sOffC}, s{s1}
    s_mul_i32 s{sOffR}, s{sDt}, {8*112*1024}
    s_lshl_b32 s{s1}, s{sKh}, 16
    s_add_u32 s{sOffR}, s{sOffR}, s{s1}
    s_add_u32 s{sOffR}, s{sOffR}, {WS['U']}
    s_sub_u32 s{sN}, 4, s{sKh}
    """)
    def hook6():
        wait_counter(A, wname, f"""
        s_lshl_b32 s{s1}, s{sDt}, 7
        s_add_u32 s{s1}, s{s1}, {FL_UCNT}
        """, 28, f"{name}_w6", sleep=2, vt=(250, 251))
    gen_fv_core(A, r, ws, wt, sOffR, sOffC, 64*4096, sM0R, sCnt, None, True, name+'_6', flF=' sc1', niter_sreg=sN, hook=hook6)
    acc = lambda i, j: (i*8+j)*4
    t1, t2, t3 = r.t
    vX = r.vF; vGb = r.vF + 32; vB2 = r.vF + 40; vP = r.vF + 64; ep = r.vT
    sE1, sE2, sE3, sE4, sE5 = M['sA1'], M['sA2'], M['sA3'], M['sA4'], M['sI']
    A.nop(8)
    A(f"""
    s_lshl_b32 s{sE1}, s{sDt}, 4
    s_add_u32 s{sE1}, s{sE1}, s{sSt}
    s_lshl_b32 s{sE1}, s{sE1}, 1
    s_add_u32 s{sE2}, s{sE1}, s{sKh}
    s_xor_b32 s{sE3}, s{sE2}, 1
    s_lshl_b32 s{sE2}, s{sE2}, 2
    s_add_u32 s{sE2}, s{sE2}, s{sW}
    s_lshl_b32 s{sE3}, s{sE3}, 2
    s_add_u32 s{sE3}, s{sE3}, s{sW}
    s_lshl_b32 s{sE1}, s{sE2}, 13
    s_add_u32 s{sE1}, s{sE1}, {WS['PX']}
    s_add_u32 s{sE4}, s{sE1}, 4096
    s_cmp_eq_u32 s{sKh}, 0
    s_cbranch_scc0 {name}_k1s
    """)
    def send(js):
        for jj, j in enumerate(js):
            for i in range(2):
                b = jj*2 + i
                A(f"buffer_store_dwordx4 {a(acc(i,j),4)}, v{r.vL16}, {ws}, s{sE1 if b < 4 else sE4} offen offset:{(b%4)*1024} sc1")
    send([4,5,6,7]); A(f"s_branch {name}_sent"); A.label(f"{name}_k1s"); send([0,1,2,3]); A.label(f"{name}_sent")
    A(f"""
    v_lshlrev_b32 v{t2}, 4, v{r.vG}
    s_lshl_b32 s{s1}, s{sDt}, 2
    s_add_u32 s{s1}, s{s1}, s{sW}
    s_lshl_b32 s{s3}, s{s1}, 7
    s_add_u32 s{s3}, s{s3}, {WS['MOD'] + 5*4096}
    buffer_load_dwordx4 {v(vGb,4)}, v{t2}, {ws}, s{s3} offen sc1
    buffer_load_dwordx4 {v(vGb+4,4)}, v{t2}, {ws}, s{s3} offen offset:64 sc1
    s_lshl_b32 s{s2}, s{sSt}, 3
    s_lshl_b32 s{s4}, s{sKh}, 2
    s_add_u32 s{s2}, s{s2}, s{s4}
    v_lshlrev_b32 v{t1}, 1, v{r.vCol}
    s_lshl_b32 s{s3}, s{s2}, 5
    """)
    for jj in range(4):
        A(f"buffer_load_ushort v{vB2+jj}, v{t1}, {aux}, s{s3} offen offset:{jj*32}")
    A(f"""
    s_lshl_b32 s{s4}, s{s2}, 15
    s_lshl_b32 s{s3}, s{s1}, 10
    s_add_u32 s{s4}, s{s4}, s{s3}
    s_add_u32 s{s4}, s{s4}, {WS['X1']}
    """)
    for jj in range(4):
        A(f"s_add_u32 s{s3}, s{s4}, {jj*32768}")
        A(f"buffer_load_dwordx4 {v(vX+4*jj,4)}, v{r.vL16}, {ws}, s{s3} offen sc1")
    A(f"""
    v_lshlrev_b32 v{t1}, 11, v{r.vCol}
    v_and_b32 v{t3}, 1, v{r.vG}
    v_lshl_add_u32 v{t1}, v{t3}, 5, v{t1}
    v_lshrrev_b32 v{t3}, 1, v{r.vG}
    v_lshl_add_u32 v{t1}, v{t3}, 4, v{t1}
    s_lshl_b32 s{s2}, s{s2}, 15
    s_lshl_b32 s{s3}, s{s1}, 6
    s_add_u32 s{s2}, s{s2}, s{s3}
    s_waitcnt vmcnt(0)
    s_lshl_b32 s{sE2}, s{sE2}, 4
    s_add_u32 s{sE2}, s{sE2}, {FL_G6}
    v_mov_b32 v{vP}, 1
    v_mov_b32 v{vP+1}, 0
    s_mov_b64 s[{sEx}:{sEx+1}], exec
    s_mov_b64 exec, 1
    buffer_store_dword v{vP}, v{vP+1}, {ws}, s{sE2} offen sc1
    s_mov_b64 exec, s[{sEx}:{sEx+1}]
    s_lshl_b32 s{sE1}, s{sE3}, 13
    s_add_u32 s{sE1}, s{sE1}, {WS['PX']}
    s_add_u32 s{sE4}, s{sE1}, 4096
    s_lshl_b32 s{sE3}, s{sE3}, 4
    s_add_u32 s{sE3}, s{sE3}, {FL_G6}
    {name}_wp:
    buffer_load_dword v{vP}, v{vP+1}, {ws}, s{sE3} offen sc1
    s_waitcnt vmcnt(0)
    v_readfirstlane_b32 s{sE2}, v{vP}
    s_cmp_eq_u32 s{sE2}, 1
    s_cbranch_scc1 {name}_wpok
    s_sub_u32 s{sBud}, s{sBud}, 1
    s_cbranch_scc1 {wname}_exit
    s_sleep 1
    s_branch {name}_wp
    {name}_wpok:
    """)
    for b in range(8):
        A(f"buffer_load_dwordx4 {v(vP+4*b,4)}, v{r.vL16}, {ws}, s{sE1 if b < 4 else sE4} offen offset:{(b%4)*1024} sc1")
    for jj in range(4): A(f"v_lshlrev_b32 v{vB2+jj}, 16, v{vB2+jj}")
    A("s_waitcnt vmcnt(0)")
    A(f"s_cmp_eq_u32 s{sKh}, 0")
    A(f"s_cbranch_scc0 {name}_k1f")
    def fin(js):
        for jj, j in enumerate(js):
            A(f"s_add_u32 s{s3}, s{s2}, {jj*16*2048}")
            e = ep + (jj % 4)*8
            for i in range(2):
                for q in range(4): A(f"v_accvgpr_read_b32 v{e+4*i+q}, a{acc(i,j)+q}")
            for i in range(2):
                for q in range(4): A(f"v_add_f32 v{e+4*i+q}, v{e+4*i+q}, v{vP+(jj*2+i)*4+q}")
            for q in range(8): A(f"v_add_f32 v{e+q}, v{e+q}, v{vB2+jj}")
            xr = vX + 4*jj
            for q in range(4):
                A(f"v_lshlrev_b32 v{t3}, 16, v{xr+q}")
                A(f"v_fma_f32 v{e+2*q}, v{e+2*q}, v{vGb+2*q}, v{t3}")
                A(f"v_and_b32 v{t3}, 0xffff0000, v{xr+q}")
                A(f"v_fma_f32 v{e+2*q+1}, v{e+2*q+1}, v{vGb+2*q+1}, v{t3}")
            for q in range(4): A(f"v_cvt_pk_bf16_f32 v{e+q}, v{e+2*q}, v{e+2*q+1}")
            A(f"""
            s_nop 1
            v_permlane16_swap_b32 v{e}, v{e+2}
            v_permlane16_swap_b32 v{e+1}, v{e+3}
            s_nop 1
            buffer_store_dwordx4 {v(e,4)}, v{t1}, s[{sO}:{sO+3}], s{s3} offen
            """)
    fin([0,1,2,3]); A(f"s_branch {wname}_exit"); A.label(f"{name}_k1f"); fin([4,5,6,7])
    A(f"s_branch {wname}_exit")
```

```python
from asmlib import *
import struct, math
def f2u(x): return struct.unpack('<I', struct.pack('<f', x))[0]
DBG_INIT, DBG_MOD, DBG_HRDY, DBG_QHEAD = 9*4, 10*4, 16*4, 32*4
dbg = 's[16:19]'

def srd(A, s, lo, hi, size):
    A(f"s_mov_b32 s{s}, s{lo}"); A(f"s_mov_b32 s{s+1}, s{hi}"); A(f"s_mov_b32 s{s+2}, {size}"); A(f"s_mov_b32 s{s+3}, 0x20000")

def wait_dbg(A, name, off, target, lbl, sBud, sT, sreg_off=None, sleep=2):
    A(f"v_mov_b32 v5, {off}" if sreg_off is None else f"v_mov_b32 v5, s{sreg_off}")
    A(f"""
    {lbl}:
    buffer_load_dword v6, v5, {dbg}, 0 offen sc1
    s_waitcnt vmcnt(0)
    v_readfirstlane_b32 s{sT}, v6
    s_cmp_ge_u32 s{sT}, {target}
    s_cbranch_scc1 {lbl}_ok
    s_sub_u32 s{sBud}, s{sBud}, 1
    s_cbranch_scc1 {name}_exit
    s_sleep {sleep}
    s_branch {lbl}
    {lbl}_ok:
    """)

def signal_dbg(A, name, off, sW, sEx, lbl, sreg_off=None):
    A(f"""
    s_waitcnt vmcnt(0)
    s_barrier
    s_cmp_lg_u32 s{sW}, 0
    s_cbranch_scc1 {lbl}
    s_mov_b64 s[{sEx}:{sEx+1}], exec
    s_mov_b64 exec, 1
    """)
    A(f"v_mov_b32 v5, {off}" if sreg_off is None else f"v_mov_b32 v5, s{sreg_off}")
    A(f"""
    v_mov_b32 v6, 1
    buffer_atomic_add v6, v5, {dbg}, 0 offen
    s_mov_b64 exec, s[{sEx}:{sEx+1}]
    {lbl}:
    """)

def mod_task(A, name, ws, sW, sB, sEx, sBud):
    A(f"""
    s_load_dwordx2 s[44:45], s[0:1], {KA['c']}
    s_load_dwordx2 s[46:47], s[0:1], {KA['wmod']}
    s_waitcnt lgkmcnt(0)
    """)
    srd(A, 48, 44, 45, 2048); srd(A, 52, 46, 47, 1024*6144*2)
    A(f"""
    v_and_b32 v8, 7, v0
    v_lshrrev_b32 v9, 3, v0
    v_mul_u32_u24 v10, 12288, v9
    v_lshl_add_u32 v10, v8, 4, v10
    s_lshl_b32 s56, s{sB}, 7
    v_add_u32 v10, s56, v10
    v_lshlrev_b32 v11, 3, v0
    buffer_load_dwordx2 v[12:13], v11, s[48:51], 0 offen
    """)
    for row in range(32):
        A(f"s_mov_b32 s57, {row*32*12288}")
        A(f"buffer_load_dwordx4 v[{64+4*row}:{67+4*row}], v10, s[52:55], s57 offen")
    A(f"""
    s_waitcnt vmcnt(32)
    v_lshlrev_b32 v14, 16, v12
    v_and_b32 v15, 0xffff0000, v12
    v_lshlrev_b32 v16, 16, v13
    v_and_b32 v17, 0xffff0000, v13
    s_mov_b32 s56, {hex(f2u(-math.log2(math.e)))}
    """)
    for r in range(4): A(f"v_mul_f32 v{18+r}, s56, v{14+r}")
    for r in range(4): A(f"v_exp_f32 v{18+r}, v{18+r}")
    A("s_nop 0")
    for r in range(4): A(f"v_add_f32 v{18+r}, 1.0, v{18+r}")
    for r in range(4): A(f"v_rcp_f32 v{18+r}, v{18+r}")
    A("s_nop 0")
    for r in range(4): A(f"v_mul_f32 v{18+r}, v{18+r}, v{14+r}")
    A(f"""
    v_cvt_pk_bf16_f32 v22, v18, v19
    v_cvt_pk_bf16_f32 v23, v20, v21
    v_lshlrev_b32 v18, 16, v22
    v_and_b32 v19, 0xffff0000, v22
    v_lshlrev_b32 v20, 16, v23
    v_and_b32 v21, 0xffff0000, v23
    v_lshlrev_b32 v11, 4, v0
    ds_write_b128 v11, v[18:21]
    s_waitcnt lgkmcnt(0)
    s_barrier
    v_lshlrev_b32 v11, 2, v9
    """)
    for i in range(32):
        A(f"ds_read_b32 v{24+i}, v11 offset:{i*128}")
        if i % 8 == 7: A("s_waitcnt lgkmcnt(0)")
    for r in range(8): A(f"v_mov_b32 v{56+r}, 0")
    for i in range(32):
        if i % 8 == 0: A(f"s_waitcnt vmcnt({24 - i})")
        for q in range(4):
            A(f"v_lshlrev_b32 v22, 16, v{64+4*i+q}")
            A(f"v_and_b32 v23, 0xffff0000, v{64+4*i+q}")
            A(f"v_fmac_f32 v{56+2*q}, v22, v{24+i}")
            A(f"v_fmac_f32 v{57+2*q}, v23, v{24+i}")
    A(f"""
    v_lshlrev_b32 v11, 8, v9
    v_lshl_add_u32 v11, v8, 5, v11
    ds_write_b128 v11, v[56:59] offset:4096
    ds_write_b128 v11, v[60:63] offset:4112
    s_waitcnt lgkmcnt(0)
    s_barrier
    s_cmp_lg_u32 s{sW}, 0
    s_cbranch_scc1 {name}_mdone
    v_lshlrev_b32 v11, 2, v0
    """)
    for i in range(32):
        A(f"ds_read_b32 v{64+i}, v11 offset:{4096+i*256}")
        if i % 8 == 7: A("s_waitcnt lgkmcnt(0)")
    for st in (16, 8, 4, 2, 1):
        for i in range(st): A(f"v_add_f32 v{64+i}, v{64+i}, v{64+i+st}")
    A(f"""
    v_cvt_pk_bf16_f32 v33, v64, v64
    v_lshlrev_b32 v33, 16, v33
    v_add_f32 v34, 1.0, v33
    v_cvt_pk_bf16_f32 v34, v34, v34
    v_lshlrev_b32 v34, 16, v34
    s_lshr_b32 s56, s{sB}, 4
    s_cmp_eq_u32 s56, 1
    s_cselect_b32 s57, 1, 0
    s_cmp_eq_u32 s56, 4
    s_cselect_b32 s57, 1, s57
    s_cmp_eq_u32 s57, 1
    s_cbranch_scc0 {name}_nop1
    v_mov_b32 v33, v34
    {name}_nop1:
    s_lshl_b32 s56, s{sB}, 8
    s_add_u32 s56, s56, {WS['MOD']}
    buffer_store_dword v33, v11, {ws}, s56 offen sc1
    s_cmp_ge_u32 s{sB}, 32
    s_cbranch_scc1 {name}_mdone
    s_waitcnt vmcnt(0)
    s_mov_b64 s[{sEx}:{sEx+1}], exec
    s_mov_b64 exec, 1
    v_mov_b32 v5, {DBG_MOD}
    v_mov_b32 v6, 1
    buffer_atomic_add v6, v5, {dbg}, 0 offen
    s_mov_b64 exec, s[{sEx}:{sEx+1}]
    {name}_mdone:
    s_barrier
    """)

def ln1_task(A, name, ws, sW, sR, sEx, sBud):
    vX = 32; vL = 96; vM = 128
    A(f"""
    s_load_dwordx2 s[44:45], s[0:1], {KA['x']}
    s_waitcnt lgkmcnt(0)
    """)
    srd(A, 48, 44, 45, 2048*1024*2)
    A(f"""
    v_lshlrev_b32 v8, 11, v2
    v_lshl_add_u32 v8, v3, 3, v8
    s_lshl_b32 s56, s{sR}, 15
    s_lshl_b32 s57, s{sW}, 9
    s_add_u32 s56, s56, s57
    """)
    for kb in range(8):
        A(f"buffer_load_dwordx2 v[{vL+4*kb}:{vL+4*kb+1}], v8, s[48:51], s56 offen offset:{kb*64}")
        A(f"buffer_load_dwordx2 v[{vL+4*kb+2}:{vL+4*kb+3}], v8, s[48:51], s56 offen offset:{kb*64+32}")
    A(f"""
    v_lshlrev_b32 v7, 4, v3
    s_lshl_b32 s57, s{sW}, 10
    s_add_u32 s58, s57, {WS['MOD']}
    s_add_u32 s59, s57, {WS['MOD'] + 4096}
    s_waitcnt vmcnt(0)
    """)
    for q in range(32):
        A(f"v_lshlrev_b32 v{vX+2*q}, 16, v{vL+q}")
        A(f"v_and_b32 v{vX+2*q+1}, 0xffff0000, v{vL+q}")
    def reduce_all(reg, ldsoff):
        A(f"""
        v_mov_b32 v9, v{reg}
        s_nop 1
        v_permlane16_swap_b32 v{reg}, v9
        s_nop 1
        v_add_f32 v{reg}, v{reg}, v9
        v_mov_b32 v9, v{reg}
        s_nop 1
        v_permlane32_swap_b32 v{reg}, v9
        s_nop 1
        v_add_f32 v{reg}, v{reg}, v9
        v_lshlrev_b32 v10, 2, v2
        s_lshl_b32 s57, s{sW}, 6
        v_add_u32 v11, s57, v10
        ds_write_b32 v11, v{reg} offset:{ldsoff}
        s_waitcnt lgkmcnt(0)
        s_barrier
        ds_read_b32 v12, v10 offset:{ldsoff}
        ds_read_b32 v13, v10 offset:{ldsoff+64}
        ds_read_b32 v14, v10 offset:{ldsoff+128}
        ds_read_b32 v15, v10 offset:{ldsoff+192}
        s_waitcnt lgkmcnt(0)
        v_add_f32 v12, v12, v13
        v_add_f32 v14, v14, v15
        v_add_f32 v{reg}, v12, v14
        """)
    base = 16384
    A(f"v_add_f32 v18, v{vX}, v{vX+1}"); A(f"v_add_f32 v16, v{vX+2}, v{vX+3}"); A(f"v_add_f32 v17, v{vX+4}, v{vX+5}"); A(f"v_add_f32 v19, v{vX+6}, v{vX+7}")
    for q in range(8, 64, 4):
        A(f"v_add_f32 v18, v18, v{vX+q}"); A(f"v_add_f32 v16, v16, v{vX+q+1}"); A(f"v_add_f32 v17, v17, v{vX+q+2}"); A(f"v_add_f32 v19, v19, v{vX+q+3}")
    A("v_add_f32 v18, v18, v16"); A("v_add_f32 v17, v17, v19"); A("v_add_f32 v18, v18, v17")
    reduce_all(18, base)
    A(f"v_mul_f32 v16, {hex(f2u(1/1024))}, v18")
    for q in range(64): A(f"v_sub_f32 v{vX+q}, v{vX+q}, v16")
    A(f"v_mul_f32 v18, v{vX}, v{vX}"); A(f"v_mul_f32 v17, v{vX+1}, v{vX+1}")
    for q in range(2, 64, 2):
        A(f"v_fmac_f32 v18, v{vX+q}, v{vX+q}"); A(f"v_fmac_f32 v17, v{vX+q+1}, v{vX+q+1}")
    A("v_add_f32 v18, v18, v17")
    reduce_all(18, base + 256)
    A(f"""
    v_mov_b32 v17, {hex(f2u(1e-5))}
    v_fmac_f32 v17, {hex(f2u(1/1024))}, v18
    v_rsq_f32 v17, v17
    s_nop 0
    """)
    for q in range(64): A(f"v_mul_f32 v{vX+q}, v{vX+q}, v17")
    wait_dbg(A, name, DBG_MOD, 32, f"{name}_wmod", sBud, 57)
    for kb in range(8):
        m = vM + kb*16
        A(f"buffer_load_dwordx4 v[{m}:{m+3}], v7, {ws}, s59 offen offset:{kb*128} sc1")
        A(f"buffer_load_dwordx4 v[{m+4}:{m+7}], v7, {ws}, s59 offen offset:{kb*128+64} sc1")
        A(f"buffer_load_dwordx4 v[{m+8}:{m+11}], v7, {ws}, s58 offen offset:{kb*128} sc1")
        A(f"buffer_load_dwordx4 v[{m+12}:{m+15}], v7, {ws}, s58 offen offset:{kb*128+64} sc1")
    A(f"""
    s_lshl_b32 s58, s{sR}, 15
    s_lshl_b32 s57, s{sW}, 13
    s_add_u32 s58, s58, s57
    s_add_u32 s58, s58, {WS['H']}
    s_add_u32 s59, s58, 4096
    s_waitcnt vmcnt(0)
    """)
    for kb in range(8):
        m = vM + kb*16; x0 = vX + 8*kb
        for e in range(8): A(f"v_fma_f32 v{x0+e}, v{x0+e}, v{m+e}, v{m+8+e}")
        o = 20 + (kb % 2)*4
        for q in range(4): A(f"v_cvt_pk_bf16_f32 v{o+q}, v{x0+2*q}, v{x0+2*q+1}")
        A(f"buffer_store_dwordx4 v[{o}:{o+3}], v4, {ws}, s{58 if kb < 4 else 59} offen offset:{(kb%4)*1024} sc1")
    A(f"""
    s_lshr_b32 s57, s{sR}, 3
    s_lshl_b32 s57, s57, 2
    s_add_u32 s57, s57, {DBG_HRDY}
    """)
    signal_dbg(A, name, None, sW, sEx, f"{name}_hs", sreg_off=57)

def init_stores(A, ws, sIdx, t1, t2):
    ring = WS['RING_END'] - WS['RA']
    assert ring % (128*4096) == 0 or True
    per = (ring + 128*4096 - 1) // (128*4096)
    A(f"""
    v_lshlrev_b32 v27, 4, v0
    v_mov_b32 v28, 0
    v_mov_b32 v29, 0
    v_mov_b32 v30, 0
    v_mov_b32 v31, 0
    s_lshl_b32 s{t1}, s{sIdx}, 10
    s_add_u32 s{t1}, s{t1}, {WS['FLAGS']}
    v_cmp_gt_u32 vcc, 64, v0
    s_and_saveexec_b64 s[{t2}:{t2+1}], vcc
    s_cbranch_execz L_initz_SFX
    buffer_store_dwordx4 v[28:31], v27, {ws}, s{t1} offen sc1
    L_initz_SFX:
    s_mov_b64 exec, s[{t2}:{t2+1}]
    s_nop 1
    v_mov_b32 v28, -1
    v_mov_b32 v29, -1
    v_mov_b32 v30, -1
    v_mov_b32 v31, -1
    s_mul_i32 s{t1}, s{sIdx}, 18432
    s_add_u32 s{t1}, s{t1}, {WS['RA']}
    """)
    assert ring == 128*18432
    for i in range(4):
        A(f"buffer_store_dwordx4 v[28:31], v27, {ws}, s{t1} offen sc1")
        A(f"s_add_u32 s{t1}, s{t1}, 4096")
    A(f"""
    v_cmp_gt_u32 vcc, 128, v0
    s_and_saveexec_b64 s[{t2}:{t2+1}], vcc
    s_cbranch_execz L_inity_SFX
    buffer_store_dwordx4 v[28:31], v27, {ws}, s{t1} offen sc1
    L_inity_SFX:
    s_mov_b64 exec, s[{t2}:{t2+1}]
    """)
    return per
```

```python
import sys; sys.path.insert(0,'gen')
from asmlib import *
from build import *
import mega
from mega import gen_mega, mega_desc
from kern_pre2 import gen_pre2
from kern_fv import gen_g5, gen_g6, gen_ln2t

def build_full(path, cdelay=10, timing=False, stamp_step=21, ddelay=0, pregrid=256, nwork=11, g5a=False, force_fb=False, merge=False, ln_in=True, fuse=True):
    mega.FUSE_TAIL = fuse
    if fuse: ln_in = True
    mega.LN_IN = ln_in
    mega.MERGE_PRE = merge
    mega.NWORK = nwork; mega.G5A = g5a; mega.FORCE_FB = 33 if force_fb else 32
    ks = []
    if not merge:
        t,d = gen_pre2(lim=pregrid); ks.append(('pre_kernel', t, d))
    ks.append(('mega_kernel', gen_mega(cdelay=cdelay, timing=timing, stamp_step=stamp_step, ddelay=ddelay), mega_desc()))
    if not ln_in:
        t,d = (gen_ln2t(seg0=48, nseg=16) if g5a else gen_ln2t()); ks.append(('ln2_kernel', t, d))
    if not fuse:
        t,d = gen_g5(tail=g5a); ks.append(('g5_kernel', t, d))
        t,d = gen_g6(); ks.append(('g6_kernel', t, d))
    out = HEADER
    L = [('pre_kernel',pregrid,256,16384), ('mega_kernel',256,256,131072+256),
         ('ln2_kernel',16 if g5a else 64,512,68096), ('g5_kernel',224,256,131072), ('g6_kernel',256,256,131072)]
    if fuse: L = [x for x in L if x[0] not in ('g5_kernel', 'g6_kernel')]
    if ln_in: L = [x for x in L if x[0] != 'ln2_kernel']
    if merge: L = L[1:]
    out = assemble_file(L, ks, path)
    print('size', len(out))
if __name__ == '__main__':
    build_full(sys.argv[1] if len(sys.argv) > 1 else 'full3.s')
```

```python
from asmlib import *
import struct, math
import mega_pre

SENT_BUDGET = 2000000

def interleave(A, main, fill, start=0, every=1):
    fill = list(fill)
    for idx, m in enumerate(main):
        A(m)
        if idx >= start and (idx - start) % every == 0 and fill:
            A(fill.pop(0))
    for f in fill:
        A(f)

def gen_chain(name='chain_kernel', nsteps=64, timing=False, stamp_step=11, full='', cdelay=8, ldf='sc1', ddelay=0, adelay=0, embedded=False, fallback=False, kvpos='early', done_label=None, kxp1=False, l2pf=True, cbf=True, merged=False, predelay=True):
    A = Asm()
    if not embedded: A.raw(kernel_header(name))
    kvf = ' sc1' if embedded else ''
    intra = ' sc1' if fallback else ''
    sWS = 8; sT = 12; sDBG = 16
    sX, sC, sW, sStep, sBud = 20, 21, 22, 23, 24
    sOffD, sOffA, sOffC, sOffKx, sOffVx, sTmp, sTmp2 = 25, 26, 27, 28, 30, 32, 33
    sOffVx1 = 31
    sOffKx1 = 29
    sOffAr, sOffDr, sOffCr, sOffKVM = 34, 35, 36, 37
    sCexp = 38; sH = 39
    sPq, sPk, sPv, sPo, sPm = 40, 42, 44, 46, 48
    sExecSave = 50
    sHL, sJ = 52, 53
    sT0 = 54
    sMask = 58
    sC1, sC2, sC3, sCst, sOffDn = 59, 60, 61, 62, 63
    sBaseA, sBaseD, sBaseC, sBaseCo = 88, 89, 90, 91
    sSt = 64
    sFlg, sKvmF = 95, 96
    R = RegAlloc(0, 256)
    R.alloc('tid')
    vLane = R.alloc('lane'); vCol = R.alloc('col'); vG = R.alloc('g')
    vT1 = R.alloc('t1'); vT2 = R.alloc('t2'); vT3 = R.alloc('t3')
    vOffD = R.alloc('offD'); vOffAq = R.alloc('offAq'); vOffAv = R.alloc('offAv'); vOffAst = R.alloc('offAst')
    vOffC = R.alloc('offC'); vOffDst = R.alloc('offDst'); vL16 = R.alloc('l16')
    vLds1w = R.alloc('lds1w'); vLds1r = R.alloc('lds1r'); vLds3w = R.alloc('lds3w'); vLds3r = R.alloc('lds3r')
    vSent = R.alloc('sent', 4, 4)
    vM = R.alloc('M', 16, 4); vRM = R.alloc('RM', 16, 4)
    vAcc = R.alloc('acc', 48, 4)
    vRd = R.alloc('rd', 32, 4)
    vQ = R.alloc('q', 8, 4); vK = R.alloc('k', 8, 4); vVm = R.alloc('vm', 8, 4)
    vRQ = vRM
    vOB = vM
    vKx = R.alloc('Kx', 32, 4); vVx = R.alloc('Vx', 32, 4)
    vSm = R.alloc('Smm', 4, 4); vS1 = vRd; vS2 = vRd + 4
    vSM = R.alloc('SM', 4, 4); vTT = R.alloc('TT', 4, 4)
    vBX = R.alloc('BX', 4, 4); vPM = R.alloc('PM', 2, 2); vPMh = R.alloc('PMh', 2, 2); vPMc = R.alloc('PMc', 2, 2)
    vPfo = R.alloc('pfo'); vFlag = R.alloc('flag'); vZero = R.alloc('zero'); vMax = R.alloc('max'); vMx2 = R.alloc('mx2'); vSum = R.alloc('sum'); vSu2 = R.alloc('su2')
    vO = vAcc; vE = vAcc + 32
    print('chain vgprs used', R.next)
    aW1 = 0; aWo = 192
    def W1(t, ks): return a(aW1 + (t * 8 + ks) * 4, 4)
    def Wo(tn, u): return a(aWo + (tn * 4 + u) * 4, 4)
    def acc(t): return vAcc + t * 4
    LDS_P1 = 0; LDS_P3 = 12288
    ws = f"s[{sWS}:{sWS+3}]"

    if embedded:
        A(f"""
        s_load_dwordx2 s[{sPm}:{sPm+1}], s[0:1], {KA['mem0']}
        s_load_dwordx2 s[{sPq}:{sPq+1}], s[0:1], {KA['Wq']}
        s_load_dwordx2 s[{sPk}:{sPk+1}], s[0:1], {KA['Wk']}
        s_load_dwordx2 s[{sPv}:{sPv+1}], s[0:1], {KA['Wv']}
        s_load_dwordx2 s[{sPo}:{sPo+1}], s[0:1], {KA['Wo']}
        v_and_b32 v{vLane}, 63, v0
        v_and_b32 v{vCol}, 15, v{vLane}
        v_lshrrev_b32 v{vG}, 4, v{vLane}
        v_lshlrev_b32 v{vL16}, 4, v{vLane}
        s_lshr_b32 s{sHL}, s{sC}, 2
        s_and_b32 s{sJ}, s{sC}, 3
        s_waitcnt lgkmcnt(0)
        """)
        if merged:
            A(f"s_lshl_b32 s{sTmp}, s{sX}, 4"); A(f"s_add_u32 s{sTmp}, s{sTmp}, s{sC}")
            B = Asm(); mega_pre.init_stores(B, f"s[{sWS}:{sWS+3}]", sTmp, sTmp2, sExecSave)
            A.raw(B.text().replace('SFX', name))
            if predelay:
                A(f"s_mov_b32 s{sBud}, {SENT_BUDGET}")
                mega_pre.wait_dbg(A, name, mega_pre.DBG_MOD, 32, f"{name}_wmd", sBud, sTmp, sleep=8, vt=(vM, vM+1))
    else:
        A(f"""
        s_cmp_ge_u32 s2, 256
        s_cbranch_scc1 {name}_exit
        s_load_dwordx2 s[{sPm}:{sPm+1}], s[0:1], {KA['mem0']}
        s_load_dwordx2 s[{sPq}:{sPq+1}], s[0:1], {KA['Wq']}
        s_load_dwordx2 s[{sPk}:{sPk+1}], s[0:1], {KA['Wk']}
        s_load_dwordx2 s[{sPv}:{sPv+1}], s[0:1], {KA['Wv']}
        s_load_dwordx2 s[{sPo}:{sPo+1}], s[0:1], {KA['Wo']}
        s_load_dwordx2 s[4:5], s[0:1], {KA['dbg']}
        s_load_dwordx2 s[6:7], s[0:1], {KA['ws']}
        s_getreg_b32 s{sX}, hwreg(HW_REG_XCC_ID)
        s_and_b32 s{sX}, s{sX}, 7
        v_and_b32 v{vLane}, 63, v0
        v_lshrrev_b32 v{vT1}, 6, v0
        s_nop 0
        v_readfirstlane_b32 s{sW}, v{vT1}
        v_and_b32 v{vCol}, 15, v{vLane}
        v_lshrrev_b32 v{vG}, 4, v{vLane}
        v_lshlrev_b32 v{vL16}, 4, v{vLane}
        s_waitcnt lgkmcnt(0)
        s_mov_b32 s{sWS}, s6
        s_mov_b32 s{sWS+1}, s7
        s_mov_b32 s{sWS+2}, {WS_SIZE}
        s_mov_b32 s{sWS+3}, 0x20000
        s_mov_b32 s{sDBG}, s4
        s_mov_b32 s{sDBG+1}, s5
        s_mov_b32 s{sDBG+2}, 256
        s_mov_b32 s{sDBG+3}, 0x20000
        s_cmp_lg_u32 s{sW}, 0
        s_cbranch_scc1 {name}_tk
        v_mov_b32 v{vT1}, 1
        s_lshl_b32 s{sTmp}, s{sX}, 2
        v_mov_b32 v{vT2}, s{sTmp}
        s_mov_b64 s[{sExecSave}:{sExecSave+1}], exec
        s_mov_b64 exec, 1
        buffer_atomic_add v{vT1}, v{vT2}, s[{sDBG}:{sDBG+3}], 0 offen sc0
        s_waitcnt vmcnt(0)
        v_mov_b32 v{vT2}, 0
        ds_write_b32 v{vT2}, v{vT1}
        s_waitcnt lgkmcnt(0)
        s_mov_b64 exec, s[{sExecSave}:{sExecSave+1}]
        {name}_tk:
        s_barrier
        v_mov_b32 v{vT2}, 0
        ds_read_b32 v{vT1}, v{vT2}
        s_waitcnt lgkmcnt(0)
        s_nop 0
        v_readfirstlane_b32 s{sC}, v{vT1}
        s_nop 3
        s_barrier
        s_cmp_ge_u32 s{sC}, 16
        s_cbranch_scc1 {name}_exit
        s_lshr_b32 s{sHL}, s{sC}, 2
        s_and_b32 s{sJ}, s{sC}, 3
        """)

    if timing:
        A(f"s_memrealtime s[{sT0}:{sT0+1}]")
    A(f"""
    s_lshl_b32 s{sH}, s{sX}, 2
    s_add_u32 s{sH}, s{sH}, s{sHL}
    s_lshl_b32 s{sTmp}, s{sH}, 8
    s_lshl_b32 s{sTmp2}, s{sJ}, 6
    s_add_u32 s{sTmp}, s{sTmp}, s{sTmp2}
    s_lshl_b32 s{sTmp2}, s{sW}, 21
    s_add_u32 s{sTmp}, s{sTmp}, s{sTmp2}
    v_lshrrev_b32 v{vT1}, 2, v{vLane}
    v_lshlrev_b32 v{vT1}, 13, v{vT1}
    v_and_b32 v{vT2}, 3, v{vLane}
    v_lshlrev_b32 v{vT2}, 4, v{vT2}
    v_add3_u32 v{vT1}, v{vT1}, v{vT2}, s{sTmp}
    s_mov_b32 s{sT+2}, {1024*4096*2}
    s_mov_b32 s{sT+3}, 0x20000
    v_lshrrev_b32 v{vT2}, 2, v{vCol}
    v_lshl_add_u32 v{vT2}, v{vG}, 3, v{vT2}
    v_lshlrev_b32 v{vT2}, 6, v{vT2}
    v_and_b32 v{vT3}, 3, v{vCol}
    v_lshl_add_u32 v{vT2}, v{vT3}, 3, v{vT2}
    s_lshl_b32 s{sTmp2}, s{sW}, 15
    v_add_u32 v{vT2}, s{sTmp2}, v{vT2}
    """)
    def dma_w1(ptr, ldsoff):
        A(f"s_mov_b32 s{sT}, s{ptr}")
        A(f"s_mov_b32 s{sT+1}, s{ptr+1}")
        for n in range(16):
            A(f"""
            s_lshl_b32 s{sTmp2}, s{sW}, 15
            s_add_u32 m0, s{sTmp2}, {ldsoff + n*1024}
            s_mov_b32 s{sTmp}, {n*16*8192}
            buffer_load_dwordx4 v{vT1}, s[{sT}:{sT+3}], s{sTmp} offen lds
            """)
    def tr_w1(tile0, ldsoff):
        for tt in range(2):
            for ks in range(8):
                for hh in range(2):
                    off = ldsoff + (32*ks + 4*hh)*64 + tt*32
                    reg = aW1 + ((tile0+tt)*8 + ks)*4 + 2*hh
                    A(f"ds_read_b64_tr_b16 a[{reg}:{reg+1}], v{vT2} offset:{off}")
            A("s_waitcnt lgkmcnt(0)")
    dma_w1(sPq, 0)
    dma_w1(sPk, 16384)
    A("s_waitcnt vmcnt(0)")
    if merged:
        A(f"v_mov_b32 v{vM+1}, v{vT2}")
        mega_pre.signal_dbg(A, name, mega_pre.DBG_RING, sW, sExecSave, f"{name}_sig")
        A(f"v_mov_b32 v{vT2}, v{vM+1}")
    tr_w1(0, 0)
    tr_w1(2, 16384)
    dma_w1(sPv, 0)
    A(f"""
    s_lshl_b32 s{sTmp}, s{sX}, 2
    s_add_u32 s{sTmp}, s{sTmp}, s{sW}
    s_lshl_b32 s{sTmp}, s{sTmp}, 18
    s_lshl_b32 s{sTmp2}, s{sC}, 7
    s_add_u32 s{sTmp}, s{sTmp}, s{sTmp2}
    v_lshrrev_b32 v{vT3}, 3, v{vLane}
    v_lshlrev_b32 v{vT3}, 11, v{vT3}
    v_and_b32 v{vOffD}, 7, v{vLane}
    v_lshlrev_b32 v{vOffD}, 4, v{vOffD}
    v_add3_u32 v{vT3}, v{vT3}, v{vOffD}, s{sTmp}
    s_mov_b32 s{sT}, s{sPo}
    s_mov_b32 s{sT+1}, s{sPo+1}
    s_mov_b32 s{sT+2}, {4096*1024*2}
    """)
    for n in range(16):
        A(f"""
        s_lshl_b32 s{sTmp2}, s{sW}, 15
        s_add_u32 m0, s{sTmp2}, {16384 + n*1024}
        s_mov_b32 s{sTmp}, {n*8*2048}
        buffer_load_dwordx4 v{vT3}, s[{sT}:{sT+3}], s{sTmp} offen lds
        """)
    A("s_waitcnt vmcnt(0)")
    tr_w1(4, 0)
    A(f"""
    v_lshrrev_b32 v{vT2}, 2, v{vCol}
    v_lshl_add_u32 v{vT2}, v{vG}, 2, v{vT2}
    v_lshlrev_b32 v{vT2}, 7, v{vT2}
    v_and_b32 v{vT3}, 3, v{vCol}
    v_lshl_add_u32 v{vT2}, v{vT3}, 4, v{vT2}
    s_lshl_b32 s{sTmp2}, s{sW}, 15
    v_add_u32 v{vT2}, s{sTmp2}, v{vT2}
    """)
    for tn in range(4):
        for u in range(4):
            for hh in range(2):
                off = 16384 + (32*u + 16*hh)*128 + (tn & 1)*64 + (tn >> 1)*8
                reg = aWo + (tn*4+u)*4 + 2*hh
                A(f"ds_read_b64_tr_b16 a[{reg}:{reg+1}], v{vT2} offset:{off}")
        A("s_waitcnt lgkmcnt(0)")
    A(f"""
    v_and_b32 v{vT1}, 7, v{vCol}
    v_lshrrev_b32 v{vT2}, 3, v{vCol}
    v_lshlrev_b32 v{vT3}, 11, v{vT1}
    v_lshl_add_u32 v{vT3}, v{vT2}, 6, v{vT3}
    v_lshl_add_u32 v{vT3}, v{vG}, 4, v{vT3}
    s_lshl_b32 s{sTmp}, s{sW}, 9
    v_add_u32 v{vT3}, s{sTmp}, v{vT3}
    s_mov_b32 s{sT}, s{sPm}
    s_mov_b32 s{sT+1}, s{sPm+1}
    s_mov_b32 s{sT+2}, 16384
    """)
    for i in range(4):
        A(f"buffer_load_dwordx4 {v(vM+4*i,4)}, v{vT3}, s[{sT}:{sT+3}], 0 offen offset:{i*128}")
    A(f"""
    s_lshl_b32 s{sTmp}, s{sW}, 12
    v_add_u32 v{vOffD}, s{sTmp}, v{vL16}                 ; w*4096 + lane*16
    s_mul_i32 s{sTmp}, s{sW}, 6144
    v_add_u32 v{vOffAq}, s{sTmp}, v{vL16}                ; w*6144 + lane*16
    v_lshlrev_b32 v{vOffAv}, 3, v{vLane}
    s_add_u32 s{sTmp}, s{sTmp}, 4096
    v_add_u32 v{vOffAv}, s{sTmp}, v{vOffAv}              ; w*6144 + 4096 + lane*8
    s_mul_i32 s{sTmp}, s{sHL}, 6144
    s_cmp_eq_u32 s{sW}, 2
    s_cbranch_scc1 {name}_astv
    v_lshlrev_b32 v{vOffAst}, 4, v{vT1}
    v_lshl_add_u32 v{vOffAst}, v{vG}, 8, v{vOffAst}
    v_lshl_add_u32 v{vOffAst}, v{vT2}, 3, v{vOffAst}
    s_lshr_b32 s{sTmp2}, s{sJ}, 1
    s_lshl_b32 s{sTmp2}, s{sTmp2}, 10
    s_add_u32 s{sTmp}, s{sTmp}, s{sTmp2}
    s_and_b32 s{sTmp2}, s{sJ}, 1
    s_lshl_b32 s{sTmp2}, s{sTmp2}, 7
    s_add_u32 s{sTmp}, s{sTmp}, s{sTmp2}
    s_and_b32 s{sTmp2}, s{sW}, 1
    s_lshl_b32 s{sTmp2}, s{sTmp2}, 11
    s_add_u32 s{sTmp}, s{sTmp}, s{sTmp2}
    v_add_u32 v{vOffAst}, s{sTmp}, v{vOffAst}
    s_branch {name}_astd
    {name}_astv:
    v_lshlrev_b32 v{vOffAst}, 3, v{vLane}
    s_lshl_b32 s{sTmp2}, s{sJ}, 9
    s_add_u32 s{sTmp}, s{sTmp}, s{sTmp2}
    s_add_u32 s{sTmp}, s{sTmp}, 4096
    v_add_u32 v{vOffAst}, s{sTmp}, v{vOffAst}
    {name}_astd:
    s_and_b32 s{sTmp}, s{sW}, 1
    s_lshl_b32 s{sTmp2}, s{sTmp}, 10
    v_add_u32 v{vOffC}, s{sTmp2}, v{vL16}                ; p*1024 + lane*16
    {'v_lshrrev_b32 v%d, 1, v%d' % (vOffC, vOffC) if cbf else ''}
    s_lshl_b32 s{sTmp2}, s{sTmp}, 3
    s_lshl_b32 s{sTmp}, s{sC}, 10
    s_add_u32 s{sTmp}, s{sTmp}, s{sTmp2}
    v_add_u32 v{vOffDst}, s{sTmp}, v{vL16}               ; c*1024 + lane*16 + 8p
    s_lshl_b32 s{sTmp}, s{sX}, 2
    s_add_u32 s{sTmp}, s{sTmp}, s{sW}
    s_lshl_b32 s{sOffKVM}, s{sTmp}, 12
    s_add_u32 s{sOffKVM}, s{sOffKVM}, {WS['KVM']}
    s_lshl_b32 s{sTmp}, s{sTmp}, 13                      ; head*8192
    s_add_u32 s{sOffKx}, s{sTmp}, {WS['K']}
    s_add_u32 s{sOffKx1}, s{sOffKx}, 4096
    s_add_u32 s{sOffVx}, s{sTmp}, {WS['VT']}
    s_add_u32 s{sOffVx1}, s{sOffVx}, 4096
    s_lshl_b32 s{sTmp}, s{sC}, 2
    s_add_u32 s{sTmp}, s{sTmp}, s{sW}
    s_and_b32 s{sTmp2}, s{sTmp}, 31
    s_lshl_b32 s{sTmp2}, s{sTmp2}, 10
    s_cmp_lt_u32 s{sTmp}, 32
    s_cselect_b32 s{sTmp}, 0, {WS['VT'] - WS['K']}
    s_add_u32 s{sTmp}, s{sTmp}, s{sTmp2}
    s_lshl_b32 s{sTmp2}, s{sX}, 15
    s_add_u32 s{sTmp}, s{sTmp}, s{sTmp2}
    s_add_u32 s{sTmp}, s{sTmp}, {WS['K']}
    v_add_u32 v{vPfo}, s{sTmp}, v{vL16}
    s_mul_i32 s{sBaseA}, s{sX}, 24576
    s_add_u32 s{sBaseA}, s{sBaseA}, {WS['RA']}
    s_lshl_b32 s{sBaseD}, s{sX}, 14
    s_add_u32 s{sBaseD}, s{sBaseD}, {WS['RD']}
    s_lshl_b32 s{sBaseC}, s{sC}, 14
    s_add_u32 s{sBaseC}, s{sBaseC}, {WS['RC']}
    s_lshl_b32 s{sBaseCo}, s{sX}, 11
    s_add_u32 s{sBaseCo}, s{sBaseCo}, s{sBaseC}
    s_mul_i32 s{sTmp}, s{sW}, 3072
    v_add_u32 v{vLds1w}, s{sTmp}, v{vL16}
    s_lshl_b32 s{sTmp}, s{sW}, 10
    v_add_u32 v{vLds1r}, s{sTmp}, v{vL16}
    s_lshl_b32 s{sTmp}, s{sW}, 11
    s_add_u32 s{sTmp}, s{sTmp}, {LDS_P3}
    v_add_u32 v{vLds3w}, s{sTmp}, v{vL16}
    s_and_b32 s{sTmp}, s{sW}, 1
    s_lshl_b32 s{sTmp}, s{sTmp}, 10
    s_add_u32 s{sTmp}, s{sTmp}, {LDS_P3}
    v_add_u32 v{vLds3r}, s{sTmp}, v{vL16}
    v_mov_b32 v{vSent}, -1
    v_mov_b32 v{vSent+1}, -1
    v_mov_b32 v{vSent+2}, -1
    v_mov_b32 v{vSent+3}, -1
    s_mov_b32 s{sBud}, {SENT_BUDGET}
    s_mov_b32 s{sStep}, 0
    """)
    cexp = struct.unpack('<I', struct.pack('<f', (128 ** -0.5) * math.log2(math.e)))[0]
    A(f"s_mov_b32 s{sCexp}, {hex(cexp)}")
    A("s_barrier")
    def kx_loads():
        return [f"buffer_load_dwordx4 {v(vKx + (t*4+ks)*4, 4)}, v{vL16}, {ws}, s{sOffKx if t == 0 else sOffKx1} offen offset:{ks*1024}{kvf}" for t in range(2) for ks in range(4)]
    def vx_loads():
        return [f"buffer_load_dwordx4 {v(vVx + t*4, 4)}, v{vL16}, {ws}, s{sOffVx if t < 4 else sOffVx1} offen offset:{(t%4)*1024}{kvf}" for t in range(8)]
    if merged:
        mega_pre.wait_dbg(A, name, mega_pre.DBG_INIT, 256, f"{name}_wi", sBud, sTmp)
        mega_pre.wait_dbg(A, name, mega_pre.DBG_RING, 128, f"{name}_wr", sBud, sTmp)
    if embedded:
        A(f"""
        v_mov_b32 v{vZero}, 0
        s_lshl_b32 s{sFlg}, s{sX}, 11
        s_add_u32 s{sFlg}, s{sFlg}, {FL_KVRDY}
        s_lshl_b32 s{sKvmF}, s{sX}, 12
        s_add_u32 s{sKvmF}, s{sKvmF}, {FL_KVM}
        {name}_w0:
        buffer_load_dword v{vFlag}, v{vZero}, {ws}, s{sFlg} offen sc1
        s_waitcnt vmcnt(0)
        v_readfirstlane_b32 s{sTmp}, v{vFlag}
        s_cmp_ge_u32 s{sTmp}, 8
        s_cbranch_scc1 {name}_w0ok
        s_sub_u32 s{sBud}, s{sBud}, 1
        s_cbranch_scc1 {name}_exit
        s_sleep 2
        s_branch {name}_w0
        {name}_w0ok:
        """)
    if not kxp1:
        for l in kx_loads(): A(l)
    if timing:
        for i in range(8): A(f"s_mov_b32 s{80+i}, 0")
        for i in range(92,95): A(f"s_mov_b32 s{i}, 0")
        for i in range(16): A(f"s_mov_b32 s{64+i}, 0")
    A("s_waitcnt vmcnt(0)")
    for i in range(4):
        A(f"v_min_u32 v{vM+4*i}, -2, v{vM+4*i}")
        A(f"v_min_u32 v{vM+4*i+2}, -2, v{vM+4*i+2}")
    A(f"s_mov_b32 s{sOffD}, s{sBaseD}")
    A(f"s_branch {name}_p1")

    spin_blocks = []
    def spin_site(lbl, j, loads_from_j, chk_regs, cnt=None):
        def chk():
            out = []
            if len(chk_regs) == 2:
                out.append(f"v_max_u32 v{vT1}, v{chk_regs[0]}, v{chk_regs[1]}")
                out.append(f"v_cmp_eq_u32 vcc, -1, v{vT1}")
            elif len(chk_regs) == 1:
                out.append(f"v_cmp_eq_u32 vcc, -1, v{chk_regs[0]}")
            else:
                rs = list(chk_regs)
                out.append(f"v_max3_u32 v{vT1}, v{rs[0]}, v{rs[1]}, v{rs[2]}"); i = 3
                while i < len(rs):
                    if i + 1 < len(rs):
                        out.append(f"v_max3_u32 v{vT1}, v{vT1}, v{rs[i]}, v{rs[i+1]}"); i += 2
                    else:
                        out.append(f"v_max_u32 v{vT1}, v{vT1}, v{rs[i]}"); i += 1
                out.append(f"v_cmp_eq_u32 vcc, -1, v{vT1}")
            return out
        for x in chk(): A(x)
        A(f"s_cbranch_vccnz {lbl}_s{j}")
        A.label(f"{lbl}_k{j}")
        blk = [f"{lbl}_s{j}:"]
        blk += list(loads_from_j)
        if timing and cnt is not None: blk.append(f"s_add_u32 s{cnt}, s{cnt}, 1")
        blk.append(f"s_sub_u32 s{sBud}, s{sBud}, 1")
        sid = {'pD': 1, 'pA': 2, 'pV': 3, 'pC': 4}[lbl.split('_')[-1]]
        blk.append(f"s_movk_i32 s{sMask}, {sid*16 + j}")
        blk.append(f"s_cbranch_scc1 {name}_fail")
        blk.append("s_waitcnt vmcnt(0)")
        blk += chk()
        blk.append(f"s_cbranch_vccnz {lbl}_s{j}")
        blk.append(f"s_branch {lbl}_k{j}")
        spin_blocks.append(blk)

    def stamp(i):
        if timing: A(f"s_memrealtime s[{sSt+2*i}:{sSt+2*i+1}]")
    def stamp_acc(n):
        if timing:
            A("s_mov_b32 s97, s98")
            A("s_memtime s[98:99]")
            A("s_waitcnt lgkmcnt(0)")
            lb = A.newlabel('sk')
            A(f"s_cmp_lg_u32 s{sStep}, {stamp_step}")
            A(f"s_cbranch_scc1 {lb}")
            for i in range(n):
                A(f"s_mov_b32 s{80+i}, s{sSt+2*i}")
            A("s_sub_u32 s55, s98, s97")
            A.label(lb)

    kvm_copy = f"""
    s_and_b32 s{sTmp}, s{sStep}, 15
    s_cmp_lg_u32 s{sTmp}, s{sC}
    s_cbranch_scc1 {name}_nokvmXX
    s_lshl_b32 s{sTmp}, s{sStep}, 17
    s_add_u32 s{sTmp}, s{sTmp}, s{sOffKVM}
    s_add_u32 s{sTmp2}, s{sTmp}, 2048
    v_lshlrev_b32 v{vT2}, 3, v{vLane}
    buffer_store_dwordx4 {v(vK,4)}, v{vL16}, {ws}, s{sTmp} offen offset:0{kvf}
    buffer_store_dwordx4 {v(vK+4,4)}, v{vL16}, {ws}, s{sTmp} offen offset:1024{kvf}
    buffer_store_dwordx2 {v(vVm,2)}, v{vT2}, {ws}, s{sTmp2} offen offset:0{kvf}
    buffer_store_dwordx2 {v(vVm+2,2)}, v{vT2}, {ws}, s{sTmp2} offen offset:512{kvf}
    buffer_store_dwordx2 {v(vVm+4,2)}, v{vT2}, {ws}, s{sTmp2} offen offset:1024{kvf}
    buffer_store_dwordx2 {v(vVm+6,2)}, v{vT2}, {ws}, s{sTmp2} offen offset:1536{kvf}
    {name}_nokvmXX:
    """
    def kvchk(tag):
        if not embedded: return
        A(f"""
        {name}_kvchk{tag}:
        v_readfirstlane_b32 s{sTmp}, v{vFlag}
        s_cmp_ge_u32 s{sTmp}, 8
        s_cbranch_scc1 {name}_kvok{tag}
        s_add_u32 s{sTmp}, s{sStep}, 1
        s_lshr_b32 s{sTmp}, s{sTmp}, 2
        s_lshl_b32 s{sTmp}, s{sTmp}, 7
        s_add_u32 s{sTmp}, s{sTmp}, s{sFlg}
        buffer_load_dword v{vFlag}, v{vZero}, {ws}, s{sTmp} offen sc1
        s_sub_u32 s{sBud}, s{sBud}, 1
        s_cbranch_scc1 {name}_exit
        s_waitcnt vmcnt(0)
        s_branch {name}_kvchk{tag}
        {name}_kvok{tag}:
        """)
    def publish(tag):
        if not embedded: return
        A(f"""
        s_sub_u32 s{sTmp}, s{sStep}, 1
        s_and_b32 s{sTmp2}, s{sTmp}, 15
        s_cmp_lg_u32 s{sTmp2}, s{sC}
        s_cbranch_scc1 {name}_nopub{tag}
        s_cmp_eq_u32 s{sStep}, 0
        s_cbranch_scc1 {name}_nopub{tag}
        s_lshl_b32 s{sTmp}, s{sTmp}, 6
        s_add_u32 s{sTmp}, s{sTmp}, s{sKvmF}
        v_mov_b32 v{vT2}, 1
        s_mov_b64 exec, 1
        buffer_atomic_add v{vT2}, v{vZero}, {ws}, s{sTmp} offen
        s_mov_b64 exec, -1
        {name}_nopub{tag}:
        """)
    dl = [f"buffer_load_dwordx4 {v(vM+4*i,4)}, v{vOffD}, {ws}, s{sOffD} offen offset:{i*1024} {ldf}" for i in range(4)]
    def p1m(t, i, rot):
        odd_tile = t & 1
        ks = 2*i + ((0 if not rot else 1) if not odd_tile else (1 if not rot else 0))
        src = v((vRM if rot else vM) + 4*i, 4)
        first = (i == 0 and not rot)
        c = '0' if first else v(acc(t), 4)
        if t < 4: return f"v_mfma_f32_16x16x32_bf16 {v(acc(t),4)}, {W1(t,ks)}, {src}, {c}"
        else:     return f"v_mfma_f32_16x16x32_bf16 {v(acc(t),4)}, {src}, {W1(t,ks)}, {c}"
    sal = f"""
    s_and_b32 s{sTmp}, s{sStep}, 3
    s_mul_i32 s{sTmp}, s{sTmp}, {8*24576}
    s_add_u32 s{sOffA}, s{sTmp}, s{sBaseA}
    s_add_u32 s{sTmp}, s{sStep}, 3
    s_and_b32 s{sTmp}, s{sTmp}, 3
    s_mul_i32 s{sOffAr}, s{sTmp}, {8*24576}
    s_add_u32 s{sOffAr}, s{sOffAr}, s{sBaseA}
    s_lshl_b32 s{sOffDr}, s{sTmp}, 17
    s_add_u32 s{sOffDr}, s{sOffDr}, s{sBaseD}
    s_add_u32 s{sTmp}, s{sStep}, 2
    s_and_b32 s{sTmp}, s{sTmp}, 3
    s_lshl_b32 s{sOffCr}, s{sTmp}, 18
    s_add_u32 s{sOffCr}, s{sOffCr}, s{sBaseCo}
    s_and_b32 s{sTmp}, s{sStep}, 3
    s_lshl_b32 s{sTmp}, s{sTmp}, 18
    s_add_u32 s{sOffC}, s{sTmp}, s{sBaseC}
    s_add_u32 s{sCst}, s{sTmp}, s{sBaseCo}
    s_add_u32 s{sC1}, s{sOffC}, 4096
    s_add_u32 s{sC2}, s{sOffC}, 8192
    s_add_u32 s{sC3}, s{sOffC}, 12288
    s_add_u32 s{sTmp}, s{sStep}, 1
    s_and_b32 s{sTmp}, s{sTmp}, 3
    s_lshl_b32 s{sTmp}, s{sTmp}, 17
    s_add_u32 s{sOffDn}, s{sTmp}, s{sBaseD}
    v_mov_b32 v{vSM}, 0xff800000
    v_mov_b32 v{vSM+1}, 0xff800000
    v_mov_b32 v{vSM+2}, 0xff800000
    v_mov_b32 v{vSM+3}, 0xff800000
    v_mov_b32 v{vPMh}, 0
    v_mov_b32 v{vPMh+1}, 0
    """.strip().split('\n')
    sal = [x.strip() for x in sal]

    A.label(f"{name}_loop")
    stamp_acc(8)
    stamp(0)
    A(f"s_mov_b32 s{sOffD}, s{sOffDn}")
    if ddelay: A(f"s_sleep {ddelay}")
    for l in dl: A(l)
    A.label(f"{name}_p1")
    for x in sal: A(x)
    for i in range(4):
        A(f"s_waitcnt vmcnt({3-i})")
        spin_site(f"{name}_pD", i, dl[i:], [vM+4*i, vM+4*i+2], 92)
        if i == 3: stamp(1)
        rot = [f"v_mov_b32_dpp v{vRM+4*i+j}, v{vM+4*i+j} row_ror:8 row_mask:0xf bank_mask:0xf" for j in range(4)]
        interleave(A, [p1m(t, i, False) for t in range(4)], rot)
        A.nop(2)
        for t in range(4): A(p1m(t, i, True))
    vm_list = [p1m(t, i, r) for i in range(4) for r in (False, True) for t in (4, 5)]
    A(vm_list[0]); A(vm_list[1])
    A.nop(4)
    for pair in range(2):
        for r in range(4):
            A(f"v_mov_b32_dpp v{acc(2*pair)+r}, v{acc(2*pair+1)+r} quad_perm:[0,1,2,3] row_mask:0xf bank_mask:0xc")
    for p in range(2):
        A(f"ds_write_b128 v{vLds1w}, {v(acc(2*p),4)} offset:{LDS_P1 + p*1024}")
    A(vm_list[2]); A(vm_list[3])
    A("s_waitcnt lgkmcnt(0)")
    A("s_barrier")
    A(f"""
    s_cmp_ge_u32 s{sW}, 2
    s_cbranch_scc1 {name}_skipA
    """)
    for w in range(4):
        A(f"ds_read_b128 {v(vRd+4*w,4)}, v{vLds1r} offset:{LDS_P1 + w*3072}")
    A(vm_list[4]); A(vm_list[5]); A(vm_list[6]); A(vm_list[7])
    A("s_waitcnt lgkmcnt(0)")
    for r in range(4):
        A(f"v_add_f32 v{vRd+r}, v{vRd+r}, v{vRd+4+r}")
        A(f"v_add_f32 v{vRd+8+r}, v{vRd+8+r}, v{vRd+12+r}")
    for r in range(4):
        A(f"v_add_f32 v{vRd+r}, v{vRd+r}, v{vRd+8+r}")
    A(f"""
    v_cvt_pk_bf16_f32 v{vRd+4}, v{vRd}, v{vRd+1}
    v_cvt_pk_bf16_f32 v{vRd+5}, v{vRd+2}, v{vRd+3}
    s_nop 0
    v_min_u32 v{vRd+4}, -2, v{vRd+4}
    v_min_u32 v{vRd+5}, -2, v{vRd+5}
    buffer_store_dwordx2 {v(vRd+4,2)}, v{vOffAst}, {ws}, s{sOffA} offen{intra}
    """)
    stamp(2)
    interleave(A, vm_list[8:], (kx_loads() if kxp1 else []) + vx_loads())
    A(f"s_branch {name}_vdone")
    A.label(f"{name}_skipA")
    stamp(2)
    interleave(A, vm_list[4:], (kx_loads() if kxp1 else []) + vx_loads())
    A.label(f"{name}_vdone")
    A.nop(8)
    for r in range(4):
        A(f"v_mov_b32_dpp v{acc(4)+r}, v{acc(5)+r} quad_perm:[0,1,2,3] row_mask:0xc bank_mask:0xf")
    A(f"ds_write_b128 v{vLds1w}, {v(acc(4),4)} offset:{LDS_P1 + 2048}")
    ql = [f"buffer_load_dwordx4 {v(vQ+4*i,4)}, v{vOffAq}, {ws}, s{sOffA} offen offset:{i*1024} {ldf}" for i in range(2)]
    kl = [f"buffer_load_dwordx4 {v(vK+4*i,4)}, v{vOffAq}, {ws}, s{sOffA} offen offset:{2048+i*1024} {ldf}" for i in range(2)]
    vl = [f"buffer_load_dwordx2 {v(vVm+2*i,2)}, v{vOffAv}, {ws}, s{sOffA} offen offset:{i*512} {ldf}" for i in range(4)]
    for l in ql + kl: A(l)
    A("s_waitcnt lgkmcnt(0)")
    A("s_barrier")
    A(f"""
    s_cmp_lg_u32 s{sW}, 2
    s_cbranch_scc1 {name}_skipV
    """)
    for w in range(4):
        A(f"ds_read_b128 {v(vRd+4*w,4)}, v{vLds1r} offset:{LDS_P1 + w*3072}")
    A("s_waitcnt lgkmcnt(0)")
    for r in range(4):
        A(f"v_add_f32 v{vRd+r}, v{vRd+r}, v{vRd+4+r}")
        A(f"v_add_f32 v{vRd+8+r}, v{vRd+8+r}, v{vRd+12+r}")
    for r in range(4):
        A(f"v_add_f32 v{vRd+r}, v{vRd+r}, v{vRd+8+r}")
    A(f"""
    v_cvt_pk_bf16_f32 v{vRd+4}, v{vRd}, v{vRd+1}
    v_cvt_pk_bf16_f32 v{vRd+5}, v{vRd+2}, v{vRd+3}
    s_nop 0
    v_min_u32 v{vRd+4}, -2, v{vRd+4}
    v_min_u32 v{vRd+5}, -2, v{vRd+5}
    buffer_store_dwordx2 {v(vRd+4,2)}, v{vOffAst}, {ws}, s{sOffA} offen{intra}
    s_waitcnt vmcnt(1)
    s_branch {name}_skipV2
    {name}_skipV:
    s_waitcnt vmcnt(0)
    {name}_skipV2:
    """)
    spin_site(f"{name}_pA", 0, ql + kl, [vQ, vQ+2, vQ+4, vQ+6, vK, vK+2, vK+4, vK+6], 93)
    stamp(3)
    kvchk('a')
    for l in vl: A(l)
    if embedded:
        A(f"""
        s_add_u32 s{sTmp}, s{sStep}, 2
        s_lshr_b32 s{sTmp}, s{sTmp}, 2
        s_min_u32 s{sTmp}, s{sTmp}, 15
        s_lshl_b32 s{sTmp}, s{sTmp}, 7
        s_add_u32 s{sTmp}, s{sTmp}, s{sFlg}
        buffer_load_dword v{vFlag}, v{vZero}, {ws}, s{sTmp} offen sc1
        """)
    A(f"""
    s_cmp_eq_u32 s{sStep}, {nsteps-1}
    s_cbranch_scc1 {name}_last
    """)
    pf_code = f"""
    s_add_u32 s{sTmp}, s{sStep}, 2
    s_and_b32 s{sTmp2}, s{sTmp}, 3
    s_cmp_eq_u32 s{sTmp2}, 0
    s_cbranch_scc1 {name}_nopf
    s_cmp_ge_u32 s{sTmp}, 64
    s_cbranch_scc1 {name}_nopf
    s_lshl_b32 s{sTmp}, s{sTmp}, 18
    buffer_load_dword v{vT3}, v{vPfo}, {ws}, s{sTmp} offen{kvf}
    {name}_nopf:
    """
    def sm(kind, i):
        if kind == 'm':
            c = '0' if i == 0 else v(vSm,4)
            return f"v_mfma_f32_16x16x32_bf16 {v(vSm,4)}, {v(vK+4*i,4)}, {v(vQ+4*i,4)}, {c}"
        t, rot = kind
        d = vS1 if t == 0 else vS2
        ks = 2*i + ((1 if rot else 0) if t == 0 else (0 if rot else 1))
        src = v((vRQ if rot else vQ) + 4*i, 4)
        c = '0' if (i == 0 and not rot) else v(d,4)
        return f"v_mfma_f32_16x16x32_bf16 {v(d,4)}, {v(vKx+(t*4+ks)*4,4)}, {src}, {c}"
    mainl = [sm('m',0), sm('m',1), sm((0,False),0), sm((1,False),0), sm((0,False),1), sm((1,False),1)]
    fill = [f"v_mov_b32_dpp v{vRQ+j}, v{vQ+j} row_ror:8 row_mask:0xf bank_mask:0xf" for j in range(8)]
    interleave(A, mainl, fill)
    A.nop(1)
    mainl = [sm((0,True),0), sm((1,True),0), sm((0,True),1), sm((1,True),1)]
    fill = [f"v_permlane32_swap_b32 v{vSm+r}, v{vTT+r}" for r in range(4)]
    interleave(A, mainl, fill)
    A(f"""
    s_add_u32 s{sOffKx}, s{sOffKx}, {1<<18}
    s_add_u32 s{sOffKx1}, s{sOffKx1}, {1<<18}
    s_add_u32 s{sOffVx}, s{sOffVx}, {1<<18}
    s_add_u32 s{sOffVx1}, s{sOffVx1}, {1<<18}
    """)
    for r in range(4):
        A(f"v_add_f32_dpp v{vSM+r}, v{vTT+r}, v{vSm+r} row_ror:8 row_mask:0x3 bank_mask:0x3")
    A(f"""
    v_max3_f32 v{vMax}, v{vSM}, v{vSM+1}, v{vSM+2}
    v_max_f32 v{vMax}, v{vMax}, v{vSM+3}
    s_nop 1
    """)
    for r in range(4):
        A(f"v_mov_b32_dpp v{vS1+r}, v{vS2+r} quad_perm:[0,1,2,3] row_mask:0xf bank_mask:0xc")
    vSX = vS1
    A(f"""
    v_max3_f32 v{vMax}, v{vMax}, v{vSX}, v{vSX+1}
    v_max3_f32 v{vMax}, v{vMax}, v{vSX+2}, v{vSX+3}
    s_nop 1
    v_max_f32_dpp v{vMx2}, v{vMax}, v{vMax} row_ror:8 row_mask:0xf bank_mask:0xf
    v_max_f32_dpp v{vMax}, v{vMax}, v{vMax} row_ror:8 row_mask:0xf bank_mask:0xf
    s_nop 1
    v_permlane16_swap_b32 v{vMax}, v{vMx2}
    s_nop 0
    v_max_f32 v{vSu2}, v{vMax}, v{vMx2}
    v_max_f32 v{vMax}, v{vMax}, v{vMx2}
    s_nop 1
    v_permlane32_swap_b32 v{vMax}, v{vSu2}
    s_nop 0
    v_max_f32 v{vMax}, v{vMax}, v{vSu2}
    v_mul_f32 v{vMax}, s{sCexp}, v{vMax}
    """)
    for r in range(4):
        A(f"v_fma_f32 v{vSX+r}, v{vSX+r}, s{sCexp}, -v{vMax}")
    for r in range(4):
        A(f"v_exp_f32 v{vSX+r}, v{vSX+r}")
    for r in range(4):
        A(f"v_fma_f32 v{vSM+r}, v{vSM+r}, s{sCexp}, -v{vMax}")
    A(f"""
    v_cvt_pk_bf16_f32 v{vBX}, v{vSX}, v{vSX+1}
    v_cvt_pk_bf16_f32 v{vBX+1}, v{vSX+2}, v{vSX+3}
    v_exp_f32 v{vSM}, v{vSM}
    v_exp_f32 v{vSM+1}, v{vSM+1}
    v_mov_b32_dpp v{vBX+2}, v{vBX} row_ror:8 row_mask:0xf bank_mask:0xf
    v_mov_b32_dpp v{vBX+3}, v{vBX+1} row_ror:8 row_mask:0xf bank_mask:0xf
    v_exp_f32 v{vSM+2}, v{vSM+2}
    v_exp_f32 v{vSM+3}, v{vSM+3}
    """)
    stamp(4)
    def pvx(t): return f"v_mfma_f32_16x16x32_bf16 {v(vO+4*t,4)}, {v(vVx+4*t,4)}, {v(vBX,4)}, 0"
    def pvm(t):
        b = vPM if t % 2 == 0 else vPMh
        return f"v_mfma_f32_16x16x16_bf16 {v(vO+4*t,4)}, {v(vVm+2*(t//2),2)}, {v(b,2)}, {v(vO+4*t,4)}"
    A(pvx(0))
    A(f"v_cvt_pk_bf16_f32 v{vPM}, v{vSM}, v{vSM+1}")
    A(f"v_cvt_pk_bf16_f32 v{vPMc}, v{vSM}, v{vSM+1}")
    A(pvx(1))
    A(f"v_cvt_pk_bf16_f32 v{vPM+1}, v{vSM+2}, v{vSM+3}")
    A(f"v_cvt_pk_bf16_f32 v{vPMc+1}, v{vSM+2}, v{vSM+3}")
    A(pvx(2))
    A(f"v_add_f32 v{vSum}, v{vSX}, v{vSX+1}")
    A(f"v_permlane32_swap_b32 v{vPMh}, v{vPMc}")
    A(pvx(3))
    A(f"v_add_f32 v{vSu2}, v{vSX+2}, v{vSX+3}")
    A(f"v_permlane32_swap_b32 v{vPMh+1}, v{vPMc+1}")
    A("s_waitcnt vmcnt(1)" if embedded else "s_waitcnt vmcnt(0)")
    spin_site(f"{name}_pV", 0, vl, [vVm, vVm+2, vVm+4, vVm+6], 93)
    cv = []
    for u in range(4):
        c4 = []
        for hh in range(2):
            t = 2*u + hh
            c4.append(f"v_cvt_pk_bf16_f32 v{vOB+4*u+2*hh}, v{vO+4*t}, v{vO+4*t+1}")
            c4.append(f"v_cvt_pk_bf16_f32 v{vOB+4*u+2*hh+1}, v{vO+4*t+2}, v{vO+4*t+3}")
        cv.append(c4)
    def p3(tn, u): return f"v_mfma_f32_16x16x32_bf16 {v(vE+4*tn,4)}, {Wo(tn,u)}, {v(vOB+4*u,4)}, {'0' if u == 0 else v(vE+4*tn,4)}"
    kxl = kx_loads(); vxl = vx_loads()
    sums = [f"v_add_f32 v{vMx2}, v{vSM}, v{vSM+1}",
            f"v_add_f32 v{vSum}, v{vSum}, v{vSu2}",
            f"v_add_f32 v{vSu2}, v{vSM+2}, v{vSM+3}",
            f"v_add_f32 v{vSum}, v{vSum}, v{vMx2}",
            f"v_add_f32 v{vSum}, v{vSum}, v{vSu2}"]
    seq = [pvm(0), sums[0], pvm(1), sums[1], pvm(2), sums[2], pvm(3), sums[3],
           pvx(4), sums[4], pvx(5), kxl[0], pvm(4),
           f"v_add_f32_dpp v{vMx2}, v{vSum}, v{vSum} row_ror:8 row_mask:0xf bank_mask:0xf",
           pvm(5),
           f"v_add_f32_dpp v{vSum}, v{vSum}, v{vSum} row_ror:8 row_mask:0xf bank_mask:0xf",
           pvx(6), cv[0][0], cv[0][1], pvx(7), cv[0][2], cv[0][3], pvm(6),
           f"v_permlane16_swap_b32 v{vSum}, v{vMx2}", kxl[1], pvm(7), cv[1][0], cv[1][1],
           p3(0,0), cv[1][2], cv[1][3], p3(1,0), f"v_add_f32 v{vSu2}, v{vSum}, v{vMx2}", kxl[2], p3(2,0), f"v_add_f32 v{vSum}, v{vSum}, v{vMx2}", kxl[3], p3(3,0),
           kxl[4],
           p3(0,1), cv[2][0], cv[2][1], p3(1,1), cv[2][2], cv[2][3], p3(2,1), f"v_permlane32_swap_b32 v{vSum}, v{vSu2}", kxl[5], p3(3,1),
           cv[3][0], cv[3][1],
           p3(0,2), cv[3][2], cv[3][3], p3(1,2), f"v_add_f32 v{vSum}, v{vSum}, v{vSu2}", kxl[6], p3(2,2), kxl[7], vxl[0], p3(3,2),
           f"v_rcp_f32 v{vSum}, v{vSum}", vxl[1],
           p3(0,3), vxl[2], vxl[3], p3(1,3), vxl[4], vxl[5], p3(2,3), vxl[6], vxl[7], p3(3,3)]
    seq = [x for x in seq if x not in vxl and not (kxp1 and x in kxl)]
    if kvpos == 'late':
        seq = [x for x in seq if x not in kxl and x not in vxl]
    for x in seq: A(x)
    A(f"""
    s_cmp_eq_u32 s{sW}, 3
    s_cbranch_scc1 {name}_rs3
    buffer_store_dwordx2 {v(vSent,2)}, v{vOffAst}, {ws}, s{sOffAr} offen{intra}
    {name}_rs3:
    """)
    A.nop(4)
    for r in range(4):
        A(f"v_mov_b32_dpp v{vE+r}, v{vE+4+r} row_ror:8 row_mask:0xf bank_mask:0xc")
    A(f"v_pk_mul_f32 {v(vE,2)}, {v(vE,2)}, {v(vSumP,2)}") if False else None
    for r in range(4):
        A(f"v_mul_f32 v{vE+r}, v{vE+r}, v{vSum}")
    for r in range(4):
        A(f"v_mov_b32_dpp v{vE+8+r}, v{vE+12+r} row_ror:8 row_mask:0xf bank_mask:0xc")
    A(f"ds_write_b128 v{vLds3w}, {v(vE,4)} offset:0")
    for r in range(4):
        A(f"v_mul_f32 v{vE+8+r}, v{vE+8+r}, v{vSum}")
    A(f"ds_write_b128 v{vLds3w}, {v(vE+8,4)} offset:1024")
    A("s_waitcnt lgkmcnt(0)")
    A("s_barrier")
    stamp(5); stamp(6); stamp(7)
    A(f"""
    s_cmp_ge_u32 s{sW}, 2
    s_cbranch_scc1 {name}_cpoll
    """)
    for w in range(4):
        A(f"ds_read_b128 {v(vRd+4*w,4)}, v{vLds3r} offset:{w*2048}")
    A("s_waitcnt lgkmcnt(0)")
    for r in range(4):
        A(f"v_add_f32 v{vRd+r}, v{vRd+r}, v{vRd+4+r}")
        A(f"v_add_f32 v{vRd+8+r}, v{vRd+8+r}, v{vRd+12+r}")
    for r in range(4):
        A(f"v_add_f32 v{vRd+r}, v{vRd+r}, v{vRd+8+r}")
    if cbf:
        A(f"v_cvt_pk_bf16_f32 v{vRd+4}, v{vRd}, v{vRd+1}")
        A(f"v_cvt_pk_bf16_f32 v{vRd+5}, v{vRd+2}, v{vRd+3}")
        A("s_nop 0")
        A(f"v_min_u32 v{vRd+4}, -2, v{vRd+4}")
        A(f"v_min_u32 v{vRd+5}, -2, v{vRd+5}")
        A(f"buffer_store_dwordx2 {v(vRd+4,2)}, v{vOffC}, {ws}, s{sCst} offen sc1")
        stamp(6); stamp(7)
        A(f"buffer_store_dwordx2 {v(vSent,2)}, v{vOffC}, {ws}, s{sOffCr} offen sc1")
    else:
        for r in range(4):
            A(f"v_min_u32 v{vRd+r}, -2, v{vRd+r}")
        A(f"buffer_store_dwordx4 {v(vRd,4)}, v{vOffC}, {ws}, s{sCst} offen sc1")
        stamp(6); stamp(7)
        A(f"buffer_store_dwordx4 {v(vSent,4)}, v{vOffC}, {ws}, s{sOffCr} offen sc1")
    if kvpos == 'late':
        kvchk('b')
        for l in kxl + vxl: A(l)
    if l2pf: A(pf_code.replace('_nopf', '_nopf1').replace('s{sStep}, 2', 's{sStep}, 2'))
    publish('1')
    A(kvm_copy.replace('XX', '1'))
    A(f"s_add_u32 s{sStep}, s{sStep}, 1")
    A(f"s_branch {name}_b3")
    A.label(f"{name}_cpoll")
    if kvpos == 'late':
        kvchk('c')
        for l in kxl + vxl: A(l)
    A(f"buffer_store_dwordx2 {v(vSent,2)}, v{vOffDst}, {ws}, s{sOffDr} offen{intra}")
    if l2pf: A(pf_code.replace('_nopf', '_nopf3'))
    publish('3')
    A(kvm_copy.replace('XX', '3'))
    A(f"s_add_u32 s{sStep}, s{sStep}, 1")
    if cdelay: A(f"s_sleep {cdelay}")
    stamp(6)
    cl = []
    if cbf:
        vC = vRd + 16
        for y in range(8):
            so = [sOffC, sC1, sC2, sC3][y//2]
            cl.append(f"buffer_load_dwordx2 {v(vC+2*y,2)}, v{vOffC}, {ws}, s{so} offen offset:{(y%2)*2048} sc1")
        for l in cl: A(l)
        A("s_waitcnt vmcnt(0)")
        spin_site(f"{name}_pC", 0, cl, [vC+2*y for y in range(8)], 94)
        for y in range(8):
            base = vRd + (0 if y == 0 else (4 if y == 1 else (8 if y % 2 == 0 else 12)))
            A(f"v_lshlrev_b32 v{base}, 16, v{vC+2*y}")
            A(f"v_and_b32 v{base+1}, 0xffff0000, v{vC+2*y}")
            A(f"v_lshlrev_b32 v{base+2}, 16, v{vC+2*y+1}")
            A(f"v_and_b32 v{base+3}, 0xffff0000, v{vC+2*y+1}")
            if y >= 2:
                d = vRd + (0 if y % 2 == 0 else 4)
                A(f"v_pk_add_f32 {v(d,2)}, {v(d,2)}, {v(base,2)}")
                A(f"v_pk_add_f32 {v(d+2,2)}, {v(d+2,2)}, {v(base+2,2)}")
        A(f"v_pk_add_f32 {v(vRd,2)}, {v(vRd,2)}, {v(vRd+4,2)}")
        A(f"v_pk_add_f32 {v(vRd+2,2)}, {v(vRd+2,2)}, {v(vRd+6,2)}")
    else:
        for y in range(8):
            so = [sOffC, sC1, sC2, sC3][y//2]
            cl.append(f"buffer_load_dwordx4 {v(vRd+4*y,4)}, v{vOffC}, {ws}, s{so} offen offset:{(y%2)*2048} sc1")
        for l in cl: A(l)
        A("s_waitcnt vmcnt(0)")
        spin_site(f"{name}_pC", 0, cl, [vRd+4*y for y in range(8)], 94)
        for r in range(4):
            A(f"v_add_f32 v{vRd+r}, v{vRd+r}, v{vRd+4+r}")
            A(f"v_add_f32 v{vRd+8+r}, v{vRd+8+r}, v{vRd+12+r}")
            A(f"v_add_f32 v{vRd+16+r}, v{vRd+16+r}, v{vRd+20+r}")
            A(f"v_add_f32 v{vRd+24+r}, v{vRd+24+r}, v{vRd+28+r}")
        for r in range(4):
            A(f"v_add_f32 v{vRd+r}, v{vRd+r}, v{vRd+8+r}")
            A(f"v_add_f32 v{vRd+16+r}, v{vRd+16+r}, v{vRd+24+r}")
        for r in range(4):
            A(f"v_add_f32 v{vRd+r}, v{vRd+r}, v{vRd+16+r}")
    A(f"""
    v_cvt_pk_bf16_f32 v{vRd+4}, v{vRd}, v{vRd+1}
    v_cvt_pk_bf16_f32 v{vRd+5}, v{vRd+2}, v{vRd+3}
    s_nop 0
    v_min_u32 v{vRd+4}, -2, v{vRd+4}
    v_min_u32 v{vRd+5}, -2, v{vRd+5}
    buffer_store_dwordx2 {v(vRd+4,2)}, v{vOffDst}, {ws}, s{sOffDn} offen{intra}
    """)
    stamp(7)
    A(f"""
    {name}_b3:
    s_barrier
    s_branch {name}_loop
    """)
    for blk in spin_blocks:
        for x in blk: A(x)
    A.label(f"{name}_last")
    A.label(f"{name}_lastspin")
    for l in vl: A(l)
    A("s_waitcnt vmcnt(0)")
    A(f"v_max3_u32 v{vT1}, v{vVm}, v{vVm+2}, v{vVm+4}")
    A(f"v_max_u32 v{vT1}, v{vT1}, v{vVm+6}")
    A(f"v_cmp_eq_u32 vcc, -1, v{vT1}")
    A(f"s_cbranch_vccz {name}_lastok")
    A(f"s_sub_u32 s{sBud}, s{sBud}, 1")
    A(f"s_cbranch_scc1 {name}_exit")
    A(f"s_branch {name}_lastspin")
    A.label(f"{name}_lastok")
    publish('L')
    A(kvm_copy.replace('XX', '2'))
    if embedded:
        A(f"""
        s_and_b32 s{sTmp}, s{sStep}, 15
        s_cmp_lg_u32 s{sTmp}, s{sC}
        s_cbranch_scc1 {name}_done
        s_waitcnt vmcnt(0)
        s_lshl_b32 s{sTmp}, s{sStep}, 6
        s_add_u32 s{sTmp}, s{sTmp}, s{sKvmF}
        v_mov_b32 v{vT2}, 1
        s_mov_b64 exec, 1
        buffer_atomic_add v{vT2}, v{vZero}, {ws}, s{sTmp} offen
        s_mov_b64 exec, -1
        """)
    A.label(f"{name}_done")
    if timing:
        A(f"""
        s_memrealtime s[{sT0+2}:{sT0+3}]
        s_waitcnt lgkmcnt(0)
        s_sub_u32 s{sTmp}, s{sT0+2}, s{sT0}
        v_mov_b32 v{vT1}, s{sTmp}
        s_lshl_b32 s{sTmp2}, s{sX}, 2
        s_add_u32 s{sTmp2}, s{sTmp2}, 64
        v_mov_b32 v{vT2}, s{sTmp2}
        buffer_store_dword v{vT1}, v{vT2}, s[{sDBG}:{sDBG+3}], 0 offen
        v_mov_b32 v{vT1}, s{sBud}
        v_add_u32 v{vT2}, 32, v{vT2}
        buffer_store_dword v{vT1}, v{vT2}, s[{sDBG}:{sDBG+3}], 0 offen
        s_lshl_b32 s{sTmp}, s{sX}, 4
        s_add_u32 s{sTmp}, s{sTmp}, s{sC}
        s_lshl_b32 s{sTmp}, s{sTmp}, 2
        s_add_u32 s{sTmp}, s{sTmp}, s{sW}
        s_lshl_b32 s{sTmp}, s{sTmp}, 6
        s_add_u32 s{sTmp}, s{sTmp}, {WS['END']}
        """)
        for i in range(12):
            A(f"v_mov_b32 v{vT1}, s{80+i if i < 8 else (92+i-8 if i < 11 else 55)}")
            A(f"v_mov_b32 v{vT2}, {4*i}")
            A(f"buffer_store_dword v{vT1}, v{vT2}, {ws}, s{sTmp} offen")
    if done_label: A(f"s_branch {done_label}")
    A.label(f"{name}_exit")
    A("s_endpgm")
    A.label(f"{name}_fail")
    A(f"""
    s_lshl_b32 s{sTmp}, s{sX}, 4
    s_add_u32 s{sTmp}, s{sTmp}, s{sC}
    s_lshl_b32 s{sTmp}, s{sTmp}, 2
    s_add_u32 s{sTmp}, s{sTmp}, s{sW}
    s_lshl_b32 s{sTmp}, s{sTmp}, 2
    s_add_u32 s{sTmp}, s{sTmp}, {WS['END'] + 65536}
    s_lshl_b32 s{sTmp2}, s{sStep}, 8
    s_or_b32 s{sTmp2}, s{sTmp2}, s{sMask}
    s_or_b32 s{sTmp2}, s{sTmp2}, 0x10000
    v_mov_b32 v{vT1}, s{sTmp2}
    v_mov_b32 v{vT2}, 0
    buffer_store_dword v{vT1}, v{vT2}, {ws}, s{sTmp} offen
    s_endpgm
    """)
    return A.text()

def chain_desc(name='chain_kernel'):
    return kernel_desc(name, 512, 96, 256)
```

```python
from asmlib import *

ST = 8
class FVRegs:
    def __init__(self):
        R = RegAlloc(0, 256)
        R.alloc('tid')
        self.vLane = R.alloc('lane'); self.vCol = R.alloc('col'); self.vG = R.alloc('g'); self.vL16 = R.alloc('l16')
        self.t = [R.alloc('t1'), R.alloc('t2'), R.alloc('t3')]
        self.vDma = [R.alloc(f'dm{i}') for i in range(4)]
        self.vFo = [R.alloc('fo0'), R.alloc('fo1')]
        self.vRd = [[R.alloc(f'rd{h}_{j}') for j in range(8)] for h in range(2)]
        self.vT = R.alloc('Tfr', 64, 4)
        self.vF = R.alloc('Ffr', 128, 4)
        self.vEp = self.vT
        self.R = R

def fv_setup(A, r, sW, sM0, s1, s2, ldT, nK):
    t1, t2, t3 = r.t
    A(f"s_lshl_b32 s{sM0}, s{sW}, 12")
    A(f"v_lshrrev_b32 v{t1}, 4, v{r.vLane}")
    A(f"s_lshl_b32 s{s1}, s{sW}, 4")
    A(f"v_add_u32 v{t1}, s{s1}, v{t1}")
    A(f"v_and_b32 v{t2}, 15, v{r.vLane}")
    A(f"s_mov_b32 s{s2}, {ldT}")
    for m in range(4):
        d = r.vDma[m]
        A(f"v_add_u32 v{t3}, {m*4}, v{t1}")
        A(f"v_and_b32 v{d}, 7, v{t3}")
        A(f"v_lshlrev_b32 v{d}, 1, v{d}")
        A(f"v_xor_b32 v{d}, v{d}, v{t2}")
        A(f"v_lshlrev_b32 v{d}, 4, v{d}")
        A(f"v_mul_lo_u32 v{t3}, v{t3}, s{s2}")
        A(f"v_add_u32 v{d}, v{d}, v{t3}")
        if m: A(f"v_subrev_u32 v{d}, {m*1024}, v{d}")
    A(f"v_lshrrev_b32 v{t1}, 2, v{r.vCol}")
    A(f"v_lshl_add_u32 v{t1}, v{r.vG}, 2, v{t1}")
    A(f"v_and_b32 v{t2}, 7, v{t1}")
    A(f"v_lshlrev_b32 v{t2}, 5, v{t2}")
    A(f"v_lshlrev_b32 v{t1}, 8, v{t1}")
    A(f"v_and_b32 v{t3}, 3, v{r.vCol}")
    A(f"v_lshl_add_u32 v{t1}, v{t3}, 3, v{t1}")
    for j in range(8):
        A(f"v_xor_b32 v{r.vRd[0][j]}, {j*32}, v{t2}")
        A(f"v_add_u32 v{r.vRd[0][j]}, v{r.vRd[0][j]}, v{t1}")
        A(f"v_add_u32 v{r.vRd[1][j]}, 0x10000, v{r.vRd[0][j]}")
    A(f"s_mul_i32 s{s1}, s{sW}, {2*nK*1024}")
    A(f"v_add_u32 v{r.vFo[0]}, s{s1}, v{r.vL16}")
    A(f"v_add_u32 v{r.vFo[1]}, {nK*1024}, v{r.vFo[0]}")

def gen_fv_core(A, r, srdF, srdT, sOffF, sOffT, stepT, sM0, sCnt, niter, f_is_A, pfx, flF='', flT='', niter_sreg=None, init=None, hook=None, midhook=None, half_exit=False, midhook2=None):
    NP = 2*ST
    def fload(q):
        s = q % NP
        return [f"buffer_load_dwordx4 {v(r.vF + (s*2+j)*4, 4)}, v{r.vFo[j]}, {srdF}, s{sOffF} offen{flF}" for j in range(2)] + [f"s_add_u32 s{sOffF}, s{sOffF}, 1024"]
    def tdma(st):
        o = [f"s_add_u32 m0, s{sM0}, {st*16384}", "s_nop 0"]
        o += [f"buffer_load_dwordx4 v{r.vDma[m]}, {srdT}, s{sOffT} offen offset:{m*1024}{flT} lds" for m in range(4)]
        o.append(f"s_add_u32 s{sOffT}, s{sOffT}, {stepT}")
        return o
    def treads(st, kb, buf):
        out = []
        h = st // 4
        for j in range(8):
            for hh in range(2):
                off = (st % 4)*16384 + (32*kb + 16*hh)*256
                out.append(f"ds_read_b64_tr_b16 {v(r.vT + buf*32 + 4*j + 2*hh, 2)}, v{r.vRd[h][j]} offset:{off}")
        return out
    def mfmas(q, buf):
        out = []
        s = q % NP
        for j in range(8):
            for i in range(2):
                f = v(r.vF + (s*2+i)*4, 4); t = v(r.vT + buf*32 + 4*j, 4)
                if f_is_A:
                    d = a((i*8+j)*4, 4); out.append(f"v_mfma_f32_16x16x32_bf16 {d}, {f}, {t}, {d}")
                else:
                    d = a((j*2+i)*4, 4); out.append(f"v_mfma_f32_16x16x32_bf16 {d}, {t}, {f}, {d}")
        return out
    isv = lambda x: x.startswith('buffer_load')
    ops = []
    pro = []
    if hook is None:
        for st in range(ST):
            pro.append(('T', st))
            pro.append(('F', 2*st))
            if 2*st+1 < NP-1: pro.append(('F', 2*st+1))
    else:
        pro = [('T', st) for st in range(ST)] + [('F', q) for q in range(NP-1)]
    for k, x in pro:
        ops += [(k, x)] * (4 if k == 'T' else 2)
    waits = {}
    def need(tags):
        idx = max(i for i, o in enumerate(ops) if o in tags)
        return len(ops) - 1 - idx
    first_wait = need({('T', 0)})
    seqw = []
    for q in range(3*NP):
        st, kb = q // 2, q % 2
        tags = {('F', q)}
        if kb == 1: tags.add(('T', st+1))
        seqw.append(need(tags))
        ops += [('F', q + NP - 1)] * 2
        if kb == 1: ops += [('T', st + ST)] * 4
    W = [min(seqw[q], seqw[q+NP], seqw[q+2*NP]) for q in range(NP)]
    assert max(W) <= 63 and first_wait <= 63, (W, first_wait)
    if init is not None:
        for ins in init: A(ins)
    hooked = False
    for k, x in pro:
        if hook is not None and k == 'F' and not hooked:
            hook(); hooked = True
        for ins in (tdma(x) if k == 'T' else fload(x)): A(ins)
    if init is None:
        for q in range(64): A(f"v_accvgpr_write_b32 a{q}, 0")
    if niter_sreg is None: A(f"s_mov_b32 s{sCnt}, {niter}")
    else: A(f"s_mov_b32 s{sCnt}, s{niter_sreg}")
    A(f"s_waitcnt vmcnt({first_wait})")
    A("s_barrier")
    for x in treads(0, 0, 0): A(x)
    A.label(f"{pfx}_loop")
    if midhook is not None:
        cntval, fn = midhook
        A(f"s_cmp_lg_u32 s{sCnt}, {cntval}")
        A(f"s_cbranch_scc1 {pfx}_nomid")
        fn()
        A.label(f"{pfx}_nomid")
    for q in range(NP):
        if midhook2 is not None and q == midhook2[1]:
            A(f"s_cmp_lg_u32 s{sCnt}, {midhook2[0]}")
            A(f"s_cbranch_scc1 {pfx}_nomid2")
            midhook2[2]()
            A.label(f"{pfx}_nomid2")
        if half_exit and q == NP // 2:
            A(f"s_cmp_eq_u32 s{sCnt}, 1")
            A(f"s_cbranch_scc1 {pfx}_done")
        st, kb = q // 2, q % 2
        buf = q & 1
        A(f"s_waitcnt vmcnt({W[q]}) lgkmcnt(0)")
        if kb == 1:
            A("s_barrier")
            fill = treads((st+1) % ST, 0, buf ^ 1) + fload(q + NP - 1) + tdma(st)
        else:
            fill = treads(st, 1, buf ^ 1) + fload(q + NP - 1)
        main = mfmas(q, buf)
        out = []; fi = 0
        for x in main:
            out.append(x)
            for _ in range(2):
                if fi < len(fill): out.append(fill[fi]); fi += 1
        out += fill[fi:]
        for x in out: A(x)
    A(f"s_sub_u32 s{sCnt}, s{sCnt}, 1")
    A(f"s_cmp_lg_u32 s{sCnt}, 0")
    A(f"s_cbranch_scc1 {pfx}_loop")
    A.label(f"{pfx}_done")
    return W
```

```python
from asmlib import *
from gemm import *
from kern_g1 import common_regs
from gemmfv import *
from mega_pre import *
from mega_ext import ln_task, g5a_task, FL_H2CNT, FL_X1G, tail_g5g6
from kern_attn import attn_body
import chain as chainmod
import struct, math
def f2u(x): return struct.unpack('<I', struct.pack('<f', x))[0]

sWS=8; sWt=12; sAux=16; sW=20; sWr=21; sWc=22; sTn=23; sTm=24; sOffR=25; sOffC=26; sCnt=27; sM0R=28; sM0C=29
s1=30; s2=31; sMat=32; sHead=33; sSeg=34; sBase=35; s3=36; s4=37; sX=38; sTask=39; sBud=40; sSig=41; sEx=42
sPq=44; sPk=46; sPv=48; sPo=50; sPx=52; sCexp=54; sTg=55; sA1=56; sA2=57; sA3=58; sA4=59; sI=60; sSlot=61
LDS_TASK = 131072
ws = f"s[{sWS}:{sWS+3}]"; wt = f"s[{sWt}:{sWt+3}]"; aux = f"s[{sAux}:{sAux+3}]"
vLane, vCol, vG, vL16 = 1, 2, 3, 4
WBUD = 2000000
USE_FV = True
G5A = False
MERGE_PRE = True
LN_IN = True
FUSE_TAIL = True
FORCE_FB = 32
NWORK = 16

def wait_counter(A, name, soff_expr_lines, target, lbl, sleep=12, vt=(5, 6)):
    A(soff_expr_lines)
    A(f"""
    s_cmp_lg_u32 s{sW}, 0
    s_cbranch_scc1 {lbl}_ok
    v_mov_b32 v{vt[0]}, 0
    {lbl}:
    buffer_load_dword v{vt[1]}, v{vt[0]}, {ws}, s{s1} offen sc1
    s_waitcnt vmcnt(0)
    v_readfirstlane_b32 s{s2}, v{vt[1]}
    s_cmp_ge_u32 s{s2}, {target}
    s_cbranch_scc1 {lbl}_ok
    s_sub_u32 s{sBud}, s{sBud}, 1
    s_cbranch_scc1 {name}_exit
    s_sleep {sleep}
    s_branch {lbl}
    {lbl}_ok:
    s_barrier
    """)

def set_wt(A, p, size):
    A(f"s_mov_b32 s{sWt}, s{p}"); A(f"s_mov_b32 s{sWt+1}, s{p+1}"); A(f"s_mov_b32 s{sWt+2}, {size}"); A(f"s_mov_b32 s{sWt+3}, 0x20000")

def store_pack(A, e, srcs, addr_v, soff, off, fl):
    for hh in range(2):
        for r in range(4): A(f"v_accvgpr_read_b32 v{e+4*hh+r}, a{srcs[hh]+r}")
    A(f"v_cvt_pk_bf16_f32 v{e}, v{e}, v{e+1}")
    A(f"v_cvt_pk_bf16_f32 v{e+1}, v{e+2}, v{e+3}")
    A(f"v_cvt_pk_bf16_f32 v{e+2}, v{e+4}, v{e+5}")
    A(f"v_cvt_pk_bf16_f32 v{e+3}, v{e+6}, v{e+7}")
    A(f"buffer_store_dwordx4 {v(e,4)}, v{addr_v}, {ws}, s{soff} offen offset:{off}{fl}")

def g1_tile(A, name, n, ksps, S, isv, fl):
    sF = Side('F', n, ksps); sT = Side('T', n, ksps)
    sR, sC = (sF, sT) if isv else (sT, sF)
    d = common_regs(n, n, sR, sC)
    regs = dict(d); regs.update(sM0R=sM0R, sM0C=sM0C, sCnt=sCnt, ldsR=0, ldsC=65536, acc=lambda i,j: (i*n+j)*4)
    tmp = {'v': d['t'], 's': (s1, s2)}
    setup_side(A, sR, regs, 'R', sW, sWr, vLane, vCol, vG, tmp, 8192, 32, 0)
    setup_side(A, sC, regs, 'C', sW, sWc, vLane, vCol, vG, tmp, 8192, 32, 65536)
    sH, sWo = (sOffR, sOffC) if isv else (sOffC, sOffR)
    A(f"""
    s_lshl_b32 s{sH}, s{sTm}, 15
    s_add_u32 s{sH}, s{sH}, {WS['H']}
    s_lshl_b32 s{sWo}, s{sHead}, 8
    """)
    stepH, stepW = ksps*1024, 32*ksps*8192
    if isv: gen_gemm_core(A, sR, sC, 32//ksps, S, ws, wt, sOffR, sOffC, stepH, stepW, regs, pfx=name, ldflagR=' sc1', dbg=BIGDBG, ldflagC=BIGFL)
    else:   gen_gemm_core(A, sR, sC, 32//ksps, S, wt, ws, sOffR, sOffC, stepW, stepH, regs, pfx=name, ldflagC=' sc1', dbg=BIGDBG, ldflagR=BIGFL)
    ep = d['vEp']; acc = regs['acc']
    A.nop(8)
    tokhalf, feathalf = (sWr, sWc) if isv else (sWc, sWr)
    A(f"""
    s_lshr_b32 s{sSeg}, s{sTm}, 1
    s_mul_i32 s{s1}, s{tokhalf}, {n//2}
    s_add_u32 s{sSeg}, s{sSeg}, s{s1}
    s_lshl_b32 s{sBase}, s{sSeg}, 5
    s_add_u32 s{sBase}, s{sBase}, s{sHead}
    """)
    if n == 8: A(f"s_add_u32 s{sBase}, s{sBase}, s{feathalf}")
    A(f"s_lshl_b32 s{sBase}, s{sBase}, 13")
    if n == 4:
        A(f"s_lshl_b32 s{s1}, s{feathalf}, {12 if isv else 11}")
        A(f"s_add_u32 s{sBase}, s{sBase}, s{s1}")
    if not isv:
        A(f"s_lshl_b32 s{s1}, s{sMat}, 24")
        A(f"s_add_u32 s{sBase}, s{sBase}, s{s1}")
        A(f"s_add_u32 s{sBase}, s{sBase}, {WS['Q']}")
        k = 0
        for j in range(n):
            A(f"s_add_u32 s{s1}, s{sBase}, {(j>>1)*(1<<18) + (j&1)*4096}")
            for p in range(n//2):
                e = ep + (k % 4)*8; k += 1
                store_pack(A, e, (acc(2*p, j), acc(2*p+1, j)), vL16, s1, p*1024, fl)
    else:
        A(f"s_add_u32 s{sBase}, s{sBase}, {WS['VT']}")
        k = 0
        for pp in range(n//2):
            for j in range(n):
                if j % 4 == 0:
                    A(f"s_add_u32 s{s1}, s{sBase}, {pp*(1<<18) + (j//4)*4096}")
                e = ep + (k % 4)*8; k += 1
                store_pack(A, e, (acc(2*pp, j), acc(2*pp+1, j)), vL16, s1, (j%4)*1024, fl)

def g4_tile(A, name, ksps, S, fl, ldfl, split=False, wname=None):
    sR = Side('T', 4, ksps); sC = Side('F', 4, ksps)
    d = common_regs(4, 4, sR, sC)
    regs = dict(d); regs.update(sM0R=sM0R, sM0C=sM0C, sCnt=sCnt, ldsR=0, ldsC=65536, acc=lambda i,j: (i*4+j)*4)
    tmp = {'v': d['t'], 's': (s1, s2)}
    set_wt(A, sPo, 4096*1024*2)
    A(f"s_mov_b32 s{sAux}, s{sPx}"); A(f"s_mov_b32 s{sAux+1}, s{sPx+1}"); A(f"s_mov_b32 s{sAux+2}, {2048*1024*2}"); A(f"s_mov_b32 s{sAux+3}, 0x20000")
    setup_side(A, sR, regs, 'R', sW, sWr, vLane, vCol, vG, tmp, 2048, None, 0)
    setup_side(A, sC, regs, 'C', sW, sWc, vLane, vCol, vG, tmp, None, 128, 65536)
    A(f"s_lshl_b32 s{sOffR}, s{sX}, 8")
    A(f"s_lshl_b32 s{sOffC}, s{sTg}, 20")
    A(f"s_add_u32 s{sOffC}, s{sOffC}, {WS['O']}")
    bk = 32*ksps
    if split:
        A(f"s_lshl_b32 s{s1}, s{sI}, 20")
        A(f"s_add_u32 s{sOffR}, s{sOffR}, s{s1}")
        A(f"s_lshl_b32 s{s1}, s{sI}, 14")
        A(f"s_add_u32 s{sOffC}, s{sOffC}, s{s1}")
    gen_gemm_core(A, sR, sC, (512 if split else 4096)//bk, S, wt, ws, sOffR, sOffC, bk*2048, ksps*1024, regs, pfx=name, ldflagC=ldfl)
    if split:
        acc = regs['acc']
        A.nop(8)
        A(f"""
        s_sub_u32 s{s1}, s{sTg}, 13
        s_lshl_b32 s{s1}, s{s1}, 3
        s_add_u32 s{s1}, s{s1}, s{sI}
        s_lshl_b32 s{s1}, s{s1}, 19
        s_lshl_b32 s{s2}, s{sWc}, 18
        s_add_u32 s{s1}, s{s1}, s{s2}
        s_lshl_b32 s{s2}, s{sX}, 13
        s_add_u32 s{s1}, s{s1}, s{s2}
        s_lshl_b32 s{s2}, s{sWr}, 12
        s_add_u32 s{s1}, s{s1}, s{s2}
        s_add_u32 s{s1}, s{s1}, {WS['P4']}
        v_lshlrev_b32 v5, 5, v{vLane}
        """)
        for j in range(4):
            A(f"s_add_u32 s{s2}, s{s1}, {j*65536}")
            for p in range(2):
                for hh in range(2):
                    A(f"buffer_store_dwordx4 {a(acc(2*p+hh, j),4)}, v5, {ws}, s{s2} offen offset:{p*2048 + hh*16} sc1")
        g4_split_reduce(A, name, wname)
        return
    acc = regs['acc']; ep = d['vEp']; t1, t2, t3 = d['t']
    vF = d['vFR']; vF2 = d['vFC']
    A.nop(8)
    A(f"""
    v_lshlrev_b32 v{t1}, 11, v{vCol}
    v_lshl_add_u32 v{t1}, v{vG}, 3, v{t1}
    v_lshlrev_b32 v{t2}, 4, v{vG}
    s_lshl_b32 s{s1}, s{sX}, 7
    s_lshl_b32 s{s2}, s{sWr}, 6
    s_add_u32 s{s1}, s{s1}, s{s2}
    s_lshl_b32 s{s3}, s{s1}, 2
    s_add_u32 s{s3}, s{s3}, {WS['MOD'] + 2*4096}
    """)
    for p in range(2):
        for hh in range(2):
            A(f"buffer_load_dwordx4 {v(vF2+8*p+4*hh,4)}, v{t2}, {ws}, s{s3} offen offset:{(32*p+16*hh)*4}")
    A(f"""
    s_lshl_b32 s{s2}, s{sTg}, 3
    s_lshl_b32 s{s4}, s{sWc}, 2
    s_add_u32 s{s2}, s{s2}, s{s4}
    s_lshl_b32 s{s4}, s{s2}, 15
    s_lshl_b32 s{s3}, s{s1}, 1
    s_add_u32 s{s4}, s{s4}, s{s3}
    s_lshl_b32 s{s2}, s{s2}, 15
    s_lshl_b32 s{s3}, s{s1}, 5
    s_add_u32 s{s2}, s{s2}, s{s3}
    s_add_u32 s{s2}, s{s2}, {WS['X1']}
    """)
    for j in range(4):
        A(f"s_add_u32 s{s3}, s{s4}, {j*16*2048}")
        for p in range(2):
            for hh in range(2):
                A(f"buffer_load_dwordx2 {v(vF+(j*2+p)*4+2*hh,2)}, v{t1}, {aux}, s{s3} offen offset:{(32*p+16*hh)*2}")
    A("s_waitcnt vmcnt(0)")
    k = 0
    for j in range(4):
        A(f"s_add_u32 s{s3}, s{s2}, {j*32768}")
        for p in range(2):
            e = ep + (k % 4)*8; k += 1
            xr = vF + (j*2+p)*4
            for hh in range(2):
                for r in range(4):
                    A(f"v_accvgpr_read_b32 v{e+4*hh+r}, a{acc(2*p+hh, j)+r}")
            for hh in range(2):
                for q in range(2):
                    A(f"v_lshlrev_b32 v{t3}, 16, v{xr+2*hh+q}")
                    A(f"v_fma_f32 v{e+4*hh+2*q}, v{e+4*hh+2*q}, v{vF2+8*p+4*hh+2*q}, v{t3}")
                    A(f"v_and_b32 v{t3}, 0xffff0000, v{xr+2*hh+q}")
                    A(f"v_fma_f32 v{e+4*hh+2*q+1}, v{e+4*hh+2*q+1}, v{vF2+8*p+4*hh+2*q+1}, v{t3}")
            for q in range(4):
                A(f"v_cvt_pk_bf16_f32 v{e+q}, v{e+2*q}, v{e+2*q+1}")
            A(f"buffer_store_dwordx4 {v(e,4)}, v{vL16}, {ws}, s{s3} offen offset:{p*1024}{fl}")

def g4_split_reduce(A, name, wname):
    A(f"""
    s_sub_u32 s{s3}, s{sTg}, 13
    s_lshl_b32 s{s3}, s{s3}, 3
    s_add_u32 s{s3}, s{s3}, s{sX}
    s_lshl_b32 s{s3}, s{s3}, 7
    s_add_u32 s{s3}, s{s3}, {FL_X1RDY}
    s_waitcnt vmcnt(0)
    s_barrier
    s_cmp_lg_u32 s{sW}, 0
    s_cbranch_scc1 {name}_ns
    s_mov_b64 s[{sEx}:{sEx+1}], exec
    s_mov_b64 exec, 1
    v_mov_b32 v6, 0
    v_mov_b32 v7, 1
    buffer_atomic_add v7, v6, {ws}, s{s3} offen
    s_mov_b64 exec, s[{sEx}:{sEx+1}]
    {name}_ns:
    """)
    ftrace(A, 3)
    wait_counter(A, wname, f"s_mov_b32 s{s1}, s{s3}", 8, f"{name}_wp", sleep=1)
    ftrace(A, 4)
    vP = 16
    A(f"""
    s_sub_u32 s{s1}, s{sTg}, 13
    s_lshl_b32 s{s1}, s{s1}, 22
    s_lshl_b32 s{s2}, s{sI}, 16
    s_add_u32 s{s1}, s{s1}, s{s2}
    s_lshl_b32 s{s2}, s{sX}, 2
    s_add_u32 s{s2}, s{s2}, s{sW}               ; dblk
    s_lshl_b32 s{s3}, s{s2}, 11
    s_add_u32 s{s1}, s{s1}, s{s3}
    s_add_u32 s{s1}, s{s1}, {WS['P4']}
    v_lshlrev_b32 v5, 5, v{vLane}
    """)
    for kq in range(8):
        if kq: A(f"s_add_u32 s{s1}, s{s1}, {1<<19}")
        A(f"buffer_load_dwordx4 {v(vP+8*kq,4)}, v{vL16}, {ws}, s{s1} offen sc1")
        A(f"buffer_load_dwordx4 {v(vP+8*kq+4,4)}, v{vL16}, {ws}, s{s1} offen offset:1024 sc1")
    A(f"""
    v_lshlrev_b32 v6, 11, v{vCol}
    v_lshl_add_u32 v6, v{vG}, 3, v6
    s_lshl_b32 s{s3}, s{sTg}, 3
    s_add_u32 s{s3}, s{s3}, s{sI}
    s_lshl_b32 s{s4}, s{s3}, 15
    s_lshl_b32 s{s1}, s{s2}, 6
    s_add_u32 s{s4}, s{s4}, s{s1}
    buffer_load_dwordx2 v[88:89], v6, {aux}, s{s4} offen
    buffer_load_dwordx2 v[90:91], v6, {aux}, s{s4} offen offset:32
    v_lshlrev_b32 v7, 4, v{vG}
    s_lshl_b32 s{s1}, s{s2}, 7
    s_add_u32 s{s1}, s{s1}, {WS['MOD'] + 2*4096}
    buffer_load_dwordx4 v[92:95], v7, {ws}, s{s1} offen sc1
    buffer_load_dwordx4 v[96:99], v7, {ws}, s{s1} offen offset:64 sc1
    s_lshl_b32 s{s3}, s{s3}, 15
    s_lshl_b32 s{s1}, s{s2}, 10
    s_add_u32 s{s3}, s{s3}, s{s1}
    s_add_u32 s{s3}, s{s3}, {WS['X1']}
    s_waitcnt vmcnt(0)
    """)
    for kq in range(1, 8):
        for q in range(8): A(f"v_add_f32 v{vP+q}, v{vP+q}, v{vP+8*kq+q}")
    for q in range(4):
        A(f"v_lshlrev_b32 v100, 16, v{88+q}")
        A(f"v_fma_f32 v{vP+2*q}, v{vP+2*q}, v{92+2*q}, v100")
        A(f"v_and_b32 v100, 0xffff0000, v{88+q}")
        A(f"v_fma_f32 v{vP+2*q+1}, v{vP+2*q+1}, v{92+2*q+1}, v100")
    for q in range(4):
        A(f"v_cvt_pk_bf16_f32 v{vP+q}, v{vP+2*q}, v{vP+2*q+1}")
    A(f"buffer_store_dwordx4 {v(vP,4)}, v{vL16}, {ws}, s{s3} offen sc1")
    ftrace(A, 5)
    A(f"s_lshl_b32 s{sSig}, s{sTg}, 7")
    A(f"s_add_u32 s{sSig}, s{sSig}, {FL_X1G}")


def fv_kv_tile(A, name, isv, fl, wname=None):
    r = FVRegs()
    fv_setup(A, r, sW, sM0R, s1, s2, 8192, 32)
    A(f"""
    s_lshl_b32 s{sOffR}, s{sTm}, 15
    s_add_u32 s{sOffR}, s{sOffR}, {WS['H']}
    s_lshl_b32 s{sOffC}, s{sHead}, 8
    """)
    def hookH():
        A(f"s_lshr_b32 s{s3}, s{sTm}, 3"); A(f"s_lshl_b32 s{s3}, s{s3}, 2"); A(f"s_add_u32 s{s3}, s{s3}, {DBG_HRDY}")
        wait_dbg(A, wname, None, 8, f"{name}_wh0", sBud, s1, sreg_off=s3, vt=(250, 251))
    gen_fv_core(A, r, ws, wt, sOffR, sOffC, 64*8192, sM0R, sCnt, 2, isv, name, flF=' sc1', hook=hookH if MERGE_PRE else None)
    A.nop(8)
    A(f"""
    s_lshr_b32 s{sSeg}, s{sTm}, 1
    s_add_u32 s{sSeg}, s{sSeg}, s{sW}
    s_lshl_b32 s{sBase}, s{sSeg}, 5
    s_add_u32 s{sBase}, s{sBase}, s{sHead}
    s_lshl_b32 s{sBase}, s{sBase}, 13
    """)
    ep = r.vEp
    if not isv:
        A(f"s_lshl_b32 s{s1}, s{sMat}, 24")
        A(f"s_add_u32 s{sBase}, s{sBase}, s{s1}")
        A(f"s_add_u32 s{sBase}, s{sBase}, {WS['Q']}")
        k = 0
        for j in range(2):
            A(f"s_add_u32 s{s1}, s{sBase}, {j*4096}")
            for p in range(4):
                e = ep + (k % 4)*8; k += 1
                store_pack(A, e, (((2*p)*2+j)*4, ((2*p+1)*2+j)*4), r.vL16, s1, p*1024, fl)
    else:
        A(f"s_add_u32 s{sBase}, s{sBase}, {WS['VT']}")
        for j in range(8):
            if j % 4 == 0: A(f"s_add_u32 s{s1}, s{sBase}, {(j//4)*4096}")
            e = ep + (j % 4)*8
            store_pack(A, e, (j*4, (8+j)*4), r.vL16, s1, (j%4)*1024, fl)

def fv_g4_tile(A, name, split=False, wname=None, hook=None):
    r = FVRegs()
    set_wt(A, sPo, 4096*1024*2)
    A(f"s_mov_b32 s{sAux}, s{sPx}"); A(f"s_mov_b32 s{sAux+1}, s{sPx+1}"); A(f"s_mov_b32 s{sAux+2}, {2048*1024*2}"); A(f"s_mov_b32 s{sAux+3}, 0x20000")
    fv_setup(A, r, sW, sM0R, s1, s2, 2048, 128)
    A(f"s_lshl_b32 s{sOffC}, s{sX}, 8")
    A(f"s_lshl_b32 s{sOffR}, s{sTg}, 20")
    A(f"s_add_u32 s{sOffR}, s{sOffR}, {WS['O']}")
    if split:
        A(f"s_lshl_b32 s{s1}, s{sI}, 20")
        A(f"s_add_u32 s{sOffC}, s{sOffC}, s{s1}")
        A(f"s_lshl_b32 s{s1}, s{sI}, 14")
        A(f"s_add_u32 s{sOffR}, s{sOffR}, s{s1}")
    gen_fv_core(A, r, ws, wt, sOffR, sOffC, 64*2048, sM0R, sCnt, 1 if split else 8, False, name, flF=' sc1', hook=hook)
    acc = lambda i, j: (i*2+j)*4
    A.nop(8)
    t1, t2, t3 = r.t
    if split: ftrace(A, 2)
    if split:
        A(f"""
        s_sub_u32 s{s1}, s{sTg}, 13
        s_lshl_b32 s{s1}, s{s1}, 3
        s_add_u32 s{s1}, s{s1}, s{sI}
        s_lshl_b32 s{s1}, s{s1}, 19
        s_lshl_b32 s{s2}, s{sW}, 17
        s_add_u32 s{s1}, s{s1}, s{s2}
        s_lshl_b32 s{s2}, s{sX}, 13
        s_add_u32 s{s1}, s{s1}, s{s2}
        s_add_u32 s{s1}, s{s1}, {WS['P4']}
        v_lshlrev_b32 v5, 5, v{vLane}
        """)
        for j in range(2):
            for p in range(4):
                if p % 2 == 0: A(f"s_add_u32 s{s2}, s{s1}, {j*65536 + p*2048}")
                for hh in range(2):
                    A(f"buffer_store_dwordx4 {a(acc(2*p+hh, j),4)}, v{vL16}, {ws}, s{s2} offen offset:{(p%2)*2048 + hh*1024} sc1")
        g4_split_reduce(A, name, wname)
        return
    vX = r.vF; vGa = r.vF + 64; ep = r.vT
    A(f"""
    v_lshlrev_b32 v{t1}, 11, v{vCol}
    v_lshl_add_u32 v{t1}, v{vG}, 3, v{t1}
    v_lshlrev_b32 v{t2}, 4, v{vG}
    s_lshl_b32 s{s3}, s{sX}, 9
    s_add_u32 s{s3}, s{s3}, {WS['MOD'] + 2*4096}
    """)
    for p in range(4):
        for hh in range(2):
            A(f"buffer_load_dwordx4 {v(vGa+8*p+4*hh,4)}, v{t2}, {ws}, s{s3} offen offset:{(32*p+16*hh)*4} sc1")
    A(f"""
    s_lshl_b32 s{s2}, s{sTg}, 3
    s_lshl_b32 s{s4}, s{sW}, 1
    s_add_u32 s{s2}, s{s2}, s{s4}
    s_lshl_b32 s{s4}, s{s2}, 15
    s_lshl_b32 s{s3}, s{sX}, 8
    s_add_u32 s{s4}, s{s4}, s{s3}
    s_lshl_b32 s{s2}, s{s2}, 15
    s_lshl_b32 s{s3}, s{sX}, 12
    s_add_u32 s{s2}, s{s2}, s{s3}
    s_add_u32 s{s2}, s{s2}, {WS['X1']}
    """)
    for j in range(2):
        A(f"s_add_u32 s{s3}, s{s4}, {j*16*2048}")
        for p in range(4):
            for hh in range(2):
                A(f"buffer_load_dwordx2 {v(vX+(j*4+p)*4+2*hh,2)}, v{t1}, {aux}, s{s3} offen offset:{(32*p+16*hh)*2}")
    A("s_waitcnt vmcnt(0)")
    k = 0
    for j in range(2):
        A(f"s_add_u32 s{s3}, s{s2}, {j*32768}")
        for p in range(4):
            e = ep + (k % 4)*8; k += 1
            xr = vX + (j*4+p)*4
            for hh in range(2):
                for q in range(4):
                    A(f"v_accvgpr_read_b32 v{e+4*hh+q}, a{acc(2*p+hh, j)+q}")
            for hh in range(2):
                for q in range(2):
                    A(f"v_lshlrev_b32 v{t3}, 16, v{xr+2*hh+q}")
                    A(f"v_fma_f32 v{e+4*hh+2*q}, v{e+4*hh+2*q}, v{vGa+8*p+4*hh+2*q}, v{t3}")
                    A(f"v_and_b32 v{t3}, 0xffff0000, v{xr+2*hh+q}")
                    A(f"v_fma_f32 v{e+4*hh+2*q+1}, v{e+4*hh+2*q+1}, v{vGa+8*p+4*hh+2*q+1}, v{t3}")
            for q in range(4):
                A(f"v_cvt_pk_bf16_f32 v{e+q}, v{e+2*q}, v{e+2*q+1}")
            A(f"buffer_store_dwordx4 {v(e,4)}, v{vL16}, {ws}, s{s3} offen offset:{p*1024} sc1")

FINE = False
BIGDBG = ''
BIGFL = ''
def ftrace(A, idx):
    if not FINE: return
    TRF = WS['END'] + 131072 + 32768
    A(f"""
    s_memrealtime s[64:65]
    s_waitcnt lgkmcnt(0)
    s_lshl_b32 s66, s{sX}, 5
    s_add_u32 s66, s66, s{sTg}
    s_lshl_b32 s66, s66, 5
    s_add_u32 s66, s66, {TRF + idx*4}
    v_mov_b32 v252, s64
    v_mov_b32 v253, 0
    buffer_store_dword v252, v253, {ws}, s66 offen
    """)
NT_KVS, NT_KVB, NT_QB = 16, 28, 16
def gen_extra(A, name, M):
    A.label(f"{name}_ln")
    A(f"""
    s_lshl_b32 s{sTg}, s{sTg}, 3
    s_add_u32 s{sTg}, s{sTg}, s{sX}
    """)
    def hook_ln():
        wait_counter(A, name, f"""
        s_lshr_b32 s{s1}, s{sTg}, 2
        s_lshl_b32 s{s1}, s{s1}, 7
        s_add_u32 s{s1}, s{s1}, {FL_X1G}
        s_cmp_ge_u32 s{sTg}, 56
        s_cselect_b32 s{sSeg}, 64, 8
        """, f"s{sSeg}", f"{name}_wx", sleep=12, vt=(30, 31))
    ln_task(A, name+'_ln', M, hook_ln)
    A(f"""
    s_cmp_lt_u32 s{sTg}, {48 if FUSE_TAIL else 32}
    s_cselect_b32 s{sSig}, 0, 64
    s_cmp_lt_u32 s{sTg}, 56
    s_cselect_b32 s{sSig}, s{sSig}, 32
    s_add_u32 s{sSig}, s{sSig}, {FL_H2CNT}
    s_branch {name}_next
    """)
    A.label(f"{name}_g5a")
    if G5A:
        wait_counter(A, name, f"s_mov_b32 s{s1}, {FL_H2CNT}", 32, f"{name}_wh")
        g5a_task(A, name+'_g5a', M, set_wt)
    A(f"s_branch {name}_next")

def strace(A, idx):
    if not FINE: return
    TRF = WS['END'] + 131072 + 98304
    A(f"""
    s_memrealtime s[64:65]
    s_waitcnt lgkmcnt(0)
    s_lshl_b32 s66, s{sX}, 5
    s_add_u32 s66, s66, s{sSlot}
    s_lshl_b32 s66, s66, 5
    s_add_u32 s66, s66, {TRF + idx*4}
    v_mov_b32 v252, s64
    v_mov_b32 v253, 0
    buffer_store_dword v252, v253, {ws}, s66 offen
    """)

def hwait2(A, name, tag):
    if not MERGE_PRE: return
    A(f"s_lshr_b32 s{s3}, s{sTm}, 3"); A(f"s_lshl_b32 s{s3}, s{s3}, 2"); A(f"s_add_u32 s{s3}, s{s3}, {DBG_HRDY}")
    wait_dbg(A, name, None, 8, f"{name}_wh1{tag}", sBud, s1, sreg_off=s3)
    A(f"s_add_u32 s{s3}, s{s3}, 4")
    wait_dbg(A, name, None, 8, f"{name}_wh2{tag}", sBud, s1, sreg_off=s3)

def gen_worker(A, name, timing=False):
    fl = ' sc1'
    if MERGE_PRE:
        strace(A, 1)
        if FINE:
            A("v_mov_b32 v252, s68"); A(f"buffer_store_dword v252, v253, {ws}, s66 offen offset:-4".replace("offset:-4", "")) if False else None
            A(f"s_sub_u32 s66, s66, 4"); A("v_mov_b32 v252, s68"); A(f"buffer_store_dword v252, v253, {ws}, s66 offen")
        A(f"""
        s_mov_b32 s{sBud}, {WBUD}
        s_mov_b32 s{sTask}, -10
        s_sub_u32 s{s1}, s{sSlot}, 16            ; 0..15
        s_cmp_ge_u32 s{s1}, 4
        s_cbranch_scc1 {name}_nomod
        s_lshl_b32 s{sHead}, s{s1}, 3
        s_add_u32 s{sHead}, s{sHead}, s{sX}
        {name}_modtask:
        """)
        mod_task(A, name, ws, sW, sHead, sEx, sBud)
        A(f"s_cmp_lg_u32 s{sTask}, -10")
        A(f"s_cbranch_scc1 {name}_init")
        A.label(f"{name}_nomod")
        strace(A, 2)
        A(f"""
        s_cmp_lt_u32 s{sSlot}, 28
        s_cbranch_scc1 {name}_lnskip
        s_sub_u32 s{sHead}, s{sSlot}, 28
        s_lshl_b32 s{sHead}, s{sHead}, 3
        s_add_u32 s{sHead}, s{sHead}, s{sX}
        {name}_ln1task:
        """)
        ln1_task(A, name, ws, sW, sHead, sEx, sBud)
        A(f"s_cmp_lg_u32 s{sTask}, -10")
        A(f"s_cbranch_scc1 {name}_init")
        A.label(f"{name}_lnskip")
        strace(A, 3)
        wait_dbg(A, name, DBG_INIT, 256, f"{name}_wi", sBud, s1)
        strace(A, 4)
        A(f"s_cmp_ge_u32 s{sSlot}, {16 + NWORK}")
        A(f"s_cbranch_scc1 {name}_tail0" if FUSE_TAIL else f"s_cbranch_scc1 {name}_exit")
    else:
        A(f"s_cmp_ge_u32 s{sSlot}, {16 + NWORK}")
        A(f"s_cbranch_scc1 {name}_tail0" if FUSE_TAIL else f"s_cbranch_scc1 {name}_exit")
    A(f"s_mov_b32 s{sTask}, 0")
    A.label(f"{name}_init")
    A(f"""
    s_load_dwordx2 s[{sPq}:{sPq+1}], s[0:1], {KA['Wq']}
    s_load_dwordx2 s[{sPk}:{sPk+1}], s[0:1], {KA['Wk']}
    s_load_dwordx2 s[{sPv}:{sPv+1}], s[0:1], {KA['Wv']}
    s_load_dwordx2 s[{sPo}:{sPo+1}], s[0:1], {KA['Wo']}
    s_load_dwordx2 s[{sPx}:{sPx+1}], s[0:1], {KA['x']}
    s_lshr_b32 s{sWr}, s{sW}, 1
    s_and_b32 s{sWc}, s{sW}, 1
    s_mov_b32 s{sBud}, {WBUD}
    s_mov_b32 s{sCexp}, {hex(f2u((128 ** -0.5) * math.log2(math.e)))}
    s_mov_b32 s{sSig}, 0
    s_waitcnt lgkmcnt(0)
    s_mov_b32 s62, -1
    TRACE_POST
    s_cmp_eq_u32 s{sTask}, -2
    s_cbranch_scc1 {name}_g4s
    s_cmp_eq_u32 s{sTask}, -3
    s_cbranch_scc0 {name}_next
    s_add_u32 s{sSeg}, s{sTg}, {62 - 24}
    s_mov_b32 s{sTg}, 15
    s_mov_b32 s{sI}, 1
    s_branch {name}_attgo
    {name}_next:
    s_waitcnt vmcnt(0) lgkmcnt(0)
    s_barrier
    s_cmp_lg_u32 s{sW}, 0
    s_cbranch_scc1 {name}_nf
    s_mov_b64 s[{sEx}:{sEx+1}], exec
    s_mov_b64 exec, 1
    TRACE_END
    v_mov_b32 v5, 0
    v_mov_b32 v6, 1
    s_cmp_eq_u32 s{sSig}, 0
    s_cbranch_scc1 {name}_nosig
    s_and_b32 s{s1}, s{sSig}, 0xfffffffe
    s_bitcmp1_b32 s{sSig}, 0
    s_cbranch_scc0 {name}_sig1
    v_mov_b32 v6, 2
    buffer_atomic_add v6, v5, {ws}, s{s1} offen offset:128
    {name}_sig1:
    buffer_atomic_add v6, v5, {ws}, s{s1} offen
    {name}_nosig:
    s_cmp_eq_u32 s{sTask}, -20
    s_cbranch_scc1 {name}_nofetch
    v_mov_b32 v7, 1
    s_lshl_b32 s{s1}, s{sX}, 7
    s_add_u32 s{s1}, s{s1}, {FL_QHEAD}
    buffer_atomic_add v7, v5, {ws}, s{s1} offen sc0
    s_waitcnt vmcnt(0)
    v_mov_b32 v5, {LDS_TASK}
    ds_write_b32 v5, v7
    s_waitcnt lgkmcnt(0)
    {name}_nofetch:
    s_mov_b64 exec, s[{sEx}:{sEx+1}]
    {name}_nf:
    s_cmp_eq_u32 s{sTask}, -20
    s_cbranch_scc1 {name}_t_g6
    s_barrier
    v_mov_b32 v5, {LDS_TASK}
    ds_read_b32 v6, v5
    s_waitcnt lgkmcnt(0)
    s_nop 0
    v_readfirstlane_b32 s{sTask}, v6
    s_mov_b32 s{sSig}, 0
    s_nop 2
    TRACE_START
    s_cmp_lt_u32 s{sTask}, {NT_KVS}
    s_cbranch_scc1 {name}_kvs
    PREDEC
    s_cmp_lt_u32 s{sTask}, {NT_KVS+NT_KVB}
    s_cbranch_scc1 {name}_kvb
    s_cmp_lt_u32 s{sTask}, {NT_KVS+NT_KVB+NT_QB}
    s_cbranch_scc1 {name}_qb
    s_sub_u32 s{sTask}, s{sTask}, {NT_KVS+NT_KVB+NT_QB}
    """)
    seq = []
    g5 = list(range(28))
    for tg in range(14):
        seq.append(('att', tg))
        if tg >= 1: seq.append(('g4', tg-1))
        if (G5A or LN_IN) and tg >= 2 and tg % 2 == 0: seq.append(('ln', (tg-2)//2))
        if tg == 9:
            for k in range(4): seq.append(('pf', k))
        if G5A and tg >= 10:
            for i in g5[(tg-10)*7:(tg-9)*7]: seq.append(('g5a', i))
    seq += [('att', 14), ('att', 15), ('g4', 13)]
    for kq in range(8): seq.append(('g4s', 8 + kq))
    if LN_IN and not FUSE_TAIL: seq += [('ln', 6), ('ln', 7)]
    print('worker tail sequence length', len(seq))
    tcode = {'att': 0, 'g4': 1, 'g4s': 2, 'pf': 3, 'ln': 4, 'g5a': 5}
    codes = [tcode[t]*32 + a for t, a in seq]
    while len(codes) % 4: codes.append(0xff)
    A(f"s_cmp_ge_u32 s{sTask}, {len(seq)}")
    A(f"s_cbranch_scc1 {name}_tail" if FUSE_TAIL else f"s_cbranch_scc1 {name}_exit")
    A(f"s_lshr_b32 s{s1}, s{sTask}, 2")
    A(f"s_mov_b32 s{s2}, 0")
    for w in range(len(codes)//4):
        val = codes[4*w] | codes[4*w+1] << 8 | codes[4*w+2] << 16 | codes[4*w+3] << 24
        A(f"s_cmp_eq_u32 s{s1}, {w}")
        A(f"s_cselect_b32 s{s2}, {hex(val)}, s{s2}")
    A(f"""
    s_and_b32 s{s1}, s{sTask}, 3
    s_lshl_b32 s{s1}, s{s1}, 3
    s_lshr_b32 s{s2}, s{s2}, s{s1}
    s_and_b32 s{sTg}, s{s2}, 31
    s_bfe_u32 s{s2}, s{s2}, 0x30005
    s_cmp_eq_u32 s{s2}, 0
    s_cbranch_scc1 {name}_att
    s_cmp_eq_u32 s{s2}, 1
    s_cbranch_scc1 {name}_g4
    s_cmp_eq_u32 s{s2}, 2
    s_cbranch_scc1 {name}_g4s
    s_cmp_eq_u32 s{s2}, 4
    s_cbranch_scc1 {name}_ln
    s_cmp_eq_u32 s{s2}, 5
    s_cbranch_scc1 {name}_g5a
    s_branch {name}_pf
    """)
    predec = ''
    if MERGE_PRE:
        predec = f"""s_cmp_ge_u32 s{sTask}, {NT_KVS + 12}
    s_cbranch_scc1 {name}_pd1
    s_sub_u32 s{sHead}, s{sTask}, {NT_KVS}
    s_lshl_b32 s{sHead}, s{sHead}, 3
    s_add_u32 s{sHead}, s{sHead}, s{sX}
    s_add_u32 s{sHead}, s{sHead}, 32
    s_branch {name}_ln1gate
    {name}_pd1:
    s_cmp_ge_u32 s{sTask}, {NT_KVS + 20}
    s_cbranch_scc1 {name}_pd2
    s_sub_u32 s{sHead}, s{sTask}, {NT_KVS + 12}
    s_lshl_b32 s{sHead}, s{sHead}, 3
    s_add_u32 s{sHead}, s{sHead}, s{sX}
    s_add_u32 s{sHead}, s{sHead}, 32
    s_branch {name}_modgate
    {name}_pd2:
    s_sub_u32 s{sTask}, s{sTask}, 20"""
    for i, ln in enumerate(A.lines):
        if ln.strip() == 'PREDEC':
            A.lines[i] = '\n'.join((x.strip() if x.strip().endswith(':') else '    ' + x.strip()) for x in predec.split('\n')) if predec else ''
    TR = WS['END'] + 131072
    if timing:
        te = f"""s_cmp_eq_u32 s62, -1
    s_cbranch_scc1 {name}_tr0
    s_memrealtime s[64:65]
    s_waitcnt lgkmcnt(0)
    v_mov_b32 v5, s63
    v_mov_b32 v6, s64
    s_lshl_b32 s66, s{sX}, 8
    s_add_u32 s66, s66, s62
    s_lshl_b32 s66, s66, 3
    s_add_u32 s66, s66, {TR}
    v_mov_b32 v7, 0
    buffer_store_dword v5, v7, {ws}, s66 offen
    buffer_store_dword v6, v7, {ws}, s66 offen offset:4
    s_nop 1
    {name}_tr0:"""
        ts = f"""s_mov_b32 s62, s{sTask}
    s_memrealtime s[64:65]
    s_waitcnt lgkmcnt(0)
    s_mov_b32 s63, s64"""
    else:
        te = ts = ''
    for i, ln in enumerate(A.lines):
        if ln.strip() == 'TRACE_END': A.lines[i] = '\n'.join('    ' + x.strip() if not x.strip().endswith(':') else x.strip() for x in te.split('\n')) if te else ''
        if ln.strip() == 'TRACE_POST':
            A.lines[i] = (f"    s_cmp_eq_u32 s{sTask}, -2\n    s_cbranch_scc0 {name}_trp\n    s_add_u32 s62, s{sTg}, 184\n    s_memrealtime s[64:65]\n    s_waitcnt lgkmcnt(0)\n    s_mov_b32 s63, s64\n{name}_trp:" if timing else '')
        if ln.strip() == 'TRACE_START': A.lines[i] = '\n'.join('    ' + x.strip() for x in ts.split('\n')) if ts else ''
    if MERGE_PRE:
        A.label(f"{name}_ln1gate")
        wait_dbg(A, name, DBG_HRDY, 8, f"{name}_g1", sBud, s1, sleep=8)
        A(f"s_branch {name}_ln1task")
        A.label(f"{name}_modgate")
        wait_dbg(A, name, DBG_HRDY, 8, f"{name}_g2", sBud, s1, sleep=8)
        A(f"s_branch {name}_modtask")
    A.label(f"{name}_kvs")
    A(f"""
    s_lshr_b32 s{sMat}, s{sTask}, 2
    s_and_b32 s{sMat}, s{sMat}, 1
    s_add_u32 s{sMat}, s{sMat}, 1
    s_and_b32 s{sHead}, s{sTask}, 3
    s_lshl_b32 s{s1}, s{sX}, 2
    s_add_u32 s{sHead}, s{sHead}, s{s1}
    s_lshr_b32 s{s2}, s{sTask}, 3
    s_lshl_b32 s{sTm}, s{s2}, 3
    s_lshl_b32 s{sSig}, s{sX}, 4
    s_add_u32 s{sSig}, s{sSig}, s{s2}
    s_lshl_b32 s{sSig}, s{sSig}, 7
    s_add_u32 s{sSig}, s{sSig}, {FL_KVRDY}
    """)
    A(f"""
    s_cmp_eq_u32 s{sMat}, 2
    s_cbranch_scc1 {name}_kvs_v
    """)
    set_wt(A, sPk, 1024*4096*2)
    fv_kv_tile(A, name+'_sk', False, fl, name) if USE_FV else g1_tile(A, name+'_sk', 4, 2, 4, False, fl)
    A(f"s_branch {name}_next")
    A.label(f"{name}_kvs_v")
    set_wt(A, sPv, 1024*4096*2)
    fv_kv_tile(A, name+'_sv', True, fl, name) if USE_FV else g1_tile(A, name+'_sv', 4, 2, 4, True, fl)
    A(f"s_branch {name}_next")
    A.label(f"{name}_kvb")
    A(f"""
    s_sub_u32 s{s2}, s{sTask}, {NT_KVS}
    s_lshr_b32 s{s3}, s{s2}, 2
    s_add_u32 s{s3}, s{s3}, 1                    ; tm
    s_lshl_b32 s{sTm}, s{s3}, 4
    s_lshr_b32 s{sMat}, s{s2}, 1
    s_and_b32 s{sMat}, s{sMat}, 1
    s_add_u32 s{sMat}, s{sMat}, 1
    s_and_b32 s{sHead}, s{s2}, 1
    s_lshl_b32 s{sHead}, s{sHead}, 1
    s_lshl_b32 s{s1}, s{sX}, 2
    s_add_u32 s{sHead}, s{sHead}, s{s1}
    s_lshl_b32 s{sSig}, s{sX}, 4
    s_lshl_b32 s{s3}, s{s3}, 1
    s_add_u32 s{sSig}, s{sSig}, s{s3}
    s_lshl_b32 s{sSig}, s{sSig}, 7
    s_add_u32 s{sSig}, s{sSig}, {FL_KVRDY + 1}
    """)
    hwait2(A, name, 'b')
    A(f"""
    s_cmp_eq_u32 s{sMat}, 2
    s_cbranch_scc1 {name}_kvb_v
    """)
    set_wt(A, sPk, 1024*4096*2)
    A.label(f"{name}_bqk")
    g1_tile(A, name+'_bk', 8, 1, 4, False, fl)
    A(f"s_branch {name}_next")
    A.label(f"{name}_kvb_v")
    set_wt(A, sPv, 1024*4096*2)
    g1_tile(A, name+'_bv', 8, 1, 4, True, fl)
    A(f"s_branch {name}_next")
    A.label(f"{name}_qb")
    A(f"""
    s_sub_u32 s{s2}, s{sTask}, {NT_KVS+NT_KVB}
    s_lshr_b32 s{s3}, s{s2}, 1
    s_lshl_b32 s{sTm}, s{s3}, 4
    s_mov_b32 s{sMat}, 0
    s_and_b32 s{sHead}, s{s2}, 1
    s_lshl_b32 s{sHead}, s{sHead}, 1
    s_lshl_b32 s{s1}, s{sX}, 2
    s_add_u32 s{sHead}, s{sHead}, s{s1}
    s_lshl_b32 s{sSig}, s{sX}, 3
    s_add_u32 s{sSig}, s{sSig}, s{s3}
    s_lshl_b32 s{sSig}, s{sSig}, 7
    s_add_u32 s{sSig}, s{sSig}, {FL_QRDY}
    """)
    hwait2(A, name, 'q')
    set_wt(A, sPq, 1024*4096*2)
    A(f"s_branch {name}_bqk")
    A.label(f"{name}_att")
    if MERGE_PRE:
        wait_counter(A, name, f"s_mov_b32 s{s1}, {FL_MOD2}", 64, f"{name}_wm2")
    wait_counter(A, name, f"""
    s_lshl_b32 s{s1}, s{sX}, 3
    s_lshr_b32 s{s2}, s{sTg}, 1
    s_add_u32 s{s1}, s{s1}, s{s2}
    s_lshl_b32 s{s1}, s{s1}, 7
    s_add_u32 s{s1}, s{s1}, {FL_QRDY}
    """, 2, f"{name}_wq")
    wait_counter(A, name, f"""
    s_lshl_b32 s{s1}, s{sX}, 4
    s_add_u32 s{s1}, s{s1}, s{sTg}
    s_lshl_b32 s{s1}, s{s1}, 7
    s_add_u32 s{s1}, s{s1}, {FL_KVRDY}
    """, 8, f"{name}_wkv")
    A(f"""
    s_lshl_b32 s{sSeg}, s{sTg}, 2
    s_cmp_eq_u32 s{sTg}, 15
    s_cselect_b32 s{sI}, 2, 4
    {name}_attgo:
    s_lshl_b32 s{sHead}, s{sX}, 2
    s_add_u32 s{sHead}, s{sHead}, s{sW}
    {name}_attl:
    """)
    wait_counter(A, name, f"""
    s_lshl_b32 s{s1}, s{sX}, 6
    s_add_u32 s{s1}, s{s1}, s{sSeg}
    s_lshl_b32 s{s1}, s{s1}, 6
    s_add_u32 s{s1}, s{s1}, {FL_KVM}
    """, 4, f"{name}_wm")
    attn_body(A, name, sWS, sSeg, sHead, dict(vLane=vLane, vCol=vCol, vG=vG, vL16=vL16, s=(sA1,sA2,sA3,sA4,sCexp), sexec=sEx, kvmflag=' sc1', stflag=' sc1', ldflag=' sc1'))
    A(f"""
    s_add_u32 s{sSeg}, s{sSeg}, 1
    s_sub_u32 s{sI}, s{sI}, 1
    s_cmp_lg_u32 s{sI}, 0
    s_cbranch_scc1 {name}_attl
    s_cmp_eq_u32 s{sTask}, -3
    s_cselect_b32 s{sSig}, 16, s{sTg}
    s_lshl_b32 s{sSig}, s{sSig}, 7
    s_add_u32 s{sSig}, s{sSig}, {FL_ORDY}
    """)
    ftrace(A, 6)
    A(f"s_branch {name}_next")
    A.label(f"{name}_g4")
    wait_counter(A, name, f"""
    s_lshl_b32 s{s1}, s{sTg}, 7
    s_add_u32 s{s1}, s{s1}, {FL_ORDY}
    """, 8, f"{name}_wo")
    fv_g4_tile(A, name+'_g4')
    A(f"""
    s_lshl_b32 s{sSig}, s{sTg}, 7
    s_add_u32 s{sSig}, s{sSig}, {FL_X1G}
    s_branch {name}_next
    """)
    M = dict(globals())
    if not (G5A or LN_IN):
        A.label(f"{name}_ln"); A.label(f"{name}_g5a"); A(f"s_branch {name}_next")
    else: gen_extra(A, name, M)
    A.label(f"{name}_g4s")
    A(f"""
    s_and_b32 s{sI}, s{sTg}, 7
    s_lshr_b32 s{sTg}, s{sTg}, 3
    s_add_u32 s{sTg}, s{sTg}, 13
    """)
    ftrace(A, 0)
    def hook_g4s():
        A(f"""
        s_mov_b32 s{sSeg}, 8
        s_mov_b32 s{s1}, s{sTg}
        s_cmp_lg_u32 s{sTg}, 15
        s_cbranch_scc1 {name}_hw0
        s_cmp_lt_u32 s{sW}, 2
        s_cbranch_scc1 {name}_hw0
        s_mov_b32 s{sSeg}, 16
        s_mov_b32 s{s1}, 16
        {name}_hw0:
        s_lshl_b32 s{s1}, s{s1}, 7
        s_add_u32 s{s1}, s{s1}, {FL_ORDY}
        v_mov_b32 v250, 0
        {name}_hw1:
        buffer_load_dword v251, v250, {ws}, s{s1} offen sc1
        s_waitcnt vmcnt(0)
        v_readfirstlane_b32 s{s2}, v251
        s_cmp_ge_u32 s{s2}, s{sSeg}
        s_cbranch_scc1 {name}_hw2
        s_sub_u32 s{sBud}, s{sBud}, 1
        s_cbranch_scc1 {name}_exit
        s_cmp_eq_u32 s{sTg}, 15
        s_cbranch_scc1 {name}_hw3
        s_sleep 24
        s_branch {name}_hw1
        {name}_hw3:
        s_sleep 2
        s_branch {name}_hw1
        {name}_hw2:
        """)
        ftrace(A, 1)
    fv_g4_tile(A, name+'_g4s', split=True, wname=name, hook=hook_g4s)
    A(f"s_branch {name}_next")
    A.label(f"{name}_pf")
    A(f"""
    s_load_dwordx2 s[{sPq}:{sPq+1}], s[0:1], {KA['w1']}
    s_load_dwordx2 s[{sPk}:{sPk+1}], s[0:1], {KA['w2']}
    s_lshl_b32 s{s1}, s{sX}, 2
    s_add_u32 s{s1}, s{s1}, s{sTg}                 ; chunk 0..31
    s_waitcnt lgkmcnt(0)
    s_cmp_lt_u32 s{s1}, 16
    s_cselect_b32 s{sWt}, s{sPq}, s{sPk}
    s_cselect_b32 s{sWt+1}, s{sPq+1}, s{sPk+1}
    s_mov_b32 s{sWt+2}, {2048*3584*2}
    s_mov_b32 s{sWt+3}, 0x20000
    s_and_b32 s{s1}, s{s1}, 15
    s_mul_i32 s{s1}, s{s1}, {2048*3584*2//16}
    v_lshlrev_b32 v5, 4, v0
    s_mov_b32 s{sI}, {2048*3584*2//16//4096//8}
    {name}_pfl:
    """)
    for q in range(8):
        A(f"buffer_load_dwordx4 {v(16+4*q,4)}, v5, {wt}, s{s1} offen")
        A(f"s_add_u32 s{s1}, s{s1}, 4096")
    A(f"""
    s_waitcnt vmcnt(0)
    s_sub_u32 s{sI}, s{sI}, 1
    s_cmp_lg_u32 s{sI}, 0
    s_cbranch_scc1 {name}_pfl
    s_branch {name}_next
    """)
    if FUSE_TAIL:
        A.label(f"{name}_tail0")
        A(f"""
        s_load_dwordx2 s[{sPq}:{sPq+1}], s[0:1], {KA['Wq']}
        s_load_dwordx2 s[{sPk}:{sPk+1}], s[0:1], {KA['Wk']}
        s_load_dwordx2 s[{sPv}:{sPv+1}], s[0:1], {KA['Wv']}
        s_load_dwordx2 s[{sPo}:{sPo+1}], s[0:1], {KA['Wo']}
        s_load_dwordx2 s[{sPx}:{sPx+1}], s[0:1], {KA['x']}
        s_mov_b32 s{sCexp}, {hex(f2u((128 ** -0.5) * math.log2(math.e)))}
        s_mov_b32 s{sSig}, 0
        s_mov_b32 s62, -1
        s_waitcnt lgkmcnt(0)
        s_lshr_b32 s{sWr}, s{sW}, 1
        s_and_b32 s{sWc}, s{sW}, 1
        s_mov_b32 s{sBud}, {WBUD}
        """)
        A.label(f"{name}_tail")
        tail_g5g6(A, name+'_t', dict(globals()), set_wt, wait_counter, name)

def gen_mega(name='mega_kernel', cdelay=14, timing=False, stamp_step=21, ddelay=0):
    A = Asm()
    A.raw(kernel_header(name))
    A(f"""
    s_cmp_ge_u32 s2, 256
    s_cbranch_scc1 {name}_exit
    {'s_memrealtime s[68:69]' if FINE else ''}
    s_load_dwordx2 s[4:5], s[0:1], {KA['dbg']}
    s_load_dwordx2 s[6:7], s[0:1], {KA['ws']}
    s_getreg_b32 s{sX}, hwreg(HW_REG_XCC_ID)
    s_and_b32 s{sX}, s{sX}, 7
    v_and_b32 v1, 63, v0
    v_lshrrev_b32 v5, 6, v0
    s_nop 0
    v_readfirstlane_b32 s{sW}, v5
    v_and_b32 v2, 15, v1
    v_lshrrev_b32 v3, 4, v1
    v_lshlrev_b32 v4, 4, v1
    s_waitcnt lgkmcnt(0)
    s_mov_b32 s{sWS}, s6
    s_mov_b32 s{sWS+1}, s7
    s_mov_b32 s{sWS+2}, {WS_SIZE}
    s_mov_b32 s{sWS+3}, 0x20000
    s_mov_b32 s16, s4
    s_mov_b32 s17, s5
    s_mov_b32 s18, 256
    s_mov_b32 s19, 0x20000
    s_cmp_eq_u32 s{sW}, 0
    s_cbranch_scc1 {name}_w0
    INITWG
    s_branch {name}_tk
    {name}_w0:
    s_mov_b64 s[{sEx}:{sEx+1}], exec
    s_mov_b64 exec, 1
    v_mov_b32 v5, 1
    s_lshl_b32 s{s1}, s{sX}, 2
    v_mov_b32 v6, s{s1}
    v_mov_b32 v7, 1
    v_mov_b32 v8, 32
    buffer_atomic_add v5, v6, s[16:19], 0 offen sc0
    buffer_atomic_add v7, v8, s[16:19], 0 offen sc0
    s_mov_b32 s{s2}, 4000000
    {name}_cen:
    buffer_load_dword v9, v8, s[16:19], 0 offen sc1
    s_waitcnt vmcnt(0)
    v_readfirstlane_b32 s{s3}, v9
    s_cmp_ge_u32 s{s3}, 256
    s_cbranch_scc1 {name}_cenok
    s_sub_u32 s{s2}, s{s2}, 1
    s_cbranch_scc1 {name}_exit
    s_branch {name}_cen
    {name}_cenok:
    v_mov_b32 v8, 0
    buffer_load_dwordx4 v[12:15], v8, s[16:19], 0 offen sc1
    buffer_load_dwordx4 v[16:19], v8, s[16:19], 0 offen offset:16 sc1
    s_waitcnt vmcnt(0)
    v_min_u32 v12, v12, v13
    v_min_u32 v14, v14, v15
    v_min_u32 v16, v16, v17
    v_min_u32 v18, v18, v19
    v_min_u32 v12, v12, v14
    v_min_u32 v16, v16, v18
    v_min_u32 v12, v12, v16
    v_cmp_gt_u32 vcc, {FORCE_FB}, v12
    s_nop 1
    v_lshrrev_b32 v9, 5, v7
    v_lshlrev_b32 v9, 16, v9
    v_and_b32 v10, 31, v7
    v_or_b32 v9, v9, v10
    v_or_b32 v9, 0x100, v9
    v_mov_b32 v10, s{sX}
    v_lshlrev_b32 v10, 16, v10
    v_or_b32 v10, v10, v5
    v_cndmask_b32 v5, v10, v9, vcc
    v_mov_b32 v6, {LDS_TASK}
    ds_write_b32 v6, v5
    s_waitcnt lgkmcnt(0)
    s_mov_b64 exec, s[{sEx}:{sEx+1}]
    {name}_tk:
    s_waitcnt vmcnt(0)
    s_barrier
    v_mov_b32 v6, {LDS_TASK}
    ds_read_b32 v5, v6
    INITSIG
    s_waitcnt lgkmcnt(0)
    s_nop 0
    v_readfirstlane_b32 s{s2}, v5
    s_nop 3
    s_barrier
    s_lshr_b32 s{sX}, s{s2}, 16
    s_and_b32 s3, s{s2}, 0x100
    s_and_b32 s{s1}, s{s2}, 0xff
    s_cmp_lt_u32 s{s1}, 16
    s_cbranch_scc1 {name}_chain
    s_mov_b32 s{sSlot}, s{s1}
    """)
    touch = []
    def tb(key, size):
        return [f"s_load_dwordx2 s[44:45], s[0:1], {KA[key]}", "s_waitcnt lgkmcnt(0)", "s_mov_b32 s46, %d" % size, "s_mov_b32 s47, 0x20000",
                "buffer_load_dword v11, v10, s[44:47], 0 offen"]
    w2 = tb('x', 4<<20) + tb('wmod', 1024*6144*2) + tb('Wk', 8<<20) + tb('Wv', 8<<20)
    w3 = tb('Wq', 8<<20) + tb('Wo', 8<<20) + tb('w1', 2048*3584*2) + tb('w2', 2048*3584*2) + tb('out', 4<<20)
    touch = [f"s_cmp_eq_u32 s{sW}, 2", f"s_cbranch_scc0 {name}_tw3"] + w2 + [f"s_branch {name}_tk", f"{name}_tw3:"] + w3
    B = Asm(); init_stores_wg(B, ws, name)
    for i, ln in enumerate(A.lines):
        if ln.strip() == 'INITSIG':
            A.lines[i] = (f"    s_cmp_lg_u32 s{sW}, 0\n    s_cbranch_scc1 {name}_is\n    s_mov_b64 s[{sEx}:{sEx+1}], exec\n    s_mov_b64 exec, 1\n    v_mov_b32 v7, {DBG_INIT}\n    v_mov_b32 v8, 1\n    buffer_atomic_add v8, v7, s[16:19], 0 offen\n    s_mov_b64 exec, s[{sEx}:{sEx+1}]\n{name}_is:" if MERGE_PRE else '')
        if ln.strip() == 'INITWG': A.lines[i] = B.text().rstrip() if MERGE_PRE else ''
        if ln.strip() == 'TOUCH':
            A.lines[i] = '\n'.join(x if x.endswith(':') else '    ' + x for x in touch)
    gen_worker(A, name+'_w', timing)
    A.label(f"{name}_w_exit")
    A("s_endpgm")
    A.label(f"{name}_chain")
    A(f"""
    s_mov_b32 s21, s{s1}
    s_mov_b32 s22, s{sW}
    s_mov_b32 s20, s{sX}
    """)
    fast = chainmod.gen_chain(name=name+'_c', cdelay=cdelay, timing=timing, embedded=True, stamp_step=stamp_step, done_label=name+'_post', ddelay=ddelay, merged=MERGE_PRE)
    slow = chainmod.gen_chain(name=name+'_f', cdelay=cdelay, timing=False, embedded=True, done_label=name+'_post', ddelay=ddelay, fallback=True, merged=MERGE_PRE)
    br = f"    s_branch {name}_c_p1\n"
    assert fast.count(br) == 1
    fast = fast.replace(br, f"    s_cmp_lg_u32 s3, 0\n    s_cbranch_scc1 {name}_f_p1\n" + br)
    sb = f"    s_branch {name}_f_p1\n"
    slow = slow[slow.index(sb) + len(sb):]
    A.raw(fast)
    A.raw(slow)
    A.label(f"{name}_post")
    A(f"""
    s_waitcnt vmcnt(0) lgkmcnt(0)
    s_mov_b64 exec, -1
    s_mov_b32 s{sX}, s20
    s_mov_b32 s{sSlot}, s21
    s_add_u32 s{sTg}, s21, 16
    s_mov_b32 s{sW}, s22
    v_and_b32 v1, 63, v0
    v_and_b32 v2, 15, v1
    v_lshrrev_b32 v3, 4, v1
    v_lshlrev_b32 v4, 4, v1
    s_cmp_ge_u32 s{sSlot}, 10
    s_cbranch_scc1 {name + ('_w_tail0' if FUSE_TAIL else '_exit')}
    s_cmp_ge_u32 s{sSlot}, 8
    s_cselect_b32 s{sTask}, -3, -2
    s_branch {name}_w_init
    """)
    A.label(f"{name}_exit")
    A("s_endpgm")
    return A.text()

def mega_desc(name='mega_kernel'):
    return kernel_desc(name, 512, 100, 256)
```

```python
from asmlib import *
from gemmfv import *
import struct, math
def f2u(x): return struct.unpack('<I', struct.pack('<f', x))[0]
FL_H2CNT = FL_H2RDY
FL_X1G = FL_H2RDY + 128

def ln_task(A, name, M, hook=None):
    s1, s2, s3, s4, sW, sI, sTg, ws, vG, vCol, vL16 = M['s1'], M['s2'], M['s3'], M['s4'], M['sW'], M['sI'], M['sTg'], M['ws'], M['vG'], M['vCol'], M['vL16']
    vX = 32; vL = 96; vM = 128; PITCH = 2048 + 32; RED = 66816
    A(f"""
    v_lshlrev_b32 v7, 4, v{vG}
    s_lshl_b32 s{s1}, s{sW}, 10
    s_add_u32 s{s3}, s{s1}, {WS['MOD'] + 3*4096}
    s_add_u32 s{s4}, s{s1}, {WS['MOD'] + 4*4096}
    """)
    for kb in range(8):
        m = vM + kb*16
        A(f"buffer_load_dwordx4 v[{m}:{m+3}], v7, {ws}, s{s4} offen offset:{kb*128} sc1")
        A(f"buffer_load_dwordx4 v[{m+4}:{m+7}], v7, {ws}, s{s4} offen offset:{kb*128+64} sc1")
        A(f"buffer_load_dwordx4 v[{m+8}:{m+11}], v7, {ws}, s{s3} offen offset:{kb*128} sc1")
        A(f"buffer_load_dwordx4 v[{m+12}:{m+15}], v7, {ws}, s{s3} offen offset:{kb*128+64} sc1")
    if hook is not None: hook()
    A(f"""
    s_lshl_b32 s{s1}, s{sTg}, 16
    s_lshl_b32 s{s2}, s{sW}, 13
    s_add_u32 s{s1}, s{s1}, s{s2}
    s_add_u32 s{s1}, s{s1}, {WS['X1']}
    s_add_u32 s{s2}, s{s1}, 4096
    """)
    for kb in range(8):
        A(f"buffer_load_dwordx4 v[{vL+4*kb}:{vL+4*kb+3}], v{vL16}, {ws}, s{s1 if kb < 4 else s2} offen offset:{(kb%4)*1024} sc1")
    A(f"s_add_u32 s{s1}, s{s1}, 32768"); A(f"s_add_u32 s{s2}, s{s2}, 32768")
    for kb in range(8):
        A(f"buffer_load_dwordx4 a[{4*kb}:{4*kb+3}], v{vL16}, {ws}, s{s1 if kb < 4 else s2} offen offset:{(kb%4)*1024} sc1")
    A(f"s_mov_b32 s{sI}, 0")
    A("s_waitcnt vmcnt(8)")
    A(f"s_branch {name}_tl")
    A.label(f"{name}_t2")
    A("s_waitcnt vmcnt(0)")
    for q in range(32): A(f"v_accvgpr_read_b32 v{vL+q}, a{q}")
    A.label(f"{name}_tl")
    for q in range(32):
        A(f"v_lshlrev_b32 v{vX+2*q}, 16, v{vL+q}")
        A(f"v_and_b32 v{vX+2*q+1}, 0xffff0000, v{vL+q}")
    def reduce_all(reg, ldsoff):
        A(f"""
        v_mov_b32 v9, v{reg}
        s_nop 1
        v_permlane16_swap_b32 v{reg}, v9
        s_nop 1
        v_add_f32 v{reg}, v{reg}, v9
        v_mov_b32 v9, v{reg}
        s_nop 1
        v_permlane32_swap_b32 v{reg}, v9
        s_nop 1
        v_add_f32 v{reg}, v{reg}, v9
        v_lshlrev_b32 v10, 2, v{vCol}
        v_add_u32 v10, {RED}, v10
        s_lshl_b32 s{s1}, s{sW}, 6
        v_add_u32 v11, s{s1}, v10
        ds_write_b32 v11, v{reg} offset:{ldsoff}
        s_waitcnt lgkmcnt(0)
        s_barrier
        ds_read_b32 v12, v10 offset:{ldsoff}
        ds_read_b32 v13, v10 offset:{ldsoff+64}
        ds_read_b32 v14, v10 offset:{ldsoff+128}
        ds_read_b32 v15, v10 offset:{ldsoff+192}
        s_waitcnt lgkmcnt(0)
        v_add_f32 v12, v12, v13
        v_add_f32 v14, v14, v15
        v_add_f32 v{reg}, v12, v14
        """)
    A(f"v_add_f32 v8, v{vX}, v{vX+1}"); A(f"v_add_f32 v16, v{vX+2}, v{vX+3}"); A(f"v_add_f32 v17, v{vX+4}, v{vX+5}"); A(f"v_add_f32 v18, v{vX+6}, v{vX+7}")
    for q in range(8, 64, 4):
        A(f"v_add_f32 v8, v8, v{vX+q}"); A(f"v_add_f32 v16, v16, v{vX+q+1}"); A(f"v_add_f32 v17, v17, v{vX+q+2}"); A(f"v_add_f32 v18, v18, v{vX+q+3}")
    A("v_add_f32 v8, v8, v16"); A("v_add_f32 v17, v17, v18"); A("v_add_f32 v8, v8, v17")
    reduce_all(8, 0)
    A(f"v_mul_f32 v16, {hex(f2u(1/1024))}, v8")
    for q in range(64): A(f"v_sub_f32 v{vX+q}, v{vX+q}, v16")
    A(f"v_mul_f32 v8, v{vX}, v{vX}"); A(f"v_mul_f32 v17, v{vX+1}, v{vX+1}")
    for q in range(2, 64, 2):
        A(f"v_fmac_f32 v8, v{vX+q}, v{vX+q}"); A(f"v_fmac_f32 v17, v{vX+q+1}, v{vX+q+1}")
    A("v_add_f32 v8, v8, v17")
    reduce_all(8, 512)
    A(f"""
    v_mov_b32 v17, {hex(f2u(1e-5))}
    v_fmac_f32 v17, {hex(f2u(1/1024))}, v8
    v_rsq_f32 v17, v17
    s_lshl_b32 s{s1}, s{sI}, 4
    v_add_u32 v18, s{s1}, v{vCol}
    v_mul_u32_u24 v18, {PITCH}, v18
    v_lshl_add_u32 v18, v{vG}, 3, v18
    s_lshl_b32 s{s1}, s{sW}, 9
    v_add_u32 v18, s{s1}, v18
    """)
    for kb in range(8):
        m = vM + kb*16; x0 = vX + 8*kb
        for e in range(8): A(f"v_mul_f32 v{x0+e}, v{x0+e}, v17")
        for e in range(8): A(f"v_fma_f32 v{x0+e}, v{x0+e}, v{m+e}, v{m+8+e}")
        o = 20 + (kb % 2)*4
        for q in range(4): A(f"v_cvt_pk_bf16_f32 v{o+q}, v{x0+2*q}, v{x0+2*q+1}")
        A(f"ds_write_b64 v18, v[{o}:{o+1}] offset:{kb*64}")
        A(f"ds_write_b64 v18, v[{o+2}:{o+3}] offset:{kb*64+32}")
    A(f"""
    s_waitcnt lgkmcnt(0)
    s_barrier
    s_add_u32 s{sI}, s{sI}, 1
    s_cmp_lt_u32 s{sI}, 2
    s_cbranch_scc1 {name}_t2
    v_lshrrev_b32 v19, 2, v{vCol}
    v_lshl_add_u32 v19, v{vG}, 2, v19
    v_mul_u32_u24 v19, {PITCH}, v19
    v_and_b32 v20, 3, v{vCol}
    v_lshl_add_u32 v19, v20, 3, v19
    s_lshl_b32 s{s1}, s{sW}, 9
    v_add_u32 v19, s{s1}, v19
    s_lshl_b32 s{s3}, s{sW}, 20
    s_lshl_b32 s{s1}, s{sTg}, 10
    s_add_u32 s{s3}, s{s3}, s{s1}
    s_add_u32 s{s3}, s{s3}, {WS['H2']}
    """)
    for j in range(16):
        A(f"ds_read_b64_tr_b16 v[{32+4*j}:{33+4*j}], v19 offset:{j*32}")
        A(f"ds_read_b64_tr_b16 v[{34+4*j}:{35+4*j}], v19 offset:{j*32 + 16*PITCH}")
        if j % 4 == 3: A("s_waitcnt lgkmcnt(0)")
    for j in range(16):
        A(f"buffer_store_dwordx4 v[{32+4*j}:{35+4*j}], v{vL16}, {ws}, s{s3} offen sc1")
        A(f"s_add_u32 s{s3}, s{s3}, 65536")

def g5a_task(A, name, M, set_wt):
    s1, s2, sW, sTg, ws, wt, vL16 = M['s1'], M['s2'], M['sW'], M['sTg'], M['ws'], M['wt'], M['vL16']
    sX, sHead, sSeg, sPq, sM0R, sOffR, sOffC, sCnt = M['sX'], M['sHead'], M['sSeg'], M['sPq'], M['sM0R'], M['sOffR'], M['sOffC'], M['sCnt']
    r = FVRegs()
    A(f"""
    s_load_dwordx2 s[{sPq}:{sPq+1}], s[0:1], {KA['w1']}
    s_and_b32 s{sHead}, s{sX}, 1
    s_lshl_b32 s{sHead}, s{sHead}, 2
    s_and_b32 s{s1}, s{sTg}, 3
    s_add_u32 s{sHead}, s{sHead}, s{s1}
    s_lshr_b32 s{sSeg}, s{sX}, 1
    s_mul_i32 s{sSeg}, s{sSeg}, 7
    s_lshr_b32 s{s1}, s{sTg}, 2
    s_add_u32 s{sSeg}, s{sSeg}, s{s1}
    s_waitcnt lgkmcnt(0)
    """)
    set_wt(A, sPq, 2048*3584*2)
    fv_setup(A, r, sW, sM0R, s1, s2, 7168, 64)
    A(f"""
    s_lshl_b32 s{sOffC}, s{sSeg}, 8
    s_lshl_b32 s{sOffR}, s{sHead}, 19
    s_add_u32 s{sOffR}, s{sOffR}, {WS['H2']}
    """)
    gen_fv_core(A, r, ws, wt, sOffR, sOffC, 64*7168, sM0R, sCnt, 2, False, name, flF=' sc1')
    A.nop(8)
    A(f"""
    s_lshl_b32 s{s1}, s{sSeg}, 3
    s_add_u32 s{s1}, s{s1}, s{sHead}
    s_lshl_b32 s{s1}, s{s1}, 2
    s_add_u32 s{s1}, s{s1}, s{sW}
    s_lshl_b32 s{s1}, s{s1}, 14
    s_add_u32 s{s1}, s{s1}, {WS['U1']}
    """)
    for b in range(16):
        if b and b % 4 == 0: A(f"s_add_u32 s{s1}, s{s1}, 4096")
        A(f"buffer_store_dwordx4 {a(4*b,4)}, v{vL16}, {ws}, s{s1} offen offset:{(b%4)*1024}")

FL_UCNT = FL_H2RDY + 4096
TAILTR = False
def ttrace(A, M, idx):
    if not TAILTR: return
    TRF = WS['END'] + 131072 + 65536
    A(f"""
    s_memrealtime s[64:65]
    s_waitcnt lgkmcnt(0)
    s_lshl_b32 s66, s{M['sX']}, 5
    s_add_u32 s66, s66, s{M['sSlot']}
    s_lshl_b32 s66, s66, 5
    s_add_u32 s66, s66, {TRF + idx*4}
    v_mov_b32 v252, s64
    v_mov_b32 v253, 0
    buffer_store_dword v252, v253, {M['ws']}, s66 offen
    """)
def tail_g5g6(A, name, M, set_wt, wait_counter, wname):
    from kern_fv import g5_epilogue
    s1, s2, s3, s4, sW, ws, wt, sX, sSlot = M['s1'], M['s2'], M['s3'], M['s4'], M['sW'], M['ws'], M['wt'], M['sX'], M['sSlot']
    sM0R, sOffR, sOffC, sCnt, sAux, sEx, sBud = M['sM0R'], M['sOffR'], M['sOffC'], M['sCnt'], M['sAux'], M['sEx'], M['sBud']
    sFt, sDt, sSt, sKh, sN = M['sHead'], M['sSeg'], M['sTm'], M['sMat'], M['sTn']
    sP = M['sPq']
    aux = M['aux']
    r = FVRegs()
    ttrace(A, M, 0)
    A(f"""
    s_waitcnt vmcnt(0) lgkmcnt(0)
    s_barrier
    s_cmp_ge_u32 s{sSlot}, 28
    s_cbranch_scc1 {name}_xln
    s_load_dwordx2 s[{sP}:{sP+1}], s[0:1], {KA['w1']}
    s_load_dwordx2 s[{sP+2}:{sP+3}], s[0:1], {KA['b1']}
    s_and_b32 s{sDt}, s{sX}, 1
    s_lshl_b32 s{sDt}, s{sDt}, 2
    s_and_b32 s{s1}, s{sSlot}, 3
    s_add_u32 s{sDt}, s{sDt}, s{s1}
    s_lshr_b32 s{sFt}, s{sX}, 1
    s_mul_i32 s{sFt}, s{sFt}, 7
    s_lshr_b32 s{s1}, s{sSlot}, 2
    s_add_u32 s{sFt}, s{sFt}, s{s1}
    s_waitcnt lgkmcnt(0)
    """)
    set_wt(A, sP, 2048*3584*2)
    A(f"s_mov_b32 s{sAux}, s{sP+2}"); A(f"s_mov_b32 s{sAux+1}, s{sP+3}"); A(f"s_mov_b32 s{sAux+2}, {3584*2}"); A(f"s_mov_b32 s{sAux+3}, 0x20000")
    fv_setup(A, r, sW, sM0R, s1, s2, 7168, 64)
    A(f"""
    s_lshl_b32 s{sOffC}, s{sFt}, 8
    s_lshl_b32 s{sOffR}, s{sDt}, 19
    s_add_u32 s{sOffR}, s{sOffR}, {WS['H2']}
    """)
    def hook5():
        wait_counter(A, wname, f"s_mov_b32 s{s1}, {FL_H2CNT}", 48, f"{name}_w5", sleep=10, vt=(250, 251))
    def mid5():
        wait_counter(A, wname, f"s_mov_b32 s{s1}, {FL_H2CNT + 64}", 8, f"{name}_w5b", sleep=2, vt=(250, 251))
    def mid5b():
        wait_counter(A, wname, f"s_mov_b32 s{s1}, {FL_H2CNT + 32}", 8, f"{name}_w5c", sleep=2, vt=(250, 251))
        ttrace(A, M, 1)
    gen_fv_core(A, r, ws, wt, sOffR, sOffC, 64*7168, sM0R, sCnt, 4, False, name+'_5', flF=' sc1', hook=hook5, midhook=(2, mid5), midhook2=(2, 8, mid5b))
    ttrace(A, M, 2)
    g5_epilogue(A, r, ws, aux, sW, sFt, sDt, (s1, s2, s3), M['sA1'], fl=' sc1')
    ttrace(A, M, 3)
    A(f"""
    s_lshl_b32 s{s3}, s{sDt}, 7
    s_add_u32 s{s3}, s{s3}, {FL_UCNT}
    s_waitcnt vmcnt(0)
    s_barrier
    s_cmp_lg_u32 s{sW}, 0
    s_cbranch_scc1 {name}_s5
    s_mov_b64 s[{sEx}:{sEx+1}], exec
    s_mov_b64 exec, 1
    v_mov_b32 v250, 0
    v_mov_b32 v251, 1
    buffer_atomic_add v251, v250, {ws}, s{s3} offen
    s_mov_b64 exec, s[{sEx}:{sEx+1}]
    {name}_s5:
    """)
    A(f"s_branch {name}_g6")
    A.label(f"{name}_xln")
    A(f"""
    s_cmp_ge_u32 s{sSlot}, 30
    s_cbranch_scc1 {name}_xw
    s_sub_u32 s{M['sTg']}, 35, s{sSlot}
    s_mov_b32 s{M['sTask']}, -20
    s_branch {wname}_ln
    """)
    A.label(f"{name}_xw")
    wait_counter(A, wname, f"s_mov_b32 s{s1}, {FL_H2CNT + 32}", 8, f"{name}_wxw", sleep=24, vt=(250, 251))
    A.label(f"{name}_g6")
    sO = M['sPv']
    A(f"""
    s_load_dwordx2 s[{sP}:{sP+1}], s[0:1], {KA['w2']}
    s_load_dwordx2 s[{sP+2}:{sP+3}], s[0:1], {KA['b2']}
    s_load_dwordx2 s[{sO}:{sO+1}], s[0:1], {KA['out']}
    s_and_b32 s{sKh}, s{sSlot}, 1
    s_lshr_b32 s{s2}, s{sSlot}, 1
    s_and_b32 s{sDt}, s{sX}, 1
    s_lshl_b32 s{sDt}, s{sDt}, 2
    s_and_b32 s{s3}, s{s2}, 3
    s_add_u32 s{sDt}, s{sDt}, s{s3}
    s_lshr_b32 s{sSt}, s{sX}, 1
    s_lshl_b32 s{sSt}, s{sSt}, 2
    s_lshr_b32 s{s3}, s{s2}, 2
    s_add_u32 s{sSt}, s{sSt}, s{s3}
    s_waitcnt lgkmcnt(0)
    s_mov_b32 s{sO+2}, {2048*1024*2}
    s_mov_b32 s{sO+3}, 0x20000
    """)
    set_wt(A, sP, 3584*2048*2)
    A(f"s_mov_b32 s{sAux}, s{sP+2}"); A(f"s_mov_b32 s{sAux+1}, s{sP+3}"); A(f"s_mov_b32 s{sAux+2}, {2048*2}"); A(f"s_mov_b32 s{sAux+3}, 0x20000")
    fv_setup(A, r, sW, sM0R, s1, s2, 4096, 112)
    A(f"""
    s_lshl_b32 s{sOffC}, s{sSt}, 8
    s_mul_i32 s{s1}, s{sKh}, {1792*4096}
    s_add_u32 s{sOffC}, s{sOffC}, s{s1}
    s_mul_i32 s{sOffR}, s{sDt}, {8*112*1024}
    s_mul_i32 s{s1}, s{sKh}, {56*1024}
    s_add_u32 s{sOffR}, s{sOffR}, s{s1}
    s_add_u32 s{sOffR}, s{sOffR}, {WS['U']}
    """)
    def hook6():
        wait_counter(A, wname, f"""
        s_lshl_b32 s{s1}, s{sDt}, 7
        s_add_u32 s{s1}, s{s1}, {FL_UCNT}
        """, 28, f"{name}_w6", sleep=2, vt=(250, 251))
        ttrace(A, M, 4)
    gen_fv_core(A, r, ws, wt, sOffR, sOffC, 64*4096, sM0R, sCnt, 4, True, name+'_6', flF=' sc1', hook=hook6, half_exit=True)
    ttrace(A, M, 5)
    acc = lambda i, j: (i*8+j)*4
    t1, t2, t3 = r.t
    vX = r.vF; vGb = r.vF + 32; vB2 = r.vF + 40; vP = r.vF + 64; ep = r.vT
    sE1, sE2, sE3, sE4, sE5 = M['sA1'], M['sA2'], M['sA3'], M['sA4'], M['sI']
    A.nop(8)
    A(f"""
    s_lshl_b32 s{sE1}, s{sDt}, 4
    s_add_u32 s{sE1}, s{sE1}, s{sSt}
    s_lshl_b32 s{sE1}, s{sE1}, 1
    s_add_u32 s{sE2}, s{sE1}, s{sKh}
    s_xor_b32 s{sE3}, s{sE2}, 1
    s_lshl_b32 s{sE2}, s{sE2}, 2
    s_add_u32 s{sE2}, s{sE2}, s{sW}
    s_lshl_b32 s{sE3}, s{sE3}, 2
    s_add_u32 s{sE3}, s{sE3}, s{sW}
    s_lshl_b32 s{sE1}, s{sE2}, 13
    s_add_u32 s{sE1}, s{sE1}, {WS['PX']}
    s_add_u32 s{sE4}, s{sE1}, 4096
    s_cmp_eq_u32 s{sKh}, 0
    s_cbranch_scc0 {name}_k1s
    """)
    def send(js):
        for jj, j in enumerate(js):
            for i in range(2):
                b = jj*2 + i
                A(f"buffer_store_dwordx4 {a(acc(i,j),4)}, v{r.vL16}, {ws}, s{sE1 if b < 4 else sE4} offen offset:{(b%4)*1024} sc1")
    send([4,5,6,7]); A(f"s_branch {name}_sent"); A.label(f"{name}_k1s"); send([0,1,2,3]); A.label(f"{name}_sent")
    A(f"""
    v_lshlrev_b32 v{t2}, 4, v{r.vG}
    s_lshl_b32 s{s1}, s{sDt}, 2
    s_add_u32 s{s1}, s{s1}, s{sW}
    s_lshl_b32 s{s3}, s{s1}, 7
    s_add_u32 s{s3}, s{s3}, {WS['MOD'] + 5*4096}
    buffer_load_dwordx4 {v(vGb,4)}, v{t2}, {ws}, s{s3} offen sc1
    buffer_load_dwordx4 {v(vGb+4,4)}, v{t2}, {ws}, s{s3} offen offset:64 sc1
    s_lshl_b32 s{s2}, s{sSt}, 3
    s_lshl_b32 s{s4}, s{sKh}, 2
    s_add_u32 s{s2}, s{s2}, s{s4}
    v_lshlrev_b32 v{t1}, 1, v{r.vCol}
    s_lshl_b32 s{s3}, s{s2}, 5
    """)
    for jj in range(4):
        A(f"buffer_load_ushort v{vB2+jj}, v{t1}, {aux}, s{s3} offen offset:{jj*32}")
    A(f"""
    s_lshl_b32 s{s4}, s{s2}, 15
    s_lshl_b32 s{s3}, s{s1}, 10
    s_add_u32 s{s4}, s{s4}, s{s3}
    s_add_u32 s{s4}, s{s4}, {WS['X1']}
    """)
    for jj in range(4):
        A(f"s_add_u32 s{s3}, s{s4}, {jj*32768}")
        A(f"buffer_load_dwordx4 {v(vX+4*jj,4)}, v{r.vL16}, {ws}, s{s3} offen sc1")
    A(f"""
    v_lshlrev_b32 v{t1}, 11, v{r.vCol}
    v_and_b32 v{t3}, 1, v{r.vG}
    v_lshl_add_u32 v{t1}, v{t3}, 5, v{t1}
    v_lshrrev_b32 v{t3}, 1, v{r.vG}
    v_lshl_add_u32 v{t1}, v{t3}, 4, v{t1}
    s_lshl_b32 s{s2}, s{s2}, 15
    s_lshl_b32 s{s3}, s{s1}, 6
    s_add_u32 s{s2}, s{s2}, s{s3}
    s_waitcnt vmcnt(0)
    s_lshl_b32 s{sE2}, s{sE2}, 4
    s_add_u32 s{sE2}, s{sE2}, {FL_G6}
    v_mov_b32 v{vP}, 1
    v_mov_b32 v{vP+1}, 0
    s_mov_b64 s[{sEx}:{sEx+1}], exec
    s_mov_b64 exec, 1
    buffer_store_dword v{vP}, v{vP+1}, {ws}, s{sE2} offen sc1
    s_mov_b64 exec, s[{sEx}:{sEx+1}]
    s_lshl_b32 s{sE1}, s{sE3}, 13
    s_add_u32 s{sE1}, s{sE1}, {WS['PX']}
    s_add_u32 s{sE4}, s{sE1}, 4096
    s_lshl_b32 s{sE3}, s{sE3}, 4
    s_add_u32 s{sE3}, s{sE3}, {FL_G6}
    {name}_wp:
    buffer_load_dword v{vP}, v{vP+1}, {ws}, s{sE3} offen sc1
    s_waitcnt vmcnt(0)
    v_readfirstlane_b32 s{sE2}, v{vP}
    s_cmp_eq_u32 s{sE2}, 1
    s_cbranch_scc1 {name}_wpok
    s_sub_u32 s{sBud}, s{sBud}, 1
    s_cbranch_scc1 {wname}_exit
    s_sleep 1
    s_branch {name}_wp
    {name}_wpok:
    """)
    for b in range(8):
        A(f"buffer_load_dwordx4 {v(vP+4*b,4)}, v{r.vL16}, {ws}, s{sE1 if b < 4 else sE4} offen offset:{(b%4)*1024} sc1")
    for jj in range(4): A(f"v_lshlrev_b32 v{vB2+jj}, 16, v{vB2+jj}")
    A("s_waitcnt vmcnt(0)")
    A(f"s_cmp_eq_u32 s{sKh}, 0")
    A(f"s_cbranch_scc0 {name}_k1f")
    def fin(js):
        for jj, j in enumerate(js):
            A(f"s_add_u32 s{s3}, s{s2}, {jj*16*2048}")
            e = ep + (jj % 4)*8
            for i in range(2):
                for q in range(4): A(f"v_accvgpr_read_b32 v{e+4*i+q}, a{acc(i,j)+q}")
            for i in range(2):
                for q in range(4): A(f"v_add_f32 v{e+4*i+q}, v{e+4*i+q}, v{vP+(jj*2+i)*4+q}")
            for q in range(8): A(f"v_add_f32 v{e+q}, v{e+q}, v{vB2+jj}")
            xr = vX + 4*jj
            for q in range(4):
                A(f"v_lshlrev_b32 v{t3}, 16, v{xr+q}")
                A(f"v_fma_f32 v{e+2*q}, v{e+2*q}, v{vGb+2*q}, v{t3}")
                A(f"v_and_b32 v{t3}, 0xffff0000, v{xr+q}")
                A(f"v_fma_f32 v{e+2*q+1}, v{e+2*q+1}, v{vGb+2*q+1}, v{t3}")
            for q in range(4): A(f"v_cvt_pk_bf16_f32 v{e+q}, v{e+2*q}, v{e+2*q+1}")
            A(f"""
            s_nop 1
            v_permlane16_swap_b32 v{e}, v{e+2}
            v_permlane16_swap_b32 v{e+1}, v{e+3}
            s_nop 1
            buffer_store_dwordx4 {v(e,4)}, v{t1}, s[{sO}:{sO+3}], s{s3} offen
            """)
    fin([0,1,2,3]); ttrace(A, M, 6); A(f"s_branch {wname}_exit"); A.label(f"{name}_k1f"); fin([4,5,6,7])
    ttrace(A, M, 6)
    A(f"s_branch {wname}_exit")
```

```python
from asmlib import *
import struct, math
def f2u(x): return struct.unpack('<I', struct.pack('<f', x))[0]
DBG_INIT, DBG_MOD, DBG_RING, DBG_HRDY, DBG_QHEAD = 9*4, 10*4, 11*4, 16*4, 32*4
dbg = 's[16:19]'
FL_MOD2 = FL_H2RDY + 8192

def srd(A, s, lo, hi, size):
    A(f"s_mov_b32 s{s}, s{lo}"); A(f"s_mov_b32 s{s+1}, s{hi}"); A(f"s_mov_b32 s{s+2}, {size}"); A(f"s_mov_b32 s{s+3}, 0x20000")

def wait_dbg(A, name, off, target, lbl, sBud, sT, sreg_off=None, sleep=2, vt=(5, 6)):
    A(f"v_mov_b32 v{vt[0]}, {off}" if sreg_off is None else f"v_mov_b32 v{vt[0]}, s{sreg_off}")
    A(f"""
    {lbl}:
    buffer_load_dword v{vt[1]}, v{vt[0]}, {dbg}, 0 offen sc1
    s_waitcnt vmcnt(0)
    v_readfirstlane_b32 s{sT}, v{vt[1]}
    s_cmp_ge_u32 s{sT}, {target}
    s_cbranch_scc1 {lbl}_ok
    s_sub_u32 s{sBud}, s{sBud}, 1
    s_cbranch_scc1 {name}_exit
    s_sleep {sleep}
    s_branch {lbl}
    {lbl}_ok:
    """)

def signal_dbg(A, name, off, sW, sEx, lbl, sreg_off=None):
    A(f"""
    s_waitcnt vmcnt(0)
    s_barrier
    s_cmp_lg_u32 s{sW}, 0
    s_cbranch_scc1 {lbl}
    s_mov_b64 s[{sEx}:{sEx+1}], exec
    s_mov_b64 exec, 1
    """)
    A(f"v_mov_b32 v5, {off}" if sreg_off is None else f"v_mov_b32 v5, s{sreg_off}")
    A(f"""
    v_mov_b32 v6, 1
    buffer_atomic_add v6, v5, {dbg}, 0 offen
    s_mov_b64 exec, s[{sEx}:{sEx+1}]
    {lbl}:
    """)

def mod_task(A, name, ws, sW, sB, sEx, sBud):
    A(f"""
    s_load_dwordx2 s[44:45], s[0:1], {KA['c']}
    s_load_dwordx2 s[46:47], s[0:1], {KA['wmod']}
    s_waitcnt lgkmcnt(0)
    """)
    srd(A, 48, 44, 45, 2048); srd(A, 52, 46, 47, 1024*6144*2)
    A(f"""
    v_and_b32 v8, 7, v0
    v_lshrrev_b32 v9, 3, v0
    v_mul_u32_u24 v10, 12288, v9
    v_lshl_add_u32 v10, v8, 4, v10
    s_lshl_b32 s56, s{sB}, 7
    v_add_u32 v10, s56, v10
    v_lshlrev_b32 v11, 3, v0
    buffer_load_dwordx2 v[12:13], v11, s[48:51], 0 offen
    """)
    for row in range(32):
        A(f"s_mov_b32 s57, {row*32*12288}")
        A(f"buffer_load_dwordx4 v[{64+4*row}:{67+4*row}], v10, s[52:55], s57 offen")
    A(f"""
    s_waitcnt vmcnt(32)
    v_lshlrev_b32 v14, 16, v12
    v_and_b32 v15, 0xffff0000, v12
    v_lshlrev_b32 v16, 16, v13
    v_and_b32 v17, 0xffff0000, v13
    s_mov_b32 s56, {hex(f2u(-math.log2(math.e)))}
    """)
    for r in range(4): A(f"v_mul_f32 v{18+r}, s56, v{14+r}")
    for r in range(4): A(f"v_exp_f32 v{18+r}, v{18+r}")
    A("s_nop 0")
    for r in range(4): A(f"v_add_f32 v{18+r}, 1.0, v{18+r}")
    for r in range(4): A(f"v_rcp_f32 v{18+r}, v{18+r}")
    A("s_nop 0")
    for r in range(4): A(f"v_mul_f32 v{18+r}, v{18+r}, v{14+r}")
    A(f"""
    v_cvt_pk_bf16_f32 v22, v18, v19
    v_cvt_pk_bf16_f32 v23, v20, v21
    v_lshlrev_b32 v18, 16, v22
    v_and_b32 v19, 0xffff0000, v22
    v_lshlrev_b32 v20, 16, v23
    v_and_b32 v21, 0xffff0000, v23
    v_lshlrev_b32 v11, 4, v0
    ds_write_b128 v11, v[18:21]
    s_waitcnt lgkmcnt(0)
    s_barrier
    v_lshlrev_b32 v11, 2, v9
    """)
    for i in range(32):
        A(f"ds_read_b32 v{24+i}, v11 offset:{i*128}")
        if i % 8 == 7: A("s_waitcnt lgkmcnt(0)")
    for r in range(8): A(f"v_mov_b32 v{56+r}, 0")
    for i in range(32):
        if i % 8 == 0: A(f"s_waitcnt vmcnt({24 - i})")
        for q in range(4):
            A(f"v_lshlrev_b32 v22, 16, v{64+4*i+q}")
            A(f"v_and_b32 v23, 0xffff0000, v{64+4*i+q}")
            A(f"v_fmac_f32 v{56+2*q}, v22, v{24+i}")
            A(f"v_fmac_f32 v{57+2*q}, v23, v{24+i}")
    A(f"""
    v_lshlrev_b32 v11, 8, v9
    v_lshl_add_u32 v11, v8, 5, v11
    ds_write_b128 v11, v[56:59] offset:4096
    ds_write_b128 v11, v[60:63] offset:4112
    s_waitcnt lgkmcnt(0)
    s_barrier
    s_cmp_lg_u32 s{sW}, 0
    s_cbranch_scc1 {name}_mdone
    v_lshlrev_b32 v11, 2, v0
    """)
    for i in range(32):
        A(f"ds_read_b32 v{64+i}, v11 offset:{4096+i*256}")
        if i % 8 == 7: A("s_waitcnt lgkmcnt(0)")
    for st in (16, 8, 4, 2, 1):
        for i in range(st): A(f"v_add_f32 v{64+i}, v{64+i}, v{64+i+st}")
    A(f"""
    v_cvt_pk_bf16_f32 v33, v64, v64
    v_lshlrev_b32 v33, 16, v33
    v_add_f32 v34, 1.0, v33
    v_cvt_pk_bf16_f32 v34, v34, v34
    v_lshlrev_b32 v34, 16, v34
    s_lshr_b32 s56, s{sB}, 4
    s_cmp_eq_u32 s56, 1
    s_cselect_b32 s57, 1, 0
    s_cmp_eq_u32 s56, 4
    s_cselect_b32 s57, 1, s57
    s_cmp_eq_u32 s57, 1
    s_cbranch_scc0 {name}_nop1
    v_mov_b32 v33, v34
    {name}_nop1:
    s_lshl_b32 s56, s{sB}, 8
    s_add_u32 s56, s56, {WS['MOD']}
    buffer_store_dword v33, v11, {ws}, s56 offen sc1
    s_waitcnt vmcnt(0)
    s_mov_b64 s[{sEx}:{sEx+1}], exec
    s_mov_b64 exec, 1
    v_mov_b32 v6, 1
    s_cmp_ge_u32 s{sB}, 32
    s_cbranch_scc1 {name}_msig2
    v_mov_b32 v5, {DBG_MOD}
    buffer_atomic_add v6, v5, {dbg}, 0 offen
    s_branch {name}_msigd
    {name}_msig2:
    v_mov_b32 v5, {FL_MOD2}
    buffer_atomic_add v6, v5, {ws}, 0 offen
    {name}_msigd:
    s_mov_b64 exec, s[{sEx}:{sEx+1}]
    {name}_mdone:
    s_barrier
    """)

def ln1_task(A, name, ws, sW, sR, sEx, sBud):
    vX = 32; vL = 96; vM = 128
    A(f"""
    s_load_dwordx2 s[44:45], s[0:1], {KA['x']}
    s_waitcnt lgkmcnt(0)
    """)
    srd(A, 48, 44, 45, 2048*1024*2)
    A(f"""
    v_lshlrev_b32 v8, 11, v2
    v_lshl_add_u32 v8, v3, 3, v8
    s_lshl_b32 s56, s{sR}, 15
    s_lshl_b32 s57, s{sW}, 9
    s_add_u32 s56, s56, s57
    """)
    for kb in range(8):
        A(f"buffer_load_dwordx2 v[{vL+4*kb}:{vL+4*kb+1}], v8, s[48:51], s56 offen offset:{kb*64}")
        A(f"buffer_load_dwordx2 v[{vL+4*kb+2}:{vL+4*kb+3}], v8, s[48:51], s56 offen offset:{kb*64+32}")
    A(f"""
    v_lshlrev_b32 v7, 4, v3
    s_lshl_b32 s57, s{sW}, 10
    s_add_u32 s58, s57, {WS['MOD']}
    s_add_u32 s59, s57, {WS['MOD'] + 4096}
    s_waitcnt vmcnt(0)
    """)
    for q in range(32):
        A(f"v_lshlrev_b32 v{vX+2*q}, 16, v{vL+q}")
        A(f"v_and_b32 v{vX+2*q+1}, 0xffff0000, v{vL+q}")
    def reduce_all(reg, ldsoff):
        A(f"""
        v_mov_b32 v9, v{reg}
        s_nop 1
        v_permlane16_swap_b32 v{reg}, v9
        s_nop 1
        v_add_f32 v{reg}, v{reg}, v9
        v_mov_b32 v9, v{reg}
        s_nop 1
        v_permlane32_swap_b32 v{reg}, v9
        s_nop 1
        v_add_f32 v{reg}, v{reg}, v9
        v_lshlrev_b32 v10, 2, v2
        s_lshl_b32 s57, s{sW}, 6
        v_add_u32 v11, s57, v10
        ds_write_b32 v11, v{reg} offset:{ldsoff}
        s_waitcnt lgkmcnt(0)
        s_barrier
        ds_read_b32 v12, v10 offset:{ldsoff}
        ds_read_b32 v13, v10 offset:{ldsoff+64}
        ds_read_b32 v14, v10 offset:{ldsoff+128}
        ds_read_b32 v15, v10 offset:{ldsoff+192}
        s_waitcnt lgkmcnt(0)
        v_add_f32 v12, v12, v13
        v_add_f32 v14, v14, v15
        v_add_f32 v{reg}, v12, v14
        """)
    base = 16384
    A(f"v_add_f32 v18, v{vX}, v{vX+1}"); A(f"v_add_f32 v16, v{vX+2}, v{vX+3}"); A(f"v_add_f32 v17, v{vX+4}, v{vX+5}"); A(f"v_add_f32 v19, v{vX+6}, v{vX+7}")
    for q in range(8, 64, 4):
        A(f"v_add_f32 v18, v18, v{vX+q}"); A(f"v_add_f32 v16, v16, v{vX+q+1}"); A(f"v_add_f32 v17, v17, v{vX+q+2}"); A(f"v_add_f32 v19, v19, v{vX+q+3}")
    A("v_add_f32 v18, v18, v16"); A("v_add_f32 v17, v17, v19"); A("v_add_f32 v18, v18, v17")
    reduce_all(18, base)
    A(f"v_mul_f32 v16, {hex(f2u(1/1024))}, v18")
    for q in range(64): A(f"v_sub_f32 v{vX+q}, v{vX+q}, v16")
    A(f"v_mul_f32 v18, v{vX}, v{vX}"); A(f"v_mul_f32 v17, v{vX+1}, v{vX+1}")
    for q in range(2, 64, 2):
        A(f"v_fmac_f32 v18, v{vX+q}, v{vX+q}"); A(f"v_fmac_f32 v17, v{vX+q+1}, v{vX+q+1}")
    A("v_add_f32 v18, v18, v17")
    reduce_all(18, base + 256)
    A(f"""
    v_mov_b32 v17, {hex(f2u(1e-5))}
    v_fmac_f32 v17, {hex(f2u(1/1024))}, v18
    v_rsq_f32 v17, v17
    s_nop 0
    """)
    for q in range(64): A(f"v_mul_f32 v{vX+q}, v{vX+q}, v17")
    wait_dbg(A, name, DBG_MOD, 32, f"{name}_wmod", sBud, 57)
    for kb in range(8):
        m = vM + kb*16
        A(f"buffer_load_dwordx4 v[{m}:{m+3}], v7, {ws}, s59 offen offset:{kb*128} sc1")
        A(f"buffer_load_dwordx4 v[{m+4}:{m+7}], v7, {ws}, s59 offen offset:{kb*128+64} sc1")
        A(f"buffer_load_dwordx4 v[{m+8}:{m+11}], v7, {ws}, s58 offen offset:{kb*128} sc1")
        A(f"buffer_load_dwordx4 v[{m+12}:{m+15}], v7, {ws}, s58 offen offset:{kb*128+64} sc1")
    A(f"""
    s_lshl_b32 s58, s{sR}, 15
    s_lshl_b32 s57, s{sW}, 13
    s_add_u32 s58, s58, s57
    s_add_u32 s58, s58, {WS['H']}
    s_add_u32 s59, s58, 4096
    s_waitcnt vmcnt(0)
    """)
    for kb in range(8):
        m = vM + kb*16; x0 = vX + 8*kb
        for e in range(8): A(f"v_fma_f32 v{x0+e}, v{x0+e}, v{m+e}, v{m+8+e}")
        o = 20 + (kb % 2)*4
        for q in range(4): A(f"v_cvt_pk_bf16_f32 v{o+q}, v{x0+2*q}, v{x0+2*q+1}")
        A(f"buffer_store_dwordx4 v[{o}:{o+3}], v4, {ws}, s{58 if kb < 4 else 59} offen offset:{(kb%4)*1024} sc1")
    A(f"""
    s_lshr_b32 s57, s{sR}, 3
    s_lshl_b32 s57, s57, 2
    s_add_u32 s57, s57, {DBG_HRDY}
    """)
    signal_dbg(A, name, None, sW, sEx, f"{name}_hs", sreg_off=57)

def init_stores(A, ws, sIdx, t1, t2):
    ring = WS['RING_END'] - WS['RA']
    assert ring % (128*4096) == 0 or True
    per = (ring + 128*4096 - 1) // (128*4096)
    A(f"""
    v_lshlrev_b32 v27, 4, v0
    v_mov_b32 v28, -1
    v_mov_b32 v29, -1
    v_mov_b32 v30, -1
    v_mov_b32 v31, -1
    s_mul_i32 s{t1}, s{sIdx}, 18432
    s_add_u32 s{t1}, s{t1}, {WS['RA']}
    """)
    assert ring == 128*18432
    for i in range(4):
        A(f"buffer_store_dwordx4 v[28:31], v27, {ws}, s{t1} offen sc1")
        A(f"s_add_u32 s{t1}, s{t1}, 4096")
    A(f"""
    v_cmp_gt_u32 vcc, 128, v0
    s_and_saveexec_b64 s[{t2}:{t2+1}], vcc
    s_cbranch_execz L_inity_SFX
    buffer_store_dwordx4 v[28:31], v27, {ws}, s{t1} offen sc1
    L_inity_SFX:
    s_mov_b64 exec, s[{t2}:{t2+1}]
    """)
    return per


def init_stores_wg(A, ws, name):
    ring = WS['RING_END'] - WS['RA']
    assert ring == 256*9216
    A(f"""
    v_subrev_u32 v20, 64, v0
    v_lshlrev_b32 v20, 4, v20
    v_mov_b32 v28, 0
    v_mov_b32 v29, 0
    v_mov_b32 v30, 0
    v_mov_b32 v31, 0
    s_lshl_b32 s44, s2, 9
    s_add_u32 s44, s44, {WS['FLAGS']}
    v_cmp_gt_u32 vcc, 512, v20
    s_and_saveexec_b64 s[46:47], vcc
    s_cbranch_execz {name}_iz
    buffer_store_dwordx4 v[28:31], v20, {ws}, s44 offen sc1
    {name}_iz:
    s_mov_b64 exec, s[46:47]
    """)
```
